```python
import torch

def _softmax(x, axis=-1):
    return torch.softmax(x, dim=axis)
def _gelu(x):
    return torch.nn.functional.gelu(x, approximate="tanh")
def _silu(x):
    return torch.nn.functional.silu(x)
def _sigmoid(x):
    return torch.sigmoid(x)
def _layernorm(x, axis=-1, eps=1e-5):
    m = x.mean(dim=axis, keepdim=True)
    v = x.var(dim=axis, keepdim=True, unbiased=False)
    return (x - m) / torch.sqrt(v + eps)
def _scatter_add(tgt, idx, src, axis=0):
    return tgt.clone().index_add_(axis, idx, src)
def _segment_sum(src, seg, n):
    out = torch.zeros((n,) + src.shape[1:], dtype=src.dtype)
    return out.index_add_(0, seg, src)
def _pad(x, pw):
    flat = tuple(v for pair in reversed(pw) for v in pair)
    return torch.nn.functional.pad(x, flat)

kernel_name = 'parallel_sum__spectral_fnet__dense_activation_relu__prompt'

def setup_inputs():

    _w = (lambda a: (lambda t: t.to(torch.bfloat16) if t.is_floating_point() else t)(torch.as_tensor(a)))
    def _A_setup():
        B, S, D = 1, 2048, 1024
        ns = torch.arange(S)[:, None] * torch.arange(S)[None, :]
        nd = torch.arange(D)[:, None] * torch.arange(D)[None, :]
        Ws_re = torch.cos(-2.0 * torch.pi * ns / S).to(float)
        Ws_im = torch.sin(-2.0 * torch.pi * ns / S).to(float)
        Wd_re = torch.cos(-2.0 * torch.pi * nd / D).to(float)
        Wd_im = torch.sin(-2.0 * torch.pi * nd / D).to(float)
        return {
            "x": _w((lambda *s: torch.randn(*s, dtype=torch.bfloat16) * 0.05)(B, S, D)),
            "dft_seq_re": _w(Ws_re),
            "dft_seq_im": _w(Ws_im),
            "dft_hid_re": _w(Wd_re),
            "dft_hid_im": _w(Wd_im),
        }
    _A_in = _A_setup()

    def _B_setup():
        B, S, D, Dff = 1, 2048, 1024, 3584
        return {
            "x": _w((lambda *s: torch.randn(*s, dtype=torch.bfloat16) * 0.05)(B, S, D)),
            "w1": _w((lambda *s: torch.randn(*s, dtype=torch.bfloat16) * 0.4)(D, Dff)),
            "w2": _w((lambda *s: torch.randn(*s, dtype=torch.bfloat16) * 0.4)(Dff, D)),
        }
    _B_in = _B_setup()

    return {
        "A_x": _A_in["x"],
        "A_dft_seq_re": _A_in["dft_seq_re"],
        "A_dft_seq_im": _A_in["dft_seq_im"],
        "A_dft_hid_re": _A_in["dft_hid_re"],
        "A_dft_hid_im": _A_in["dft_hid_im"],
        "B_x": _B_in["x"],
        "B_w1": _B_in["w1"],
        "B_w2": _B_in["w2"],
    }

def reference(A_x, A_dft_seq_re, A_dft_seq_im, A_dft_hid_re, A_dft_hid_im, B_x, B_w1, B_w2):
    def _A_ref(x, dft_seq_re, dft_seq_im, dft_hid_re, dft_hid_im):
        a = torch.einsum("bsd,ed->bse", x, dft_hid_re)
        b = torch.einsum("bsd,ed->bse", x, dft_hid_im)
        y = torch.einsum("ts,bse->bte", dft_seq_re, a) - torch.einsum("ts,bse->bte", dft_seq_im, b)
        return y

    def _B_ref(x, w1, w2):
        h = torch.einsum("bsd,df->bsf", x, w1)
        zero = torch.zeros_like(h)
        h = torch.maximum(h, zero)
        return torch.einsum("bsf,fd->bsd", h, w2)

    x = A_x
    xn = _layernorm(x, axis=-1)
    return x + _A_ref(xn, A_dft_seq_re, A_dft_seq_im, A_dft_hid_re, A_dft_hid_im) + _B_ref(xn, B_w1, B_w2)
```

```python
from gen import *

BST = 16384
LY = 65536
YSL = 1056
YW = 17*YSL + 32
B_H, B_W2, B_WS, B_X, B_O = 4, 8, 12, 16, 20
B_WAVE, B_RB, B_EB, B_KQ = 24, 25, 26, 27
B_HOFF, B_WOFF, B_DM, B_CNT = 28, 29, 30, 31
B_T0, B_T1, B_T2, B_T3 = 32, 33, 34, 35
B_YM = 36
B_AE = 37
B_EXS, B_EXR, B_FLS, B_FLR = 38, 39, 40, 41
B_SPM = 42
B_M2 = 44
W_L = 1; W_HO = 2; W_ROW = 3
W_WD = 4
W_TR = 8
W_T = 12
W_FA = 32
W_H = 64
W_Y = 128
W_CS = 192; W_SN = 224

def b_loads(c):
    st = c % 4
    hl = [f"buffer_load_dwordx4 {v(W_H+16*st+4*i,4)}, {v(W_HO)}, {s(B_WS,4)}, {s(B_HOFF)} offen offset:{i*1024}" for i in range(4)]
    dm = [f"s_add_u32 m0, {s(B_DM)}, {st*BST + i*1024}\ns_nop 0\nbuffer_load_dwordx4 {v(W_WD+i)}, {s(B_W2,4)}, {s(B_WOFF)} offen lds" for i in range(4)]
    adv = [f"s_add_u32 {s(B_HOFF)}, {s(B_HOFF)}, 4096", f"s_add_u32 {s(B_WOFF)}, {s(B_WOFF)}, {64*2048}"]
    return hl, dm, adv

def b_tr(st, ks, n, slot):
    off = st*BST + ks*4096
    return [f"ds_read_b64_tr_b16 {v(W_FA+4*slot,2)}, {v(W_TR+n)} offset:{off}",
            f"ds_read_b64_tr_b16 {v(W_FA+4*slot+2,2)}, {v(W_TR+n)} offset:{off+2048}"]

ORD = [2, 3, 0, 1]

def b_super(e, opt, cm, hm, cr, hr, extra, zero=False):
    for q in range(8):
        ks = q // 4; n = ORD[q % 4]
        if cm is not None:
            if q % 2 == 0:
                e(f"s_waitcnt lgkmcnt({12 if cr is not None else max(0, 12-2*q)})")
            acc = a_(16*n, 16)
            c = "0" if (zero and ks == 0) else acc
            if not opt.get('nomfma'):
                e(f"v_mfma_f32_32x32x16_bf16 {acc}, {v(W_FA+4*q,4)}, {v(W_H+16*(cm%4)+4*(2*hm+ks),4)}, {c}")
        if cr is not None:
            for ins in b_tr(cr % 4, 2*hr + ks, n, q): e(ins)
        for g, ins in extra:
            if g == q: e(ins)

def b_body(e, opt, c, vm, vmem):
    e(f"s_waitcnt vmcnt({vm})")
    e("s_barrier")
    for half in range(2):
        extra = []
        gs = (1, 3, 5, 7, 2, 4, 6, 0)
        for i, ins in enumerate(vmem[half]): extra.append((gs[i] if i < 4 else 7, ins))
        if half == 0:
            b_super(e, opt, (c-1) if c > 0 else None, 1, c, 0, extra)
        else:
            b_super(e, opt, c, 0, c, 1, extra, zero=(c == 0))

def main_vmem(c):
    hl, dm, adv = b_loads(c)
    return [[hl[0], hl[1], dm[0], dm[1]], [hl[2], hl[3], dm[2], dm[3]] + adv]

def genB(e, opt):
    L = W_L; T = W_T
    e(".globl kb_kernel"); e(".p2align 8"); e(".type kb_kernel,@function"); e("kb_kernel:")
    e("s_cmp_ge_u32 s2, 256"); e("s_cbranch_scc1 LB_end")
    e(f"s_load_dwordx2 {s(B_W2,2)}, s[0:1], 56")
    e(f"s_load_dwordx2 {s(B_WS,2)}, s[0:1], 80")
    e(f"s_load_dwordx2 {s(B_X,2)}, s[0:1], 0")
    e(f"s_load_dwordx2 {s(B_O,2)}, s[0:1], 64")
    if opt.get('stampb'): e("s_memrealtime s[90:91]")
    e(f"v_lshrrev_b32 {v(T)}, 6, v0"); e(f"v_and_b32 {v(L)}, 63, v0")
    e(f"v_readfirstlane_b32 {s(B_WAVE)}, {v(T)}")
    e(f"s_and_b32 {s(B_KQ)}, s2, 1")
    e(f"s_bfe_u32 {s(B_RB)}, s2, 0x20001"); e(f"s_lshl_b32 {s(B_RB)}, {s(B_RB)}, 2")
    e(f"s_bfe_u32 {s(B_T0)}, s2, 0x20003"); e(f"s_add_u32 {s(B_RB)}, {s(B_RB)}, {s(B_T0)}")
    e(f"s_lshr_b32 {s(B_EB)}, s2, 5")
    for r, n in ((B_W2, 3584*1024*2), (B_WS, 0x10000000), (B_X, 0x400000), (B_O, 0x400000)):
        e(f"s_mov_b32 {s(r+2)}, {n}"); e(f"s_mov_b32 {s(r+3)}, 0x00020000")
    e(f"s_lshl_b32 {s(B_T0)}, {s(B_RB)}, 2"); e(f"s_add_u32 {s(B_T0)}, {s(B_T0)}, {s(B_WAVE)}"); e(f"s_lshl_b32 {s(B_T0)}, {s(B_T0)}, 1")
    e(f"s_add_u32 {s(B_T0)}, {s(B_T0)}, {s(B_KQ)}"); e(f"s_mul_i32 {s(B_HOFF)}, {s(B_T0)}, {112*1024}")
    e(f"v_lshlrev_b32 {v(W_HO)}, 4, {v(L)}")
    e(f"s_mul_i32 {s(B_WOFF)}, {s(B_KQ)}, {1792*2048}")
    e(f"v_lshrrev_b32 {v(T)}, 4, {v(L)}")
    e(f"v_bfe_u32 {v(T+1)}, {v(L)}, 2, 2"); e(f"v_xor_b32 {v(T+1)}, {v(T+1)}, {v(T)}")
    e(f"s_lshl_b32 {s(B_T0)}, {s(B_EB)}, 7")
    e(f"s_sub_u32 {s(B_T1)}, {2048-128-128}, {s(B_T0)}")
    e(f"v_mov_b32 {v(T+2)}, {s(B_T0)}"); e(f"v_mov_b32 {v(T+3)}, {s(B_T1)}")
    e(f"v_cmp_lt_u32 vcc, 1, {v(T+1)}")
    e(f"s_lshl_b32 {s(B_T2)}, {s(B_WAVE)}, 4")
    e(f"v_add_u32 {v(T)}, {s(B_T2)}, {v(T)}")
    e(f"v_cndmask_b32 {v(T+2)}, {v(T+2)}, {v(T+3)}, vcc")
    e(f"v_lshl_add_u32 {v(T+2)}, {v(T+1)}, 6, {v(T+2)}")
    e(f"v_and_b32 {v(T+3)}, 3, {v(L)}"); e(f"v_lshl_add_u32 {v(T+2)}, {v(T+3)}, 4, {v(T+2)}")
    e(f"v_lshl_add_u32 {v(W_WD)}, {v(T)}, 11, {v(T+2)}")
    for i in range(1, 4):
        e(f"v_add_u32 {v(W_WD+i)}, {i*8192}, {v(W_WD)}")
    e(f"s_lshl_b32 {s(B_DM)}, {s(B_WAVE)}, 12")
    e("s_waitcnt lgkmcnt(0)")
    for c in range(3):
        vm = main_vmem(c)
        for ins in vm[0] + vm[1]: e(ins)
    e(f"v_bfe_u32 {v(T)}, {v(L)}, 2, 2"); e(f"v_lshrrev_b32 {v(T+1)}, 5, {v(L)}")
    e(f"v_lshl_add_u32 {v(T+2)}, {v(T+1)}, 2, {v(T)}"); e(f"v_lshlrev_b32 {v(T+2)}, 8, {v(T+2)}")
    e(f"v_bfe_u32 {v(T+3)}, {v(L)}, 4, 1"); e(f"v_lshl_add_u32 {v(T+2)}, {v(T+3)}, 5, {v(T+2)}")
    e(f"v_and_b32 {v(T+3)}, 3, {v(L)}"); e(f"v_lshl_add_u32 {v(T+2)}, {v(T+3)}, 3, {v(T+2)}")
    e(f"v_xor_b32 {v(T)}, {s(B_KQ)}, {v(T)}")
    for n in range(4):
        e(f"v_xor_b32 {v(T+3)}, {[0,3,1,2][n]}, {v(T)}")
        e(f"v_lshl_add_u32 {v(W_TR+n)}, {v(T+3)}, 6, {v(T+2)}")
    e(f"s_lshr_b32 {s(B_T0)}, {s(B_RB)}, 1"); e(f"s_lshl_b32 {s(B_T0)}, {s(B_T0)}, 6")
    e(f"s_and_b32 {s(B_T1)}, {s(B_RB)}, 1"); e(f"s_add_u32 {s(B_T0)}, {s(B_T0)}, {s(B_T1)}")
    e(f"v_and_b32 {v(T)}, 31, {v(L)}"); e(f"v_lshl_add_u32 {v(T)}, {v(T)}, 1, {s(B_T0)}")
    e(f"v_cmp_eq_u32 {s(B_SPM,2)}, 0, {v(T)}")
    e(f"s_add_u32 {s(B_T1)}, {s(B_WAVE)}, 1"); e(f"s_lshr_b32 {s(B_T1)}, {s(B_T1)}, 1"); e(f"s_lshl_b32 {s(B_T1)}, {s(B_T1)}, 10")
    e(f"s_and_b32 {s(B_T2)}, {s(B_WAVE)}, 1"); e(f"s_cmp_eq_u32 {s(B_T2)}, 1"); e(f"s_cselect_b32 {s(B_T2)}, -1, 1")
    e(f"v_mul_lo_u32 {v(W_ROW)}, {v(T)}, {s(B_T2)}"); e(f"v_add_u32 {v(W_ROW)}, {s(B_T1)}, {v(W_ROW)}")
    e(f"s_cmp_ge_u32 {s(B_WAVE)}, 2"); e(f"s_cselect_b32 {s(B_T2)}, 512, 0"); e(f"s_sub_u32 {s(B_T2)}, {s(B_T1)}, {s(B_T2)}")
    e(f"v_mov_b32 {v(T+2)}, {s(B_T2)}")
    e(f"v_cndmask_b32 {v(W_ROW)}, {v(W_ROW)}, {v(T+2)}, {s(B_SPM,2)}")
    e(f"v_lshlrev_b32 {v(W_ROW)}, 11, {v(W_ROW)}"); e(f"v_lshl_add_u32 {v(W_ROW)}, {v(T+1)}, 4, {v(W_ROW)}")
    gen_trig(e, opt, T, T+1)
    e(f"s_and_b32 {s(B_T0)}, {s(B_RB)}, 1"); e(f"s_mul_i32 {s(B_AE)}, {s(B_T0)}, {AE_PAR}")
    e(f"s_lshl_b32 {s(B_T0)}, {s(B_EB)}, 1"); e(f"s_add_u32 {s(B_T0)}, {s(B_T0)}, {s(B_KQ)}"); e(f"s_mul_i32 {s(B_T0)}, {s(B_T0)}, {AE_ET}")
    e(f"s_add_u32 {s(B_AE)}, {s(B_AE)}, {s(B_T0)}")
    e(f"s_mul_i32 {s(B_T0)}, {s(B_WAVE)}, {AE_C}"); e(f"s_add_u32 {s(B_AE)}, {s(B_AE)}, {s(B_T0)}"); e(f"s_add_u32 {s(B_AE)}, {s(B_AE)}, {WS_AE}")
    e(f"s_mul_i32 {s(B_YM)}, {s(B_WAVE)}, {YW}"); e(f"s_add_u32 {s(B_YM)}, {s(B_YM)}, {LY}")
    e(f"s_lshl_b32 {s(B_T0)}, s2, 2"); e(f"s_add_u32 {s(B_T0)}, {s(B_T0)}, {s(B_WAVE)}"); e(f"s_xor_b32 {s(B_T1)}, {s(B_T0)}, 4")
    e(f"s_lshl_b32 {s(B_EXS)}, {s(B_T0)}, 13"); e(f"s_add_u32 {s(B_EXS)}, {s(B_EXS)}, {WS_EX}")
    e(f"s_lshl_b32 {s(B_EXR)}, {s(B_T1)}, 13"); e(f"s_add_u32 {s(B_EXR)}, {s(B_EXR)}, {WS_EX}")
    e(f"s_lshl_b32 {s(B_FLS)}, {s(B_T0)}, 6"); e(f"s_add_u32 {s(B_FLS)}, {s(B_FLS)}, {WS_FL}")
    e(f"s_lshl_b32 {s(B_FLR)}, {s(B_T1)}, 6"); e(f"s_add_u32 {s(B_FLR)}, {s(B_FLR)}, {WS_FL}")
    X33 = T+4
    e(f"v_min_u32 {v(T+2)}, 33, {v(L)}")
    e(f"v_lshrrev_b32 {v(T+3)}, 1, {v(T+2)}"); e(f"v_and_b32 {v(T+2)}, 1, {v(T+2)}")
    e(f"v_mul_u32_u24 {v(T+5)}, {YSL}, {v(T+3)}"); e(f"v_lshl_add_u32 {v(T+5)}, {v(T+2)}, 4, {v(T+5)}")
    e(f"v_add_u32 {v(T+5)}, {s(B_YM)}, {v(T+5)}"); e(f"v_add_u32 {v(T+5)}, 1024, {v(T+5)}")
    e(f"v_and_b32 {v(T+6)}, 7, {v(T+3)}"); e(f"v_lshlrev_b32 {v(T+6)}, 10, {v(T+6)}"); e(f"v_lshl_add_u32 {v(T+6)}, {v(T+2)}, 9, {v(T+6)}")
    e(f"v_bfe_u32 {v(T+2)}, {v(T+3)}, 3, 1"); e(f"v_mul_u32_u24 {v(T+2)}, {AE_MAT}, {v(T+2)}"); e(f"v_add_u32 {v(T+6)}, {v(T+6)}, {v(T+2)}")
    e(f"v_lshrrev_b32 {v(T+2)}, 4, {v(T+3)}"); e(f"v_lshl_add_u32 {v(T+6)}, {v(T+2)}, 13, {v(T+6)}")
    e(f"v_add_u32 {v(X33)}, {AE_ET}, {v(T+6)}")
    e(f"s_lshl_b32 {s(B_T0)}, {s(B_EB)}, 7"); e(f"s_lshl_b32 {s(B_T1)}, {s(B_KQ)}, 6"); e(f"s_add_u32 s46, {s(B_T0)}, {s(B_T1)}")
    e(f"s_sub_u32 s47, {2048-64}, s46")
    if opt.get('stampb'): e("s_memrealtime s[88:89]")
    b_body(e, opt, 0, 16, main_vmem(3))
    e(f"s_mov_b32 {s(B_CNT)}, 6")
    e(".p2align 3")
    e("LB_loop:")
    for c in range(1, 5):
        b_body(e, opt, c, 16, main_vmem(c+3))
    e(f"s_sub_u32 {s(B_CNT)}, {s(B_CNT)}, 1"); e(f"s_cmp_lg_u32 {s(B_CNT)}, 0"); e("s_cbranch_scc1 LB_loop")
    yl = []
    for sl in range(17):
        goff = (sl % 8)*1024 + (AE_MAT if 8 <= sl < 16 else 0) + (8192 if sl == 16 else 0)
        yl.append(f"s_add_u32 m0, {s(B_YM)}, {sl*YSL}\ns_add_u32 {s(B_T0)}, {s(B_AE)}, {goff}\nbuffer_load_dwordx4 {v(W_HO)}, {s(B_WS,4)}, {s(B_T0)} offen lds")
    yl.append(f"buffer_load_dwordx4 {v(T+8,4)}, {v(X33)}, {s(B_WS,4)}, {s(B_AE)} offen")
    XR = 240
    for i in range(4):
        yl.append(f"buffer_load_dwordx4 {a_(64+4*i,4)}, {v(W_ROW)}, {s(B_X,4)}, s{46 + i//2} offen offset:{(i%2)*32}")
    b_body(e, opt, 25, 16, [yl[0:4], yl[4:8]])
    b_body(e, opt, 26, 16, [yl[8:12], yl[12:16]])
    b_body(e, opt, 27, 16, [yl[16:20], yl[20:22]])
    b_super(e, opt, 27, 1, None, 0, [])
    if opt.get('stampb'): e("s_memrealtime s[86:87]")
    e("s_nop 7"); e("s_nop 7")
    for i in range(8):
        if i == 4: e(f"s_add_u32 {s(B_EXS)}, {s(B_EXS)}, 4096")
        e(f"buffer_store_dwordx4 {a_(32+4*i,4)}, {v(W_HO)}, {s(B_WS,4)}, {s(B_EXS)} offen offset:{(i%4)*1024} sc0 sc1")
    e("s_waitcnt vmcnt(12)")
    e(f"ds_write_b128 {v(T+5)}, {v(T+8,4)}")
    e(f"v_add_u32 {v(T)}, {s(B_YM)}, {v(W_HO)}")
    e(f"v_and_b32 {v(T+2)}, 31, {v(L)}"); e(f"v_lshrrev_b32 {v(T+3)}, 5, {v(L)}")
    e(f"v_lshlrev_b32 {v(T+6)}, 5, {v(T+2)}"); e(f"v_sub_u32 {v(T+1)}, {v(T)}, {v(T+6)}"); e(f"v_add_u32 {v(T+1)}, 512, {v(T+1)}")
    e(f"v_lshlrev_b32 {v(T+6)}, 4, {v(T+3)}"); e(f"v_add_u32 {v(T+6)}, {s(B_YM)}, {v(T+6)}"); e(f"v_add_u32 {v(T+6)}, 1024, {v(T+6)}")
    e(f"v_cmp_eq_u32 vcc, 0, {v(T+2)}"); e("s_nop 1")
    e(f"v_cndmask_b32 {v(T+1)}, {v(T+1)}, {v(T+6)}, vcc")
    e("s_waitcnt lgkmcnt(0)")
    def yreads(kk):
        b = W_FA + 16*(kk%2)
        return [f"ds_read_b128 {v(b,4)}, {v(T)} offset:{kk*YSL}", f"ds_read_b128 {v(b+4,4)}, {v(T+1)} offset:{kk*YSL}",
                f"ds_read_b128 {v(b+8,4)}, {v(T)} offset:{(8+kk)*YSL}", f"ds_read_b128 {v(b+12,4)}, {v(T+1)} offset:{(8+kk)*YSL}"]
    for ins in yreads(0) + yreads(1): e(ins)
    GF = W_H
    e(f"ds_read_b128 {v(GF,4)}, {v(T)} offset:{16*YSL}"); e(f"ds_read_b128 {v(GF+4,4)}, {v(T+1)} offset:{16*YSL}")
    for kk in range(8):
        b = W_FA + 16*(kk%2)
        e(f"s_waitcnt lgkmcnt({6 if kk == 0 else 4 if kk < 7 else 0})")
        nxt = yreads(kk+2) if kk + 2 < 8 else []
        for q in range(4):
            acc = v(W_Y+16*q, 16)
            bf = v((W_CS if q < 2 else W_SN) + 4*kk, 4)
            e(f"v_mfma_f32_32x32x16_bf16 {acc}, {v(b+4*q,4)}, {bf}, {'0' if kk == 0 else acc}")
            if nxt: e(nxt[q])
        if kk == 3:
            e("s_waitcnt vmcnt(0)")
            e(f"v_mov_b32 {v(T+8)}, 1"); e(f"v_mov_b32 {v(T+9)}, 0")
            e("s_mov_b64 exec, 1")
            e(f"buffer_store_dword {v(T+8)}, {v(T+9)}, {s(B_WS,4)}, {s(B_FLS)} offen sc0 sc1")
            e("s_mov_b64 exec, -1")
    e(f"s_and_b32 {s(B_T0)}, {s(B_RB)}, 1"); e(f"s_or_b32 {s(B_T0)}, {s(B_T0)}, {s(B_WAVE)}"); e(f"s_cmp_lg_u32 {s(B_T0)}, 0"); e("s_cbranch_scc1 LB_nog")
    for q in range(2):
        acc = v(W_Y+16*q, 16)
        e(f"v_mfma_f32_32x32x16_bf16 {acc}, {v(GF+4*q,4)}, {v(T+12,4)}, {acc}")
    e("LB_nog:")
    e(f"s_and_b32 {s(B_T0)}, {s(B_WAVE)}, 1"); e(f"s_lshl_b32 {s(B_T0)}, {s(B_T0)}, 12")
    e(f"s_add_u32 {s(B_T1)}, {s(B_T0)}, {LY}"); e(f"v_add_u32 {v(T+2)}, {s(B_T1)}, {v(W_HO)}")
    e(f"s_sub_u32 {s(B_T1)}, {LY+12288}, {s(B_T0)}"); e(f"v_add_u32 {v(T+3)}, {s(B_T1)}, {v(W_HO)}")
    e(f"s_lshr_b32 {s(B_T0)}, {s(B_WAVE)}, 1"); e(f"s_lshl_b32 {s(B_T0)}, {s(B_T0)}, 12"); e(f"s_add_u32 {s(B_T0)}, {s(B_T0)}, {LY}")
    e(f"v_add_u32 {v(T+6)}, {s(B_T0)}, {v(W_HO)}"); e(f"v_add_u32 {v(T+7)}, 8192, {v(T+6)}")
    e(f"v_cndmask_b32 {v(T+6)}, {v(T+2)}, {v(T+6)}, {s(B_SPM,2)}")
    e(f"v_cndmask_b32 {v(T+7)}, {v(T+3)}, {v(T+7)}, {s(B_SPM,2)}")
    K2 = T+8; K1A = T+10; K1B = T+12+4
    e(f"s_cmp_ge_u32 {s(B_WAVE)}, 2"); e(f"s_cselect_b32 {s(B_T0)}, 0xbf800000, 0x3f800000")
    e(f"s_add_u32 {s(B_T1)}, {s(B_WAVE)}, 1"); e(f"s_bitcmp1_b32 {s(B_T1)}, 1"); e(f"s_cselect_b32 {s(B_T1)}, 0xbf800000, 0x3f800000")
    e(f"v_mov_b32 {v(K2)}, 1.0"); e(f"v_mov_b32 {v(K2+1)}, {s(B_T0)}")
    e(f"v_cndmask_b32 {v(K2)}, {v(K2)}, {v(K2+1)}, {s(B_SPM,2)}"); e(f"v_mov_b32 {v(K2+1)}, {v(K2)}")
    e(f"v_mul_f32 {v(K1A)}, {s(B_T1)}, {v(K2)}"); e(f"v_mov_b32 {v(K1A+1)}, {v(K1A)}")
    e(f"v_mov_b32 {v(K1B)}, {s(B_T1)}"); e(f"v_mov_b32 {v(K1B+1)}, {s(B_T1)}")
    e(f"s_bitcmp1_b32 {s(B_WAVE)}, 0"); e(f"s_cselect_b64 {s(B_M2,2)}, {s(B_SPM,2)}, 0")
    e(f"v_mov_b32 {v(T+18)}, -2.0"); e(f"v_mov_b32 {v(T+19)}, -2.0")
    e("s_nop 7"); e("s_nop 3")
    e(f"s_andn2_b64 exec, -1, {s(B_M2,2)}")
    for r in range(0, 32, 2):
        e(f"v_pk_add_f32 {v(W_Y+r,2)}, {v(W_Y+r,2)}, {v(W_Y+32+r,2)}")
    for r in range(0, 32, 2):
        e(f"v_pk_fma_f32 {v(W_Y+32+r,2)}, {v(W_Y+32+r,2)}, {v(T+18,2)}, {v(W_Y+r,2)}")
    e("s_mov_b64 exec, -1")
    for arr, src in ((0, 0), (2, 16), (1, 32), (3, 48)):
        for q in range(4):
            e(f"ds_write_b128 {v(T)}, {v(W_Y+src+4*q,4)} offset:{arr*4096+q*1024}")
    e("s_waitcnt lgkmcnt(0)")
    e("s_barrier")
    R = W_H
    for half in range(2):
        for c in range(4):
            ad = (T+2+half) if c % 2 == 0 else (T+6+half)
            for q in range(4):
                e(f"ds_read_b128 {v(R+16*c+4*q,4)}, {v(ad)} offset:{c*YW+q*1024}")
        K1 = K1A if half == 0 else K1B
        Y = W_Y + 16*half
        e("s_waitcnt lgkmcnt(4)")
        for r in range(0, 16, 2):
            e(f"v_pk_fma_f32 {v(Y+r,2)}, {v(R+32+r,2)}, {v(K2,2)}, {v(R+r,2)}")
        e("s_waitcnt lgkmcnt(0)")
        for r in range(0, 16, 2):
            e(f"v_pk_add_f32 {v(R+16+r,2)}, {v(R+16+r,2)}, {v(R+48+r,2)}")
        for r in range(0, 16, 2):
            e(f"v_pk_fma_f32 {v(Y+r,2)}, {v(R+16+r,2)}, {v(K1,2)}, {v(Y+r,2)}")
    for r in range(32):
        e(f"v_accvgpr_read_b32 {v(W_Y+32+r)}, {a_(r)}")
    for r in range(0, 32, 2):
        e(f"v_pk_add_f32 {v(W_Y+r,2)}, {v(W_Y+r,2)}, {v(W_Y+32+r,2)}")
    e(f"v_mov_b32 {v(T+9)}, 0")
    e(f"s_mov_b32 {s(B_CNT)}, 200000")
    e("LB_poll:")
    e(f"buffer_load_dword {v(T+8)}, {v(T+9)}, {s(B_WS,4)}, {s(B_FLR)} offen sc0 sc1")
    e("s_waitcnt vmcnt(0)")
    e(f"v_readfirstlane_b32 {s(B_T0)}, {v(T+8)}")
    e(f"s_cmp_eq_u32 {s(B_T0)}, 1"); e("s_cbranch_scc1 LB_got")
    e("s_sleep 1")
    e(f"s_sub_u32 {s(B_CNT)}, {s(B_CNT)}, 1"); e(f"s_cmp_lg_u32 {s(B_CNT)}, 0"); e("s_cbranch_scc1 LB_poll")
    e("LB_got:")
    if opt.get('stampb'): e("s_memrealtime s[84:85]")
    for i in range(8):
        if i == 4: e(f"s_add_u32 {s(B_EXR)}, {s(B_EXR)}, 4096")
        e(f"buffer_load_dwordx4 {v(R+4*i,4)}, {v(W_HO)}, {s(B_WS,4)}, {s(B_EXR)} offen offset:{(i%4)*1024} sc0 sc1")
    XV = W_Y + 32
    for r in range(16):
        e(f"v_accvgpr_read_b32 {v(XV+r)}, {a_(64+r)}")
    for i in range(4):
        e(f"s_waitcnt vmcnt({6-i})")
        Y = W_Y + 8*i
        for r in range(0, 8, 2):
            e(f"v_pk_add_f32 {v(Y+r,2)}, {v(Y+r,2)}, {v(R+8*i+r,2)}")
        e("s_nop 0")
        for r in range(4):
            e(f"v_permlane32_swap_b32 {v(Y+r)}, {v(Y+4+r)}")
        for d in range(4):
            e(f"v_lshlrev_b32 {v(T+2)}, 16, {v(XV+4*i+d)}"); e(f"v_and_b32 {v(T+3)}, 0xffff0000, {v(XV+4*i+d)}")
            e(f"v_pk_add_f32 {v(Y+2*d,2)}, {v(Y+2*d,2)}, {v(T+2,2)}")
            e(f"v_cvt_pk_bf16_f32 {v(XV+4*i+d)}, {v(Y+2*d)}, {v(Y+2*d+1)}")
        e(f"buffer_store_dwordx4 {v(XV+4*i,4)}, {v(W_ROW)}, {s(B_O,4)}, s{46 + i//2} offen offset:{(i%2)*32}")
    if opt.get('stampb'):
        e("s_waitcnt vmcnt(0)")
        e("s_memrealtime s[92:93]")
        e("s_waitcnt lgkmcnt(0)")
        e("v_mov_b32 v2, s90"); e("v_mov_b32 v3, s92"); e("v_mov_b32 v4, s88"); e("v_mov_b32 v5, s86"); e("v_mov_b32 v7, s84")
        e("s_lshl_b32 s3, s2, 5"); e("s_add_u32 s3, s3, 0x3000000"); e("v_mov_b32 v6, s3")
        e("v_cmp_eq_u32 vcc, 0, v0"); e("s_and_saveexec_b64 s[94:95], vcc"); e("s_cbranch_execz LB_end")
        e(f"buffer_store_dwordx4 v[2:5], v6, {s(B_WS,4)}, 0 offen")
        e(f"buffer_store_dword v7, v6, {s(B_WS,4)}, 0 offen offset:16")
    e("LB_end:"); e("s_endpgm")

def gen_trig(e, opt, vt, vhi):
    T = W_T
    A = W_Y
    TQ = T+8; TQS = T+9; B0 = T+10; B0S = T+11; D2 = T+16; D2S = T+18
    e(f"v_cvt_f32_u32 {v(TQ)}, {v(vt)}"); e(f"v_mul_f32 {v(TQ)}, 0x3a000000, {v(TQ)}")
    e(f"v_mov_b32 {v(T+2)}, 0x3e800000")
    e(f"v_cndmask_b32 {v(TQS)}, {v(TQ)}, {v(T+2)}, {s(B_SPM,2)}")
    e(f"v_lshl_add_u32 {v(T+2)}, {v(vhi)}, 5, {s(B_WAVE)}"); e(f"v_cvt_f32_u32 {v(T+2)}, {v(T+2)}")
    e(f"v_mul_f32 {v(B0)}, {v(TQ)}, {v(T+2)}"); e(f"v_mul_f32 {v(B0S)}, {v(TQS)}, {v(T+2)}")
    import struct
    fl = lambda x: hex(struct.unpack('<I', struct.pack('<f', float(x)))[0])
    for kk in range(2):
        for jj in range(8):
            e(f"v_fmaak_f32 {v(A+8*kk+jj)}, {v(TQ)}, {v(B0)}, 0" if False else f"v_mov_b32 {v(T+2)}, {fl(64*kk+4*jj)}")
            e(f"v_fma_f32 {v(A+8*kk+jj)}, {v(TQ)}, {v(T+2)}, {v(B0)}")
            e(f"v_fma_f32 {v(A+16+8*kk+jj)}, {v(TQS)}, {v(T+2)}, {v(B0S)}")
    e(f"v_mul_f32 {v(D2)}, 0x42800000, {v(TQ)}"); e(f"v_mul_f32 {v(D2S)}, 0x42800000, {v(TQS)}")
    e(f"v_mul_f32 {v(T+12)}, 0x44000000, {v(TQ)}"); e(f"v_mul_f32 {v(T+13)}, 0x44000000, {v(TQS)}")
    for r in [A+i for i in range(32)] + [D2, D2S, T+12, T+13]:
        e(f"v_fract_f32 {v(r)}, {v(r)}")
    for r in [A+i for i in range(16)] + [D2, D2S, T+12]:
        e(f"v_cos_f32 {v(r)}, {v(r)}")
    for r in [A+16+i for i in range(16)] + [T+13]:
        e(f"v_sin_f32 {v(r)}, {v(r)}")
    e("s_nop 0")
    e(f"v_add_f32 {v(D2)}, {v(D2)}, {v(D2)}"); e(f"v_add_f32 {v(D2S)}, {v(D2S)}, {v(D2S)}")
    e(f"v_mov_b32 {v(D2+1)}, {v(D2)}"); e(f"v_mov_b32 {v(D2S+1)}, {v(D2S)}")
    for kk in range(8):
        o = 8*(kk % 2)
        if kk >= 2:
            for base, D in ((A, D2), (A+16, D2S)):
                for jj in range(0, 8, 2):
                    e(f"v_pk_fma_f32 {v(base+o+jj,2)}, {v(base+8-o+jj,2)}, {v(D,2)}, {v(base+o+jj,2)} neg_lo:[0,0,1] neg_hi:[0,0,1]")
        for d in range(4):
            e(f"v_cvt_pk_bf16_f32 {v(W_CS+4*kk+d)}, {v(A+o+2*d)}, {v(A+o+2*d+1)}")
            e(f"v_cvt_pk_bf16_f32 {v(W_SN+4*kk+d)}, {v(A+16+o+2*d)}, {v(A+16+o+2*d+1)}")
        if kk == 0:
            e(f"v_cvt_pk_bf16_f32 {v(T+2)}, {v(T+13)}, {v(A+16+1)}")
            e(f"s_cmp_eq_u32 {s(B_WAVE)}, 0"); e(f"s_cselect_b32 {s(B_M2)}, -1, 0"); e(f"s_mov_b32 {s(B_M2+1)}, 0")
            e(f"v_cndmask_b32 {v(W_SN)}, {v(W_SN)}, {v(T+2)}, {s(B_M2,2)}")
    e(f"v_cvt_pk_bf16_f32 {v(T+12)}, {v(T+12)}, {v(T+12)}")
    for r in (13, 14, 15): e(f"v_mov_b32 {v(T+r)}, 0")
```

```python
import sys, re

WS_H   = 0x0000000
WS_AE  = 0x1000000
WS_EX  = 0x1800000
WS_FL  = 0x2000000
AE_C = 9*1024
AE_ET = 4*AE_C
AE_PAR = 17*AE_ET
AE_MAT = 2*AE_PAR

class Asm:
    def __init__(self):
        self.lines = []
    def __call__(self, s):
        for l in s.split('\n'):
            m = re.search(r'offset:(\d+)', l)
            if m:
                lim = 65536 if l.startswith('ds_') else 4096
                assert int(m.group(1)) < lim, l
            self.lines.append(l)
    def text(self):
        return "\n".join(self.lines) + "\n"

def v(a, n=1):
    return f"v{a}" if n == 1 else f"v[{a}:{a+n-1}]"
def a_(a, n=1):
    return f"a{a}" if n == 1 else f"a[{a}:{a+n-1}]"
def s(a, n=1):
    return f"s{a}" if n == 1 else f"s[{a}:{a+n-1}]"

def kernel_desc(e, name, vgprs=512, accum=256):
    e(".p2align 6")
    e(f".amdhsa_kernel {name}")
    e(f"  .amdhsa_next_free_vgpr {vgprs}")
    e("  .amdhsa_next_free_sgpr 102")
    e(f"  .amdhsa_accum_offset {accum}")
    e("  .amdhsa_group_segment_fixed_size 0")
    e("  .amdhsa_kernarg_size 88")
    e("  .amdhsa_user_sgpr_count 2")
    e("  .amdhsa_user_sgpr_kernarg_segment_ptr 1")
    e("  .amdhsa_system_sgpr_workgroup_id_x 1")
    e(".end_amdhsa_kernel")

def bf16_round(e, dst, src):
    e(f"v_cvt_pk_bf16_f32 {v(dst)}, {v(src)}, {v(src)}")
    e(f"v_lshlrev_b32 {v(dst)}, 16, {v(dst)}")

XST = 16384
WST = 32768
LX0 = 0
LW0 = 49152
LSP = 147456

S_X, S_W, S_WS, S_T = 4, 8, 12, 16
S_WAVE, S_RB, S_CB = 20, 21, 22
S_STRIDE = 23
S_WC = 24
S_XOFF = 32
S_RDW, S_RDX = 33, 34
S_DMW, S_DMX = 35, 36
S_CNT = 37
S_WADV = 38
S_T0, S_T1, S_T2, S_T3 = 40, 41, 42, 43
S_MASK = 44
V_LANE = 1
V_WD = 2
V_XD = 6
V_TR = 10
V_XR = 14
V_TRC = 18
V_XRC = 22
V_SUM = 26
V_SQ = 28
V_CS = 30
V_ONE = 32
V_T = 34
V_FA = 48
V_FX = 80
V_ACC = 128

def genA(e, opt):
    e(".globl ka_kernel"); e(".p2align 8"); e(".type ka_kernel,@function"); e("ka_kernel:")
    e("s_cmp_ge_u32 s2, 256"); e("s_cbranch_scc1 LA_end")
    e(f"s_load_dwordx2 {s(S_X,2)}, s[0:1], 0")
    e(f"s_load_dwordx2 {s(S_WS,2)}, s[0:1], 80")
    if opt.get('stamp'):
        e("s_memrealtime s[90:91]")
    e(f"v_lshrrev_b32 {v(V_T)}, 6, v0")
    e(f"v_and_b32 {v(V_LANE)}, 63, v0")
    e(f"v_readfirstlane_b32 {s(S_WAVE)}, {v(V_T)}")
    e(f"s_and_b32 {s(S_T0)}, s2, 7"); e(f"s_lshr_b32 {s(S_T1)}, s2, 3")
    e(f"s_and_b32 {s(S_RB)}, {s(S_T0)}, 1"); e(f"s_lshl_b32 {s(S_RB)}, {s(S_RB)}, 3")
    e(f"s_and_b32 {s(S_T2)}, {s(S_T1)}, 7"); e(f"s_add_u32 {s(S_RB)}, {s(S_RB)}, {s(S_T2)}")
    e(f"s_lshr_b32 {s(S_CB)}, {s(S_T0)}, 1"); e(f"s_lshl_b32 {s(S_CB)}, {s(S_CB)}, 2")
    e(f"s_lshr_b32 {s(S_T2)}, {s(S_T1)}, 3"); e(f"s_add_u32 {s(S_CB)}, {s(S_CB)}, {s(S_T2)}")
    e(f"s_mov_b32 {s(S_X+2)}, 0x400000"); e(f"s_mov_b32 {s(S_X+3)}, 0x00020000")
    e(f"s_mov_b32 {s(S_WS+2)}, 0x10000000"); e(f"s_mov_b32 {s(S_WS+3)}, 0x00020000")
    e(f"s_mov_b32 {s(S_W+3)}, 0x00020000")
    e(f"s_cmp_ge_u32 {s(S_CB)}, 14"); e("s_cbranch_scc1 LA_dft")
    genA_path(e, opt, dft=False)
    e("LA_dft:")
    genA_path(e, opt, dft=True)
    e("LA_end:"); e("s_endpgm")

def genA_path(e, opt, dft):
    P = "LAd" if dft else "LAw"
    L = V_LANE; T = V_T
    if not dft:
        e(f"s_load_dwordx2 {s(S_W,2)}, s[0:1], 48")
        e(f"s_mov_b32 {s(S_W+2)}, {1024*3584*2}")
        stride = 7168
    else:
        e(f"s_lshl_b32 {s(S_T0)}, {s(S_CB)}, 3"); e(f"s_sub_u32 {s(S_T0)}, {s(S_T0)}, {14*8-24}")
        e(f"s_load_dwordx2 {s(S_W,2)}, s[0:1], {s(S_T0)}")
        e(f"s_mov_b32 {s(S_W+2)}, {1024*1024*2}")
        stride = 2048
    for i in range(8):
        e(f"s_mov_b32 {s(S_WC+i)}, {i*2*stride}")
    e(f"v_lshrrev_b32 {v(T)}, 5, {v(L)}")
    e(f"s_lshl_b32 {s(S_T0)}, {s(S_WAVE)}, 4")
    e(f"v_add_u32 {v(T+1)}, {s(S_T0)}, {v(T)}")
    e(f"v_mul_u32_u24 {v(T+1)}, {stride}, {v(T+1)}")
    if not dft:
        e(f"s_lshl_b32 {s(S_T0)}, {s(S_CB)}, 9")
        e(f"v_add_u32 {v(T+1)}, {s(S_T0)}, {v(T+1)}")
    e(f"v_and_b32 {v(T+2)}, 3, {v(L)}"); e(f"v_lshl_add_u32 {v(T+1)}, {v(T+2)}, 4, {v(T+1)}")
    e(f"v_bfe_u32 {v(T+2)}, {v(L)}, 2, 3")
    for i in range(4):
        if not dft:
            e(f"v_add_u32 {v(T+3)}, {(2*i)%4}, {v(T)}")
            e(f"v_xor_b32 {v(T+3)}, {v(T+3)}, {v(T+2)}")
        else:
            e(f"v_xor_b32 {v(T+3)}, {i}, {v(T+2)}")
        e(f"v_lshl_add_u32 {v(V_WD+i)}, {v(T+3)}, 6, {v(T+1)}")
    for i in range(4):
        e(f"v_lshrrev_b32 {v(T)}, 3, {v(L)}")
        if dft: rowmap_dft(e, i, T, T+1, T+2)
        e(f"v_add_u32 {v(T)}, {8*i}, {v(T)}")
        if not dft: rowmap(e, dft, T, T+1, T+2)
        e(f"v_lshrrev_b32 {v(T+2)}, 1, {v(T)}"); e(f"v_xor_b32 {v(T+2)}, {v(T+2)}, {v(L)}"); e(f"v_and_b32 {v(T+2)}, 7, {v(T+2)}")
        e(f"v_lshlrev_b32 {v(T+2)}, 4, {v(T+2)}")
        e(f"v_lshl_add_u32 {v(V_XD+i)}, {v(T+1)}, 11, {v(T+2)}")
    e(f"s_lshl_b32 {s(S_T0)}, {s(S_WAVE)}, 13"); e(f"s_add_u32 {s(S_DMW)}, {s(S_T0)}, {LW0}")
    e(f"s_lshl_b32 {s(S_DMX)}, {s(S_WAVE)}, 12")
    e(f"s_mov_b32 {s(S_XOFF)}, 0")
    e(f"s_mov_b32 {s(S_WADV)}, {64*stride}")
    e("s_waitcnt lgkmcnt(0)")
    for c in range(2):
        for ins in dma_list(c % 3 if False else None):
            e(ins)
        for ins in dma_advance(): e(ins)
    e(f"v_bfe_u32 {v(T)}, {v(L)}, 2, 2")
    e(f"v_lshrrev_b32 {v(T+1)}, 5, {v(L)}")
    if not dft:
        e(f"v_lshl_add_u32 {v(T+2)}, {v(T+1)}, 3, {v(T)}")
    else:
        e(f"v_lshlrev_b32 {v(T+2)}, 1, {v(T)}"); e(f"v_lshl_add_u32 {v(T+2)}, {v(T+1)}, 4, {v(T+2)}")
    e(f"v_lshlrev_b32 {v(T+2)}, 9, {v(T+2)}")
    e(f"v_bfe_u32 {v(T+3)}, {v(L)}, 4, 1"); e(f"v_lshl_add_u32 {v(T+2)}, {v(T+3)}, 5, {v(T+2)}")
    e(f"v_and_b32 {v(T+3)}, 3, {v(L)}"); e(f"v_lshl_add_u32 {v(T+2)}, {v(T+3)}, 3, {v(T+2)}")
    e(f"v_add_u32 {v(T+2)}, {LW0}, {v(T+2)}")
    if not dft:
        e(f"v_xor_b32 {v(T)}, {s(S_WAVE)}, {v(T)}")
    for n in range(4):
        e(f"v_xor_b32 {v(T+3)}, {n}, {v(T)}")
        e(f"v_lshl_add_u32 {v(V_TR+n)}, {v(T+3)}, 6, {v(T+2)}")
    e(f"v_and_b32 {v(T)}, 31, {v(L)}")
    e(f"v_lshlrev_b32 {v(T+2)}, 7, {v(T)}"); e(f"s_lshl_b32 {s(S_T0)}, {s(S_WAVE)}, 12"); e(f"v_add_u32 {v(T+2)}, {s(S_T0)}, {v(T+2)}")
    e(f"v_bfe_u32 {v(T)}, {v(L)}, 1, 3")
    for k in range(4):
        if not dft:
            e(f"v_add_u32 {v(T+3)}, {2*k}, {v(T+1)}")
        else:
            e(f"v_lshlrev_b32 {v(T+3)}, 1, {v(T+1)}"); e(f"v_add_u32 {v(T+3)}, {4*(k//2) + k%2}, {v(T+3)}")
        e(f"v_xor_b32 {v(T+3)}, {v(T+3)}, {v(T)}")
        e(f"v_lshl_add_u32 {v(V_XR+k)}, {v(T+3)}, 4, {v(T+2)}")
    for r in (V_SUM, V_SUM+1, V_SQ, V_SQ+1, V_CS, V_CS+1):
        e(f"v_mov_b32 {v(r)}, 0")
    e(f"v_mov_b32 {v(V_ONE)}, 0x3f803f80")
    if dft:
        e(f"s_cmp_eq_u32 {s(S_CB)}, 15"); e(f"s_cselect_b32 {s(S_MASK)}, 1, 0"); e(f"s_mov_b32 {s(S_MASK+1)}, {s(S_MASK)}")
        e(f"v_mov_b32 {v(V_T+10)}, 0xbf803f80"); e(f"v_mov_b32 {v(V_T+11)}, 0x3f80bf80")
        e(f"v_mov_b32 {v(V_T+12)}, 0x05040100"); e(f"v_mov_b32 {v(V_T+13)}, 0x07060302")
    for r in range(128):
        e(f"v_mov_b32 {v(V_ACC+r)}, 0")
    if dft:
        for r in range(128):
            e(f"v_accvgpr_write_b32 {a_(r)}, 0")
    e(f"s_mov_b32 {s(S_RDW)}, 0"); e(f"s_mov_b32 {s(S_RDX)}, 0")
    if opt.get('pack', True):
        pack_job(e, opt)
    body(e, opt, dft, first=True, dma=True, vm=13)
    e(f"s_mov_b32 {s(S_CNT)}, 13")
    e(".p2align 3")
    e(f"{P}_loop:")
    body(e, opt, dft, first=False, dma=True)
    e(f"s_sub_u32 {s(S_CNT)}, {s(S_CNT)}, 1"); e(f"s_cmp_lg_u32 {s(S_CNT)}, 0"); e(f"s_cbranch_scc1 {P}_loop")
    body(e, opt, dft, first=False, dma=False, vm=12)
    body(e, opt, dft, first=False, dma=False, vm=0)
    tail(e, opt, dft)
    if dft: epilogue_dft(e, opt)
    else: epilogue_w1(e, opt)
    if opt.get('stamp'):
        e("s_waitcnt vmcnt(0)")
        e("s_memrealtime s[92:93]")
        e("s_load_dwordx2 s[96:97], s[0:1], 64")
        e("s_mov_b32 s98, 0x400000"); e("s_mov_b32 s99, 0x00020000")
        e("s_waitcnt lgkmcnt(0)")
        e("v_mov_b32 v2, s90"); e("v_mov_b32 v3, s92"); e("v_mov_b32 v4, s88"); e("v_mov_b32 v5, s86")
        e("s_lshl_b32 s3, s2, 4"); e("v_mov_b32 v6, s3"); e("s_sub_u32 s82, s82, s84"); e("v_mov_b32 v7, s82")
        e("v_cmp_eq_u32 vcc, 0, v0"); e("s_and_saveexec_b64 s[94:95], vcc"); e("s_cbranch_execz LA_end")
        e("buffer_store_dwordx4 v[2:5], v6, s[96:99], 0 offen")
        e("s_mov_b32 s3, 4096"); e("buffer_store_dword v7, v6, s[96:99], s3 offen")
    e("s_endpgm")

def rowmap(e, dft, vslot, vrow, vtmp):
    if not dft:
        e(f"s_lshr_b32 {s(S_T0)}, {s(S_RB)}, 1"); e(f"s_lshl_b32 {s(S_T0)}, {s(S_T0)}, 6")
        e(f"s_and_b32 {s(S_T1)}, {s(S_RB)}, 1"); e(f"s_add_u32 {s(S_T0)}, {s(S_T0)}, {s(S_T1)}")
        e(f"v_lshl_add_u32 {v(vtmp)}, {v(vslot)}, 1, {s(S_T0)}")
        e(f"s_add_u32 {s(S_T1)}, {s(S_WAVE)}, 1"); e(f"s_lshr_b32 {s(S_T1)}, {s(S_T1)}, 1"); e(f"s_lshl_b32 {s(S_T1)}, {s(S_T1)}, 10")
        e(f"s_and_b32 {s(S_T2)}, {s(S_WAVE)}, 1"); e(f"s_cmp_eq_u32 {s(S_T2)}, 1"); e(f"s_cselect_b32 {s(S_T2)}, -1, 1")
        e(f"v_mul_lo_u32 {v(vrow)}, {v(vtmp)}, {s(S_T2)}")
        e(f"v_add_u32 {v(vrow)}, {s(S_T1)}, {v(vrow)}")
        e(f"s_cmp_ge_u32 {s(S_WAVE)}, 2"); e(f"s_cselect_b32 {s(S_T2)}, 512, 0"); e(f"s_sub_u32 {s(S_T2)}, {s(S_T1)}, {s(S_T2)}")
        e(f"v_cmp_eq_u32 vcc, 0, {v(vtmp)}")
        e(f"v_mov_b32 {v(vtmp)}, {s(S_T2)}")
        e("s_nop 0")
        e(f"v_cndmask_b32 {v(vrow)}, {v(vrow)}, {v(vtmp)}, vcc")
    else:
        raise Exception("use rowmap_dft")

def rowmap_dft(e, img, vsig, vrow, vtmp):
    e(f"s_lshl_b32 {s(S_T0)}, {s(S_RB)}, 5"); e(f"s_add_u32 {s(S_T0)}, {s(S_T0)}, {s(S_WAVE)}")
    e(f"v_lshl_add_u32 {v(vrow)}, {v(vsig)}, 2, {s(S_T0)}")
    if img == 0: return
    if img == 2:
        e(f"v_sub_u32 {v(vrow)}, 1024, {v(vrow)}"); return
    e(f"v_cmp_eq_u32 vcc, 0, {v(vrow)}")
    if img == 1:
        e(f"v_sub_u32 {v(vrow)}, 2048, {v(vrow)}"); e(f"v_mov_b32 {v(vtmp)}, 512")
    else:
        e(f"v_add_u32 {v(vrow)}, 1024, {v(vrow)}"); e(f"v_mov_b32 {v(vtmp)}, 1536")
    e(f"v_cndmask_b32 {v(vrow)}, {v(vrow)}, {v(vtmp)}, vcc")

def dma_list(_):
    out = []
    for i in range(4):
        out.append(f"s_add_u32 m0, {s(S_DMX)}, {i*1024}\ns_nop 0\nbuffer_load_dwordx4 {v(V_XD+i)}, {s(S_X,4)}, {s(S_XOFF)} offen lds")
    for i in range(8):
        out.append(f"s_add_u32 m0, {s(S_DMW)}, {i*1024}\ns_nop 0\nbuffer_load_dwordx4 {v(V_WD+i%4)}, {s(S_W,4)}, {s(S_WC+i)} offen lds")
    return out

def dma_advance():
    out = []
    for i in range(4):
        out.append(f"v_add_u32 {v(V_WD+i)}, {s(S_WADV)}, {v(V_WD+i)}")
    out.append(f"s_add_u32 {s(S_XOFF)}, {s(S_XOFF)}, 128")
    out.append(f"s_add_u32 {s(S_DMW)}, {s(S_DMW)}, {WST}\ns_cmp_ge_u32 {s(S_DMW)}, {LW0+3*WST}\ns_cselect_b32 {s(S_T0)}, {3*WST}, 0\ns_sub_u32 {s(S_DMW)}, {s(S_DMW)}, {s(S_T0)}")
    out.append(f"s_add_u32 {s(S_DMX)}, {s(S_DMX)}, {XST}\ns_cmp_ge_u32 {s(S_DMX)}, {3*XST}\ns_cselect_b32 {s(S_T0)}, {3*XST}, 0\ns_sub_u32 {s(S_DMX)}, {s(S_DMX)}, {s(S_T0)}")
    return out

def tr_reads(dft, n, ks):
    if not dft:
        off = ks*8192 + (n//4)*256
        jo = 2048
    else:
        m, par = ks//2, ks%2
        off = (32*m + par)*512 + (n//4)*256
        jo = 8*512
    return [f"ds_read_b64_tr_b16 {v(V_FA+4*n,2)}, {v(V_TRC+n%4)} offset:{off}",
            f"ds_read_b64_tr_b16 {v(V_FA+4*n+2,2)}, {v(V_TRC+n%4)} offset:{off+jo}"]

def mfma(dft, n, ks):
    if not dft:
        fx = V_FX + 4*(ks%2)
        acc = v(V_ACC+16*n, 16)
        return f"v_mfma_f32_32x32x16_bf16 {acc}, {v(V_FA+4*n,4)}, {v(fx,4)}, {acc}"
    else:
        fx = 96 + 8*((ks//2)%2) + 4*(ks%2)
        acc = v(V_ACC+16*n, 16) if ks%2 == 0 else a_(16*n, 16)
        return f"v_mfma_f32_32x32x16_bf16 {acc}, {v(fx,4)}, {v(V_FA+4*n,4)}, {acc}"

def stats_ops(opt, reg):
    out = []
    if not opt.get('stats', True): return out
    for d in range(4):
        out.append(f"v_dot2c_f32_bf16 {v(V_SUM+d%2)}, {v(reg+d)}, {v(V_ONE)}")
        out.append(f"v_dot2c_f32_bf16 {v(V_SQ+d%2)}, {v(reg+d)}, {v(reg+d)}")
    return out

def kstep(e, opt, dft, ks_mfma, ks_read, extra, do_mfma=True):
    gaps = [[] for _ in range(8)]
    pre = []
    if ks_read is not None:
        if not dft:
            gaps[0].append(f"ds_read_b128 {v(V_FX+4*(ks_read%2),4)}, {v(V_XRC+ks_read)}")
        else:
            if ks_read % 2 == 1:
                pass
        for n in range(8):
            gaps[n] += tr_reads(dft, n, ks_read)
    for g, ins in extra:
        gaps[g].append(ins)
    for n in range(8):
        if do_mfma:
            if n % 2 == 0:
                e(f"s_waitcnt lgkmcnt({opt['_lg'](n)})")
            for ins in opt['_premfma'](n): e(ins)
            if not opt.get('nomfma'): e(mfma(dft, n, ks_mfma))
        for ins in gaps[n]:
            if opt.get('nodma') and 'lds' in ins: continue
            if opt.get('nords') and ins.startswith('ds_read'): continue
            if opt.get('halfrds') and ins.startswith('ds_read') and n % 2: continue
            e(ins)

def body(e, opt, dft, first, dma, vm=12):
    e(f"s_waitcnt vmcnt({vm})")
    if not opt.get('nobar'): e("s_barrier")
    if first and opt.get('stamp'):
        e("s_memrealtime s[88:89]"); e("s_memtime s[84:85]")
    for n in range(4):
        e(f"v_add_u32 {v(V_TRC+n)}, {s(S_RDW)}, {v(V_TR+n)}")
    for n in range(4):
        e(f"v_add_u32 {v(V_XRC+n)}, {s(S_RDX)}, {v(V_XR+n)}")
    dl = dma_list(None) if dma else []
    adv = dma_advance() if dma else []
    rdadv = [f"s_add_u32 {s(S_RDW)}, {s(S_RDW)}, {WST}\ns_cmp_ge_u32 {s(S_RDW)}, {3*WST}\ns_cselect_b32 {s(S_RDW)}, 0, {s(S_RDW)}",
             f"s_add_u32 {s(S_RDX)}, {s(S_RDX)}, {XST}\ns_cmp_ge_u32 {s(S_RDX)}, {3*XST}\ns_cselect_b32 {s(S_RDX)}, 0, {s(S_RDX)}"]
    if not dft:
        for step in range(4):
            ks_m = (step + 3) % 4
            ks_r = step
            extra = []
            for q, g in enumerate(opt.get('dmagaps', (1, 4, 6))):
                idx = step*3 + q
                if idx < len(dl): extra.append((g, dl[idx]))
            if step == 3:
                for q, ins in enumerate(adv): extra.append((7, ins))
                for ins in rdadv: extra.append((7, ins))
            do = not (first and step == 0)
            if do:
                st = stats_ops(opt, V_FX + 4*(ks_m%2))
                for q, ins in enumerate(st): extra.append(((2,3,5,7)[q//2], ins))
            def premfma(n, do=do):
                if opt.get('colsum', True) and n in (0, 4):
                    return [f"v_dot2c_f32_bf16 {v(V_CS+n//4)}, {v(V_FA+4*n+d)}, {v(V_ONE)}" for d in range(4)]
                return []
            opt['_premfma'] = premfma
            opt['_lg'] = lambda n: 12 + (1 if n > 0 else 0)
            kstep(e, opt, dft, ks_m, ks_r, extra, do_mfma=do)
    else:
        for step in range(4):
            ks_m = (step + 3) % 4
            ks_r = step
            extra = []
            nx = 0
            if step == 0:
                pass
            for q, g in enumerate(opt.get('dmagaps', (1, 4, 6))):
                idx = step*3 + q
                if idx < len(dl): extra.append((g, dl[idx]))
            if step == 3:
                for q, ins in enumerate(adv): extra.append((7, ins))
                for ins in rdadv: extra.append((7, ins))
            do = not (first and step == 0)
            if step == 0:
                for k in range(4):
                    e(f"ds_read_b128 {v(80+4*k,4)}, {v(V_XRC+k)}")
                extra.append((4, "s_waitcnt lgkmcnt(10)"))
                pm = perms(0)
                for q, ins in enumerate(pm): extra.append((4 + q//3, ins))
            if step == 1:
                pm = perms(1)
                for q, ins in enumerate(pm): extra.append((q//2, ins))
                st = stats_ops(opt, 80)
                for q, ins in enumerate(st): extra.append((4 + q//2, ins))
            if step == 2:
                st = stats_ops(opt, 84) + stats_ops(opt, 88)
                for q, ins in enumerate(st): extra.append((q//2, ins))
            if step == 3:
                st = stats_ops(opt, 92)
                for q, ins in enumerate(st): extra.append((q//2, ins))
            def premfma(n, ks_m=ks_m):
                if n == 0:
                    cst = V_T+10 if ks_m%2 == 0 else V_T+11
                    return [f"v_cndmask_b32 {v(V_FA+d)}, {v(V_FA+d)}, {v(cst)}, {s(S_MASK,2)}" for d in range(4)] + ["s_nop 1"]
                return []
            opt['_premfma'] = premfma
            if step == 0:
                opt['_lg'] = lambda n: min(15, 12 + 4)
            else:
                opt['_lg'] = lambda n: 12
            kstep(e, opt, dft, ks_m, ks_r, extra, do_mfma=do)

def perms(m):
    raw = 80 + 8*m; fe = 96 + 8*m; fo = fe + 4
    out = []
    for d in range(4):
        out.append(f"v_perm_b32 {v(fe+d)}, {v(raw+2*d+1)}, {v(raw+2*d)}, {v(V_T+12)}")
    for d in range(4):
        out.append(f"v_perm_b32 {v(fo+d)}, {v(raw+2*d+1)}, {v(raw+2*d)}, {v(V_T+13)}")
    return out

def tail(e, opt, dft):
    extra = []
    if not dft:
        st = stats_ops(opt, V_FX + 4)
        for q, ins in enumerate(st): extra.append(((2,3,5,7)[q//2], ins))
        def premfma(n):
            if opt.get('colsum', True) and n in (0, 4):
                return [f"v_dot2c_f32_bf16 {v(V_CS+n//4)}, {v(V_FA+4*n+d)}, {v(V_ONE)}" for d in range(4)]
            return []
    else:
        def premfma(n):
            if n == 0:
                return [f"v_cndmask_b32 {v(V_FA+d)}, {v(V_FA+d)}, {v(V_T+11)}, {s(S_MASK,2)}" for d in range(4)] + ["s_nop 1"]
            return []
    opt['_premfma'] = premfma
    opt['_lg'] = lambda n: max(0, 12 - 2*n)
    kstep(e, opt, dft, 3, None, extra)
    if opt.get('stamp'):
        e("s_memrealtime s[86:87]"); e("s_memtime s[82:83]")

def row_stats(e, T):
    e("s_nop 2")
    e(f"v_add_f32 {v(V_SUM)}, {v(V_SUM)}, {v(V_SUM+1)}")
    e(f"v_add_f32 {v(V_SQ)}, {v(V_SQ)}, {v(V_SQ+1)}")
    e(f"v_mov_b32 {v(V_SUM+1)}, {v(V_SUM)}"); e(f"v_mov_b32 {v(V_SQ+1)}, {v(V_SQ)}")
    e("s_nop 1")
    e(f"v_permlane32_swap_b32 {v(V_SUM)}, {v(V_SUM+1)}")
    e(f"v_permlane32_swap_b32 {v(V_SQ)}, {v(V_SQ+1)}")
    e("s_nop 1")
    e(f"v_add_f32 {v(V_SUM)}, {v(V_SUM)}, {v(V_SUM+1)}")
    e(f"v_add_f32 {v(V_SQ)}, {v(V_SQ)}, {v(V_SQ+1)}")
    e(f"v_mul_f32 {v(V_SUM)}, 0x3a800000, {v(V_SUM)}")
    e(f"v_mul_f32 {v(V_SQ)}, 0x3a800000, {v(V_SQ)}")
    e(f"v_fma_f32 {v(V_SQ)}, -{v(V_SUM)}, {v(V_SUM)}, {v(V_SQ)}")
    bf16_round(e, V_SUM, V_SUM)
    bf16_round(e, V_SQ, V_SQ)
    e(f"v_add_f32 {v(V_SQ)}, 0x3727c5ac, {v(V_SQ)}")
    bf16_round(e, V_SQ, V_SQ)
    e(f"v_sqrt_f32 {v(V_SQ)}, {v(V_SQ)}")
    e("s_nop 0")
    bf16_round(e, V_SQ, V_SQ)
    e(f"v_rcp_f32 {v(T)}, {v(V_SQ)}")
    e("s_nop 0")
    e(f"v_mul_f32 {v(T+1)}, {v(V_SUM)}, {v(T)}")

def epilogue_w1(e, opt):
    T = V_T; L = V_LANE
    row_stats(e, T)
    e(f"v_mov_b32 {v(T+2)}, {v(V_CS)}"); e(f"v_mov_b32 {v(T+3)}, {v(V_CS+1)}")
    e("s_nop 1")
    e(f"v_permlane32_swap_b32 {v(V_CS)}, {v(T+2)}")
    e(f"v_permlane32_swap_b32 {v(V_CS+1)}, {v(T+3)}")
    e("s_nop 1")
    e(f"v_add_f32 {v(V_CS)}, {v(V_CS)}, {v(T+2)}")
    e(f"v_add_f32 {v(V_CS+1)}, {v(V_CS+1)}, {v(T+3)}")
    e(f"v_and_b32 {v(T+2)}, 31, {v(L)}"); e(f"v_lshlrev_b32 {v(T+2)}, 2, {v(T+2)}")
    e(f"s_lshl_b32 {s(S_T0)}, {s(S_WAVE)}, 7"); e(f"s_add_u32 {s(S_T0)}, {s(S_T0)}, {LSP}")
    e(f"v_add_u32 {v(T+2)}, {s(S_T0)}, {v(T+2)}")
    e(f"ds_write_b32 {v(T+2)}, {v(V_CS)}")
    e(f"ds_write_b32 {v(T+2)}, {v(V_CS+1)} offset:512")
    e(f"v_lshrrev_b32 {v(T+2)}, 5, {v(L)}"); e(f"v_lshlrev_b32 {v(T+2)}, 4, {v(T+2)}")
    for n in range(4):
        e(f"s_xor_b32 {s(S_T0)}, {s(S_WAVE)}, {n}"); e(f"s_lshl_b32 {s(S_T0)}, {s(S_T0)}, 7"); e(f"s_add_u32 {s(S_T0)}, {s(S_T0)}, {LSP}")
        e(f"v_add_u32 {v(V_TRC+n)}, {s(S_T0)}, {v(T+2)}")
    e(f"s_lshl_b32 {s(S_T0)}, {s(S_RB)}, 2"); e(f"s_add_u32 {s(S_T0)}, {s(S_T0)}, {s(S_WAVE)}"); e(f"s_mul_i32 {s(S_T0)}, {s(S_T0)}, 224")
    e(f"s_lshl_b32 {s(S_T1)}, {s(S_CB)}, 4"); e(f"s_add_u32 {s(S_T0)}, {s(S_T0)}, {s(S_T1)}"); e(f"s_lshl_b32 {s(S_T0)}, {s(S_T0)}, 10")
    e(f"v_lshlrev_b32 {v(T+4)}, 4, {v(L)}"); e(f"v_add_u32 {v(T+4)}, {s(S_T0)}, {v(T+4)}")
    for n in range(4):
        e(f"s_xor_b32 {s(S_WC+n)}, {s(S_WAVE)}, {n}"); e(f"s_lshl_b32 {s(S_WC+n)}, {s(S_WC+n)}, 11")
        e(f"s_add_u32 {s(S_WC+4+n)}, {s(S_WC+n)}, 8192")
    e(f"v_sub_f32 {v(T+1)}, 0, {v(T+1)}")
    e("s_waitcnt lgkmcnt(0)")
    e("s_barrier")
    CS = 48
    RS2 = 112; MR2 = 114
    e(f"v_mov_b32 {v(RS2)}, {v(T)}"); e(f"v_mov_b32 {v(RS2+1)}, {v(T)}")
    e(f"v_mov_b32 {v(MR2)}, {v(T+1)}"); e(f"v_mov_b32 {v(MR2+1)}, {v(T+1)}")
    for half in range(2):
        for n4 in range(4):
            for q in range(4):
                e(f"ds_read_b128 {v(CS+16*n4+4*q,4)}, {v(V_TRC+n4)} offset:{half*512 + q*32}")
        for n4 in range(4):
            n = half*4 + n4
            e(f"s_waitcnt lgkmcnt({12-4*n4})")
            acc = V_ACC + 16*n
            c = CS + 16*n4
            for r in range(0, 16, 2):
                e(f"v_pk_mul_f32 {v(acc+r,2)}, {v(acc+r,2)}, {v(RS2,2)}")
                e(f"v_pk_fma_f32 {v(acc+r,2)}, {v(c+r,2)}, {v(MR2,2)}, {v(acc+r,2)}")
            for r in range(0, 16, 2):
                e(f"v_cvt_pk_bf16_f32 {v(acc+r//2)}, {v(acc+r)}, {v(acc+r+1)}")
            for r in range(8):
                e(f"v_pk_max_i16 {v(acc+r)}, {v(acc+r)}, 0")
            e(f"buffer_store_dwordx4 {v(acc,4)}, {v(T+4)}, {s(S_WS,4)}, {s(S_WC+n)} offen")
            e(f"buffer_store_dwordx4 {v(acc+4,4)}, {v(T+4)}, {s(S_WS,4)}, {s(S_WC+n)} offen offset:1024")

def epilogue_dft(e, opt):
    T = V_T; L = V_LANE
    row_stats(e, T)
    e(f"s_lshl_b32 {s(S_T0)}, {s(S_RB)}, 2"); e(f"s_add_u32 {s(S_T3)}, {s(S_T0)}, {s(S_WAVE)}")
    e(f"s_cmp_eq_u32 {s(S_T3)}, 0")
    e(f"s_cselect_b32 s46, 0x01000100, 0"); e("s_mov_b32 s47, s46")
    e(f"s_cselect_b32 s48, 0x00010001, 0"); e("s_mov_b32 s49, s48")
    e("s_mov_b32 s50, 0x00ffff00"); e("s_mov_b32 s51, s50")
    e(f"v_mov_b32 {v(T+2)}, 0"); e(f"v_sub_f32 {v(T+3)}, 0, {v(T)}")
    e(f"v_cndmask_b32 {v(T+4)}, {v(T)}, {v(T+2)}, s[46:47]")
    e(f"v_cndmask_b32 {v(T+5)}, {v(T)}, {v(T+3)}, s[50:51]")
    e(f"v_cndmask_b32 {v(T+5)}, {v(T+5)}, {v(T)}, s[46:47]")
    e(f"v_cndmask_b32 {v(T+5)}, {v(T+5)}, {v(T+2)}, s[48:49]")
    e(f"s_cmp_eq_u32 {s(S_CB)}, 15"); e("s_cselect_b64 s[50:51], -1, 0")
    e(f"v_cndmask_b32 {v(T+5)}, {v(T+4)}, {v(T+5)}, s[50:51]")
    e(f"v_and_b32 {v(T+2)}, 31, {v(L)}"); e(f"v_lshlrev_b32 {v(T+2)}, 2, {v(T+2)}")
    e(f"s_lshl_b32 {s(S_T0)}, {s(S_WAVE)}, 9"); e(f"s_add_u32 {s(S_T0)}, {s(S_T0)}, {LSP}")
    e(f"v_add_u32 {v(T+2)}, {s(S_T0)}, {v(T+2)}")
    e(f"ds_write_b32 {v(T+2)}, {v(T+5)}")
    e(f"ds_write_b32 {v(T+2)}, {v(T+4)} offset:128")
    e(f"ds_write_b32 {v(T+2)}, {v(V_SUM)} offset:256")
    e(f"ds_write_b32 {v(T+2)}, {v(T)} offset:384")
    e(f"v_lshrrev_b32 {v(T+2)}, 5, {v(L)}"); e(f"v_lshlrev_b32 {v(T+2)}, 4, {v(T+2)}"); e(f"v_add_u32 {v(T+2)}, {s(S_T0)}, {v(T+2)}")
    RHO = 48; RHOE = 64; M = 112
    e("s_waitcnt lgkmcnt(0)")
    for q in range(4):
        e(f"ds_read_b128 {v(RHO+4*q,4)}, {v(T+2)} offset:{q*32}")
    for q in range(4):
        e(f"ds_read_b128 {v(RHOE+4*q,4)}, {v(T+2)} offset:{128+q*32}")
    for q in range(4):
        e(f"ds_read_b128 {v(M+4*q,4)}, {v(T+2)} offset:{256+q*32}")
    e(f"ds_read_b32 {v(T+6)}, {v(T+2)} offset:{384+32}")
    e(f"ds_read_b32 {v(T+7)}, {v(T+2)} offset:{384+96}")
    e(f"s_sub_u32 {s(S_T0)}, {s(S_CB)}, 14"); e(f"s_mul_i32 {s(S_T0)}, {s(S_T0)}, {AE_MAT}")
    e(f"s_mul_i32 {s(S_T1)}, {s(S_WAVE)}, {AE_C}"); e(f"s_add_u32 {s(S_T0)}, {s(S_T0)}, {s(S_T1)}")
    e(f"s_lshl_b32 {s(S_T1)}, {s(S_RB)}, 9"); e(f"s_add_u32 {s(S_T0)}, {s(S_T0)}, {s(S_T1)}"); e(f"s_add_u32 {s(S_T0)}, {s(S_T0)}, {WS_AE}")
    A1 = 80; A2 = 81; A1s = 82; A2s = 83; C1 = 84; KM = 86; DG = 87
    e(f"v_lshrrev_b32 {v(T+4)}, 5, {v(L)}")
    e(f"v_mul_u32_u24 {v(T+5)}, {AE_PAR}, {v(T+4)}"); e(f"v_add_u32 {v(T+5)}, {s(S_T0)}, {v(T+5)}")
    e(f"v_mul_i32_i24 {v(DG)}, {512-AE_PAR}, {v(T+4)}"); e(f"v_add_u32 {v(DG)}, 8192, {v(DG)}")
    e(f"v_and_b32 {v(T+3)}, 31, {v(L)}")
    e(f"v_lshl_add_u32 {v(A1)}, {v(T+3)}, 4, {v(T+5)}")
    e(f"v_lshlrev_b32 {v(T+4)}, 4, {v(T+3)}"); e(f"v_sub_u32 {v(T+4)}, {v(T+5)}, {v(T+4)}")
    e(f"v_add_u32 {v(A2)}, {8*AE_ET + 512}, {v(T+4)}")
    e(f"v_add_u32 {v(T+4)}, {9*AE_ET}, {v(T+4)}")
    e(f"v_cmp_eq_u32 vcc, 0, {v(T+3)}"); e("s_nop 1")
    e(f"v_cndmask_b32 {v(A2)}, {v(A2)}, {v(T+4)}, vcc")
    for u in range(8):
        e(f"s_mov_b32 {s(S_WC+u)}, {u*AE_ET}")
    e(f"v_add_u32 {v(T+5)}, {(8*AE_ET - AE_MAT) & 0xffffffff}, {v(A1)}")
    e(f"v_cndmask_b32 {v(A1s)}, {v(A1)}, {v(T+5)}, {s(S_MASK,2)}")
    e(f"v_add_u32 {v(T+5)}, {8*AE_ET}, {v(A1)}")
    e(f"v_add_u32 {v(A2s)}, {7*AE_ET}, {v(A2)}")
    e(f"v_cndmask_b32 {v(A2s)}, {v(A2s)}, {v(T+5)}, {s(S_MASK,2)}")
    e(f"v_mov_b32 {v(T+5)}, 0"); e(f"v_mov_b32 {v(C1)}, 1.0")
    e(f"v_cndmask_b32 {v(C1)}, {v(C1)}, {v(T+5)}, {s(S_MASK,2)}")
    e(f"v_mov_b32 {v(C1+1)}, {v(C1)}")
    e(f"s_cmp_eq_u32 {s(S_CB)}, 14"); e(f"s_cselect_b32 {s(S_T1)}, 0xc4000000, 0")
    e(f"v_mov_b32 {v(T+8)}, {s(S_T1)}")
    e(f"v_cndmask_b32 {v(KM)}, {v(T+5)}, {v(T+8)}, vcc")
    e(f"s_cmp_eq_u32 {s(S_CB)}, 15"); e(f"s_cselect_b32 {s(S_T2)}, 0x80008000, 0")
    e("s_waitcnt lgkmcnt(0)")
    for r in range(16):
        e(f"v_cndmask_b32 {v(RHOE+r)}, {v(RHO+r)}, {v(RHOE+r)}, {s(S_MASK,2)}")
    O = 96
    for u in range(8):
        E = V_ACC + 16*u
        RE = RHOE if u == 0 else RHO
        for r in range(16):
            e(f"v_accvgpr_read_b32 {v(O+r)}, {a_(16*u+r)}")
        if u == 0:
            for r in range(16):
                e(f"v_fmac_f32 {v(E+r)}, {v(M+r)}, {v(KM)}")
                e(f"v_fmac_f32 {v(O+r)}, {v(M+r)}, {v(KM)}")
        e(f"s_cmp_lg_u32 {s(S_T3)}, 0"); e(f"s_cbranch_scc1 LAd_nsp{u}")
        specialG(e, u, E, O, T, A1s if u == 0 else A1, A2s if u == 0 else A2, C1, DG)
        e(f"LAd_nsp{u}:")
        for X, R in ((E, RE), (O, RHO)):
            for h in (0, 8):
                for r in (0, 2):
                    e(f"v_pk_mul_f32 {v(X+h+r,2)}, {v(X+h+r,2)}, {v(R+h+r,2)}")
                for r in (0, 2):
                    e(f"v_pk_fma_f32 {v(X+h+r,2)}, {v(X+h+4+r,2)}, {v(R+h+4+r,2)}, {v(X+h+r,2)}")
        for h in (0, 8):
            for r in (0, 2):
                if u == 0:
                    e(f"v_pk_fma_f32 {v(E+h+4+r,2)}, {v(O+h+r,2)}, {v(C1,2)}, {v(E+h+r,2)}")
                    e(f"v_pk_fma_f32 {v(O+h+4+r,2)}, {v(E+h+r,2)}, {v(C1,2)}, {v(O+h+r,2)} neg_lo:[0,0,1] neg_hi:[0,0,1]")
                else:
                    e(f"v_pk_add_f32 {v(E+h+4+r,2)}, {v(E+h+r,2)}, {v(O+h+r,2)}")
                    e(f"v_pk_add_f32 {v(O+h+4+r,2)}, {v(E+h+r,2)}, {v(O+h+r,2)} neg_lo:[0,1] neg_hi:[0,1]")
        for X in (E, O):
            for r in (0, 2):
                e(f"v_pk_add_f32 {v(X+r,2)}, {v(X+4+r,2)}, {v(X+12+r,2)}")
                e(f"v_pk_add_f32 {v(X+8+r,2)}, {v(X+4+r,2)}, {v(X+12+r,2)} neg_lo:[0,1] neg_hi:[0,1]")
        for X, D in ((E, E+4), (O, E+12)):
            e(f"v_cvt_pk_bf16_f32 {v(D)}, {v(X)}, {v(X+1)}")
            e(f"v_cvt_pk_bf16_f32 {v(D+1)}, {v(X+2)}, {v(X+3)}")
            e(f"v_cvt_pk_bf16_f32 {v(D+2)}, {v(X+8)}, {v(X+9)}")
            e(f"v_cvt_pk_bf16_f32 {v(D+3)}, {v(X+10)}, {v(X+11)}")
        for r in range(4):
            e(f"v_xor_b32 {v(E+12+r)}, {s(S_T2)}, {v(E+12+r)}")
        e(f"v_permlane32_swap_b32 {v(E+4)}, {v(E+6)}")
        e(f"v_permlane32_swap_b32 {v(E+5)}, {v(E+7)}")
        e(f"v_permlane32_swap_b32 {v(E+12)}, {v(E+14)}")
        e(f"v_permlane32_swap_b32 {v(E+13)}, {v(E+15)}")
        e("s_nop 1")
        if u == 0:
            e(f"buffer_store_dwordx4 {v(E+4,4)}, {v(A1s)}, {s(S_WS,4)}, 0 offen")
            e(f"buffer_store_dwordx4 {v(E+12,4)}, {v(A2s)}, {s(S_WS,4)}, 0 offen")
            e(f"s_cmp_eq_u32 {s(S_CB)}, 14"); e("s_cbranch_scc1 LAd_nz")
            e(f"s_mov_b64 exec, {s(S_MASK,2)}")
            for r in range(4): e(f"v_mov_b32 {v(T+8+r)}, 0")
            e(f"buffer_store_dwordx4 {v(T+8,4)}, {v(A1)}, {s(S_WS,4)}, 0 offen")
            e(f"buffer_store_dwordx4 {v(T+8,4)}, {v(A2)}, {s(S_WS,4)}, {s(S_WC+7)} offen")
            e("s_mov_b64 exec, -1")
            e("s_nop 1")
            e("LAd_nz:")
        else:
            e(f"buffer_store_dwordx4 {v(E+4,4)}, {v(A1)}, {s(S_WS,4)}, {s(S_WC+u)} offen")
            e(f"buffer_store_dwordx4 {v(E+12,4)}, {v(A2)}, {s(S_WS,4)}, {s(S_WC+7-u)} offen")

def specialG(e, u, E, O, T, A1, A2, C1, DG):
    X = 116 if u else 88
    X = 88
    if u == 0:
        e(f"v_fma_f32 {v(X)}, {v(O+4)}, {v(C1)}, {v(E+4)}"); e(f"v_fma_f32 {v(X+1)}, {v(O+12)}, {v(C1)}, {v(E+12)}")
    else:
        e(f"v_add_f32 {v(X)}, {v(O+4)}, {v(E+4)}"); e(f"v_add_f32 {v(X+1)}, {v(O+12)}, {v(E+12)}")
    e(f"v_sub_f32 {v(X+4)}, {v(E+4)}, {v(O+4)}"); e(f"v_sub_f32 {v(X+5)}, {v(E+12)}, {v(O+12)}")
    e(f"v_mul_f32 {v(X)}, {v(X)}, {v(T+6)}"); e(f"v_fmac_f32 {v(X)}, {v(X+1)}, {v(T+7)}")
    e(f"v_mul_f32 {v(X+4)}, {v(X+4)}, {v(T+6)}"); e(f"v_fmac_f32 {v(X+4)}, {v(X+5)}, {v(T+7)}")
    e(f"v_mov_b32 {v(X+1)}, 0")
    e(f"v_cvt_pk_bf16_f32 {v(X)}, {v(X)}, {v(X+1)}")
    e(f"v_cvt_pk_bf16_f32 {v(X+4)}, {v(X+4)}, {v(X+1)}")
    e(f"v_cmp_gt_u32 vcc, 32, {v(V_LANE)}")
    for r in (2, 3, 5, 6, 7): e(f"v_mov_b32 {v(X+r)}, 0")
    e(f"v_cndmask_b32 {v(X)}, {v(X+1)}, {v(X)}, vcc")
    e(f"v_cndmask_b32 {v(X+4)}, {v(X+1)}, {v(X+4)}, vcc")
    e(f"v_add_u32 {v(T+8)}, {v(A1)}, {v(DG)}"); e(f"v_add_u32 {v(T+9)}, {v(A2)}, {v(DG)}")
    if u == 0:
        e(f"buffer_store_dwordx4 {v(X,4)}, {v(T+8)}, {s(S_WS,4)}, 0 offen")
        e(f"buffer_store_dwordx4 {v(X+4,4)}, {v(T+9)}, {s(S_WS,4)}, 0 offen")
    else:
        e(f"buffer_store_dwordx4 {v(X,4)}, {v(T+8)}, {s(S_WS,4)}, {s(S_WC+u)} offen")
        e(f"buffer_store_dwordx4 {v(X+4,4)}, {v(T+9)}, {s(S_WS,4)}, {s(S_WC+7-u)} offen")
    e("s_nop 1")

def pack_job(e, opt):
    e(f"s_lshl_b32 {s(S_T0)}, s2, 2"); e(f"s_add_u32 {s(S_T0)}, {s(S_T0)}, {s(S_WAVE)}"); e(f"s_lshl_b32 {s(S_T0)}, {s(S_T0)}, 6")
    e(f"s_add_u32 {s(S_T0)}, {s(S_T0)}, {WS_FL}")
    e("s_mov_b64 exec, 1")
    e(f"buffer_store_dword {v(V_SUM)}, {v(V_SUM)}, {s(S_WS,4)}, {s(S_T0)} offen")
    e("s_mov_b64 exec, -1")

HEADER = """; Kernarg: 0 A_x, 8 seq_re, 16 seq_im, 24 hid_re, 32 hid_im, 40 B_x, 48 w1, 56 w2, 64 out, 72 debug, 80 ws
"""
def gen(opt):
    e = Asm()
    e(HEADER.rstrip())
    e("; @launch kernel=ka_kernel grid=(256,1,1) block=(256,1,1) lds=163840")
    if opt.get('two', False):
        e("; @launch kernel=kb_kernel grid=(256,1,1) block=(256,1,1) lds=163840")
    e('.amdgcn_target "amdgcn-amd-amdhsa--gfx950"')
    e(".text")
    genA(e, opt)
    if opt.get('two', False):
        import genb
        genb.genB(e, opt)
    e('.section .rodata,"a"')
    kernel_desc(e, "ka_kernel")
    if opt.get('two', False):
        kernel_desc(e, "kb_kernel", vgprs=336, accum=256)
    return e.text()

if __name__ == "__main__":
    opt = {}
    for a in sys.argv[2:]:
        k, val = a.split('='); opt[k] = eval(val)
    open(sys.argv[1], 'w').write(gen(opt))
```

```python
import sys, re

WS_H   = 0x0000000
WS_AE  = 0x1000000
WS_EX  = 0x1800000
WS_FL  = 0x2000000
AE_C = 9*1024
AE_ET = 4*AE_C
AE_PAR = 17*AE_ET
AE_MAT = 2*AE_PAR

class Asm:
    def __init__(self):
        self.lines = []
    def __call__(self, s):
        for l in s.split('\n'):
            m = re.search(r'offset:(\d+)', l)
            if m:
                lim = 65536 if l.startswith('ds_') else 4096
                assert int(m.group(1)) < lim, l
            self.lines.append(l)
    def text(self):
        return "\n".join(self.lines) + "\n"

def v(a, n=1):
    return f"v{a}" if n == 1 else f"v[{a}:{a+n-1}]"
def a_(a, n=1):
    return f"a{a}" if n == 1 else f"a[{a}:{a+n-1}]"
def s(a, n=1):
    return f"s{a}" if n == 1 else f"s[{a}:{a+n-1}]"

def kernel_desc(e, name, vgprs=512, accum=256):
    e(".p2align 6")
    e(f".amdhsa_kernel {name}")
    e(f"  .amdhsa_next_free_vgpr {vgprs}")
    e("  .amdhsa_next_free_sgpr 102")
    e(f"  .amdhsa_accum_offset {accum}")
    e("  .amdhsa_group_segment_fixed_size 0")
    e("  .amdhsa_kernarg_size 88")
    e("  .amdhsa_user_sgpr_count 2")
    e("  .amdhsa_user_sgpr_kernarg_segment_ptr 1")
    e("  .amdhsa_system_sgpr_workgroup_id_x 1")
    e(".end_amdhsa_kernel")

def bf16_round(e, dst, src):
    e(f"v_cvt_pk_bf16_f32 {v(dst)}, {v(src)}, {v(src)}")
    e(f"v_lshlrev_b32 {v(dst)}, 16, {v(dst)}")

XST = 16384
WST = 32768
LX0 = 0
LW0 = 49152
LSP = 147456

S_X, S_W, S_WS, S_T = 4, 8, 12, 16
S_WAVE, S_RB, S_CB = 20, 21, 22
S_STRIDE = 23
S_WC = 24
S_XOFF = 32
S_RDW, S_RDX = 33, 34
S_DMW, S_DMX = 35, 36
S_CNT = 37
S_WADV = 38
S_T0, S_T1, S_T2, S_T3 = 40, 41, 42, 43
S_MASK = 44
V_LANE = 1
V_WD = 2
V_XD = 6
V_TR = 10
V_XR = 14
V_TRC = 18
V_XRC = 22
V_SUM = 26
V_SQ = 28
V_CS = 30
V_ONE = 32
V_T = 34
V_FA = 48
V_FX = 80
V_ACC = 128

def genA(e, opt):
    e(".globl ka_kernel"); e(".p2align 8"); e(".type ka_kernel,@function"); e("ka_kernel:")
    e("s_cmp_ge_u32 s2, 256"); e("s_cbranch_scc1 LA_end")
    e(f"s_load_dwordx2 {s(S_X,2)}, s[0:1], 0")
    e(f"s_load_dwordx2 {s(S_WS,2)}, s[0:1], 80")
    if opt.get('stamp'):
        e("s_memrealtime s[90:91]")
    e(f"v_lshrrev_b32 {v(V_T)}, 6, v0")
    e(f"v_and_b32 {v(V_LANE)}, 63, v0")
    e(f"v_readfirstlane_b32 {s(S_WAVE)}, {v(V_T)}")
    e(f"s_and_b32 {s(S_T0)}, s2, 7"); e(f"s_lshr_b32 {s(S_T1)}, s2, 3")
    e(f"s_and_b32 {s(S_RB)}, {s(S_T0)}, 1"); e(f"s_lshl_b32 {s(S_RB)}, {s(S_RB)}, 3")
    e(f"s_and_b32 {s(S_T2)}, {s(S_T1)}, 7"); e(f"s_add_u32 {s(S_RB)}, {s(S_RB)}, {s(S_T2)}")
    e(f"s_lshr_b32 {s(S_CB)}, {s(S_T0)}, 1"); e(f"s_lshl_b32 {s(S_CB)}, {s(S_CB)}, 2")
    e(f"s_lshr_b32 {s(S_T2)}, {s(S_T1)}, 3"); e(f"s_add_u32 {s(S_CB)}, {s(S_CB)}, {s(S_T2)}")
    e(f"s_mov_b32 {s(S_X+2)}, 0x400000"); e(f"s_mov_b32 {s(S_X+3)}, 0x00020000")
    e(f"s_mov_b32 {s(S_WS+2)}, 0x10000000"); e(f"s_mov_b32 {s(S_WS+3)}, 0x00020000")
    e(f"s_mov_b32 {s(S_W+3)}, 0x00020000")
    e(f"s_cmp_ge_u32 {s(S_CB)}, 14"); e("s_cbranch_scc1 LA_dft")
    genA_path(e, opt, dft=False)
    e("LA_dft:")
    genA_path(e, opt, dft=True)
    e("LA_end:"); e("s_endpgm")

def genA_path(e, opt, dft):
    P = "LAd" if dft else "LAw"
    L = V_LANE; T = V_T
    if not dft:
        e(f"s_load_dwordx2 {s(S_W,2)}, s[0:1], 48")
        e(f"s_mov_b32 {s(S_W+2)}, {1024*3584*2}")
        stride = 7168
    else:
        e(f"s_lshl_b32 {s(S_T0)}, {s(S_CB)}, 3"); e(f"s_sub_u32 {s(S_T0)}, {s(S_T0)}, {14*8-24}")
        e(f"s_load_dwordx2 {s(S_W,2)}, s[0:1], {s(S_T0)}")
        e(f"s_mov_b32 {s(S_W+2)}, {1024*1024*2}")
        stride = 2048
    for i in range(8):
        e(f"s_mov_b32 {s(S_WC+i)}, {i*2*stride}")
    e(f"v_lshrrev_b32 {v(T)}, 5, {v(L)}")
    e(f"s_lshl_b32 {s(S_T0)}, {s(S_WAVE)}, 4")
    e(f"v_add_u32 {v(T+1)}, {s(S_T0)}, {v(T)}")
    e(f"v_mul_u32_u24 {v(T+1)}, {stride}, {v(T+1)}")
    if not dft:
        e(f"s_lshl_b32 {s(S_T0)}, {s(S_CB)}, 9")
        e(f"v_add_u32 {v(T+1)}, {s(S_T0)}, {v(T+1)}")
    e(f"v_and_b32 {v(T+2)}, 3, {v(L)}"); e(f"v_lshl_add_u32 {v(T+1)}, {v(T+2)}, 4, {v(T+1)}")
    e(f"v_bfe_u32 {v(T+2)}, {v(L)}, 2, 3")
    for i in range(4):
        if not dft:
            e(f"v_add_u32 {v(T+3)}, {(2*i)%4}, {v(T)}")
            e(f"v_xor_b32 {v(T+3)}, {v(T+3)}, {v(T+2)}")
        else:
            e(f"v_xor_b32 {v(T+3)}, {i}, {v(T+2)}")
        e(f"v_lshl_add_u32 {v(V_WD+i)}, {v(T+3)}, 6, {v(T+1)}")
    for i in range(4):
        e(f"v_lshrrev_b32 {v(T)}, 3, {v(L)}")
        if dft: rowmap_dft(e, i, T, T+1, T+2)
        e(f"v_add_u32 {v(T)}, {8*i}, {v(T)}")
        if not dft: rowmap(e, dft, T, T+1, T+2)
        e(f"v_lshrrev_b32 {v(T+2)}, 1, {v(T)}"); e(f"v_xor_b32 {v(T+2)}, {v(T+2)}, {v(L)}"); e(f"v_and_b32 {v(T+2)}, 7, {v(T+2)}")
        e(f"v_lshlrev_b32 {v(T+2)}, 4, {v(T+2)}")
        e(f"v_lshl_add_u32 {v(V_XD+i)}, {v(T+1)}, 11, {v(T+2)}")
    e(f"s_lshl_b32 {s(S_T0)}, {s(S_WAVE)}, 13"); e(f"s_add_u32 {s(S_DMW)}, {s(S_T0)}, {LW0}")
    e(f"s_lshl_b32 {s(S_DMX)}, {s(S_WAVE)}, 12")
    e(f"s_mov_b32 {s(S_XOFF)}, 0")
    e(f"s_mov_b32 {s(S_WADV)}, {64*stride}")
    e("s_waitcnt lgkmcnt(0)")
    for c in range(2):
        for ins in dma_list(c % 3 if False else None):
            e(ins)
        for ins in dma_advance(): e(ins)
    e(f"v_bfe_u32 {v(T)}, {v(L)}, 2, 2")
    e(f"v_lshrrev_b32 {v(T+1)}, 5, {v(L)}")
    if not dft:
        e(f"v_lshl_add_u32 {v(T+2)}, {v(T+1)}, 3, {v(T)}")
    else:
        e(f"v_lshlrev_b32 {v(T+2)}, 1, {v(T)}"); e(f"v_lshl_add_u32 {v(T+2)}, {v(T+1)}, 4, {v(T+2)}")
    e(f"v_lshlrev_b32 {v(T+2)}, 9, {v(T+2)}")
    e(f"v_bfe_u32 {v(T+3)}, {v(L)}, 4, 1"); e(f"v_lshl_add_u32 {v(T+2)}, {v(T+3)}, 5, {v(T+2)}")
    e(f"v_and_b32 {v(T+3)}, 3, {v(L)}"); e(f"v_lshl_add_u32 {v(T+2)}, {v(T+3)}, 3, {v(T+2)}")
    e(f"v_add_u32 {v(T+2)}, {LW0}, {v(T+2)}")
    if not dft:
        e(f"v_xor_b32 {v(T)}, {s(S_WAVE)}, {v(T)}")
    for n in range(4):
        e(f"v_xor_b32 {v(T+3)}, {n}, {v(T)}")
        e(f"v_lshl_add_u32 {v(V_TR+n)}, {v(T+3)}, 6, {v(T+2)}")
    e(f"v_and_b32 {v(T)}, 31, {v(L)}")
    e(f"v_lshlrev_b32 {v(T+2)}, 7, {v(T)}"); e(f"s_lshl_b32 {s(S_T0)}, {s(S_WAVE)}, 12"); e(f"v_add_u32 {v(T+2)}, {s(S_T0)}, {v(T+2)}")
    e(f"v_bfe_u32 {v(T)}, {v(L)}, 1, 3")
    for k in range(4):
        if not dft:
            e(f"v_add_u32 {v(T+3)}, {2*k}, {v(T+1)}")
        else:
            e(f"v_lshlrev_b32 {v(T+3)}, 1, {v(T+1)}"); e(f"v_add_u32 {v(T+3)}, {4*(k//2) + k%2}, {v(T+3)}")
        e(f"v_xor_b32 {v(T+3)}, {v(T+3)}, {v(T)}")
        e(f"v_lshl_add_u32 {v(V_XR+k)}, {v(T+3)}, 4, {v(T+2)}")
    for r in (V_SUM, V_SUM+1, V_SQ, V_SQ+1, V_CS, V_CS+1):
        e(f"v_mov_b32 {v(r)}, 0")
    e(f"v_mov_b32 {v(V_ONE)}, 0x3f803f80")
    if dft:
        e(f"s_cmp_eq_u32 {s(S_CB)}, 15"); e(f"s_cselect_b32 {s(S_MASK)}, 1, 0"); e(f"s_mov_b32 {s(S_MASK+1)}, {s(S_MASK)}")
        e(f"v_mov_b32 {v(V_T+10)}, 0xbf803f80"); e(f"v_mov_b32 {v(V_T+11)}, 0x3f80bf80")
        e(f"v_mov_b32 {v(V_T+12)}, 0x05040100"); e(f"v_mov_b32 {v(V_T+13)}, 0x07060302")
    for r in range(128):
        e(f"v_mov_b32 {v(V_ACC+r)}, 0")
    if dft:
        for r in range(128):
            e(f"v_accvgpr_write_b32 {a_(r)}, 0")
    e(f"s_mov_b32 {s(S_RDW)}, 0"); e(f"s_mov_b32 {s(S_RDX)}, 0")
    if opt.get('pack', True):
        pack_job(e, opt)
    body(e, opt, dft, first=True, dma=True, vm=13)
    e(f"s_mov_b32 {s(S_CNT)}, 13")
    e(".p2align 3")
    e(f"{P}_loop:")
    body(e, opt, dft, first=False, dma=True)
    e(f"s_sub_u32 {s(S_CNT)}, {s(S_CNT)}, 1"); e(f"s_cmp_lg_u32 {s(S_CNT)}, 0"); e(f"s_cbranch_scc1 {P}_loop")
    body(e, opt, dft, first=False, dma=False, vm=12)
    body(e, opt, dft, first=False, dma=False, vm=0, pf=opt.get('pf', 0))
    tail(e, opt, dft)
    if dft: epilogue_dft(e, opt)
    else: epilogue_w1(e, opt)
    if opt.get('stamp'):
        e("s_waitcnt vmcnt(0)")
        e("s_memrealtime s[92:93]")
        e("s_load_dwordx2 s[96:97], s[0:1], 64")
        e("s_mov_b32 s98, 0x400000"); e("s_mov_b32 s99, 0x00020000")
        e("s_waitcnt lgkmcnt(0)")
        e("v_mov_b32 v2, s90"); e("v_mov_b32 v3, s92"); e("v_mov_b32 v4, s88"); e("v_mov_b32 v5, s86")
        e("s_lshl_b32 s3, s2, 4"); e("v_mov_b32 v6, s3"); e("s_sub_u32 s82, s82, s84"); e("v_mov_b32 v7, s82")
        e("v_cmp_eq_u32 vcc, 0, v0"); e("s_and_saveexec_b64 s[94:95], vcc"); e("s_cbranch_execz LA_end")
        e("buffer_store_dwordx4 v[2:5], v6, s[96:99], 0 offen")
        e("s_mov_b32 s3, 4096"); e("buffer_store_dword v7, v6, s[96:99], s3 offen")
    e("s_endpgm")

def rowmap(e, dft, vslot, vrow, vtmp):
    if not dft:
        e(f"s_lshr_b32 {s(S_T0)}, {s(S_RB)}, 1"); e(f"s_lshl_b32 {s(S_T0)}, {s(S_T0)}, 6")
        e(f"s_and_b32 {s(S_T1)}, {s(S_RB)}, 1"); e(f"s_add_u32 {s(S_T0)}, {s(S_T0)}, {s(S_T1)}")
        e(f"v_lshl_add_u32 {v(vtmp)}, {v(vslot)}, 1, {s(S_T0)}")
        e(f"s_add_u32 {s(S_T1)}, {s(S_WAVE)}, 1"); e(f"s_lshr_b32 {s(S_T1)}, {s(S_T1)}, 1"); e(f"s_lshl_b32 {s(S_T1)}, {s(S_T1)}, 10")
        e(f"s_and_b32 {s(S_T2)}, {s(S_WAVE)}, 1"); e(f"s_cmp_eq_u32 {s(S_T2)}, 1"); e(f"s_cselect_b32 {s(S_T2)}, -1, 1")
        e(f"v_mul_lo_u32 {v(vrow)}, {v(vtmp)}, {s(S_T2)}")
        e(f"v_add_u32 {v(vrow)}, {s(S_T1)}, {v(vrow)}")
        e(f"s_cmp_ge_u32 {s(S_WAVE)}, 2"); e(f"s_cselect_b32 {s(S_T2)}, 512, 0"); e(f"s_sub_u32 {s(S_T2)}, {s(S_T1)}, {s(S_T2)}")
        e(f"v_cmp_eq_u32 vcc, 0, {v(vtmp)}")
        e(f"v_mov_b32 {v(vtmp)}, {s(S_T2)}")
        e("s_nop 0")
        e(f"v_cndmask_b32 {v(vrow)}, {v(vrow)}, {v(vtmp)}, vcc")
    else:
        raise Exception("use rowmap_dft")

def rowmap_dft(e, img, vsig, vrow, vtmp):
    e(f"s_lshl_b32 {s(S_T0)}, {s(S_RB)}, 5"); e(f"s_add_u32 {s(S_T0)}, {s(S_T0)}, {s(S_WAVE)}")
    e(f"v_lshl_add_u32 {v(vrow)}, {v(vsig)}, 2, {s(S_T0)}")
    if img == 0: return
    if img == 2:
        e(f"v_sub_u32 {v(vrow)}, 1024, {v(vrow)}"); return
    e(f"v_cmp_eq_u32 vcc, 0, {v(vrow)}")
    if img == 1:
        e(f"v_sub_u32 {v(vrow)}, 2048, {v(vrow)}"); e(f"v_mov_b32 {v(vtmp)}, 512")
    else:
        e(f"v_add_u32 {v(vrow)}, 1024, {v(vrow)}"); e(f"v_mov_b32 {v(vtmp)}, 1536")
    e(f"v_cndmask_b32 {v(vrow)}, {v(vrow)}, {v(vtmp)}, vcc")

def dma_list(_):
    out = []
    for i in range(4):
        out.append(f"s_add_u32 m0, {s(S_DMX)}, {i*1024}\ns_nop 0\nbuffer_load_dwordx4 {v(V_XD+i)}, {s(S_X,4)}, {s(S_XOFF)} offen lds")
    for i in range(8):
        out.append(f"s_add_u32 m0, {s(S_DMW)}, {i*1024}\ns_nop 0\nbuffer_load_dwordx4 {v(V_WD+i%4)}, {s(S_W,4)}, {s(S_WC+i)} offen lds")
    return out

def dma_advance():
    out = []
    for i in range(4):
        out.append(f"v_add_u32 {v(V_WD+i)}, {s(S_WADV)}, {v(V_WD+i)}")
    out.append(f"s_add_u32 {s(S_XOFF)}, {s(S_XOFF)}, 128")
    out.append(f"s_add_u32 {s(S_DMW)}, {s(S_DMW)}, {WST}\ns_cmp_ge_u32 {s(S_DMW)}, {LW0+3*WST}\ns_cselect_b32 {s(S_T0)}, {3*WST}, 0\ns_sub_u32 {s(S_DMW)}, {s(S_DMW)}, {s(S_T0)}")
    out.append(f"s_add_u32 {s(S_DMX)}, {s(S_DMX)}, {XST}\ns_cmp_ge_u32 {s(S_DMX)}, {3*XST}\ns_cselect_b32 {s(S_T0)}, {3*XST}, 0\ns_sub_u32 {s(S_DMX)}, {s(S_DMX)}, {s(S_T0)}")
    return out

def tr_reads(dft, n, ks):
    if not dft:
        off = ks*8192 + (n//4)*256
        jo = 2048
    else:
        m, par = ks//2, ks%2
        off = (32*m + par)*512 + (n//4)*256
        jo = 8*512
    return [f"ds_read_b64_tr_b16 {v(V_FA+4*n,2)}, {v(V_TRC+n%4)} offset:{off}",
            f"ds_read_b64_tr_b16 {v(V_FA+4*n+2,2)}, {v(V_TRC+n%4)} offset:{off+jo}"]

def mfma(dft, n, ks):
    if not dft:
        fx = V_FX + 4*(ks%2)
        acc = v(V_ACC+16*n, 16)
        return f"v_mfma_f32_32x32x16_bf16 {acc}, {v(V_FA+4*n,4)}, {v(fx,4)}, {acc}"
    else:
        fx = 96 + 8*((ks//2)%2) + 4*(ks%2)
        acc = v(V_ACC+16*n, 16) if ks%2 == 0 else a_(16*n, 16)
        return f"v_mfma_f32_32x32x16_bf16 {acc}, {v(fx,4)}, {v(V_FA+4*n,4)}, {acc}"

def stats_ops(opt, reg):
    out = []
    if not opt.get('stats', True): return out
    for d in range(4):
        out.append(f"v_dot2c_f32_bf16 {v(V_SUM+d%2)}, {v(reg+d)}, {v(V_ONE)}")
        out.append(f"v_dot2c_f32_bf16 {v(V_SQ+d%2)}, {v(reg+d)}, {v(reg+d)}")
    return out

def kstep(e, opt, dft, ks_mfma, ks_read, extra, do_mfma=True):
    gaps = [[] for _ in range(8)]
    pre = []
    if ks_read is not None:
        if not dft:
            gaps[0].append(f"ds_read_b128 {v(V_FX+4*(ks_read%2),4)}, {v(V_XRC+ks_read)}")
        else:
            if ks_read % 2 == 1:
                pass
        for n in range(8):
            gaps[n] += tr_reads(dft, n, ks_read)
    for g, ins in extra:
        gaps[g].append(ins)
    for n in range(8):
        if do_mfma:
            if n % 2 == 0:
                e(f"s_waitcnt lgkmcnt({opt['_lg'](n)})")
            for ins in opt['_premfma'](n): e(ins)
            if not opt.get('nomfma'): e(mfma(dft, n, ks_mfma))
        for ins in gaps[n]:
            if opt.get('nodma') and 'lds' in ins: continue
            if opt.get('nords') and ins.startswith('ds_read'): continue
            if opt.get('halfrds') and ins.startswith('ds_read') and n % 2: continue
            e(ins)

def prefetch_w2(e, mode):
    R = 120
    e(f"s_load_dwordx2 {s(S_T,2)}, s[0:1], 56")
    e(f"s_mov_b32 {s(S_T+2)}, {3584*1024*2}"); e(f"s_mov_b32 {s(S_T+3)}, 0x00020000")
    e(f"v_lshlrev_b32 {v(R)}, 7, {v(V_LANE)}")
    if mode == 1:
        e(f"s_lshl_b32 {s(S_T0)}, s2, 2"); e(f"s_add_u32 {s(S_T0)}, {s(S_T0)}, {s(S_WAVE)}"); e(f"s_lshl_b32 {s(S_T0)}, {s(S_T0)}, 13")
        e(f"v_add_u32 {v(R)}, {s(S_T0)}, {v(R)}")
        e("s_waitcnt lgkmcnt(0)")
        e(f"buffer_load_dword a200, {v(R)}, {s(S_T,4)}, 0 offen")
    else:
        e(f"s_lshr_b32 {s(S_T0)}, s2, 3"); e(f"s_lshl_b32 {s(S_T0)}, {s(S_T0)}, 2"); e(f"s_add_u32 {s(S_T0)}, {s(S_T0)}, {s(S_WAVE)}")
        e(f"s_mul_i32 {s(S_T0)}, {s(S_T0)}, {224*128}")
        e(f"s_and_b32 {s(S_T1)}, s2, 1"); e(f"s_mul_i32 {s(S_T1)}, {s(S_T1)}, {1792*2048}"); e(f"s_add_u32 {s(S_T0)}, {s(S_T0)}, {s(S_T1)}")
        e(f"v_add_u32 {v(R)}, {s(S_T0)}, {v(R)}")
        e("s_waitcnt lgkmcnt(0)")
        for i in range(4):
            e(f"s_mov_b32 {s(S_T1)}, {min(i*64, 160)*128}")
            e(f"buffer_load_dword a{200+i}, {v(R)}, {s(S_T,4)}, {s(S_T1)} offen")

def body(e, opt, dft, first, dma, vm=12, pf=0):
    e(f"s_waitcnt vmcnt({vm})")
    if not opt.get('nobar'): e("s_barrier")
    if pf: prefetch_w2(e, pf)
    if first and opt.get('stamp'):
        e("s_memrealtime s[88:89]"); e("s_memtime s[84:85]")
    for n in range(4):
        e(f"v_add_u32 {v(V_TRC+n)}, {s(S_RDW)}, {v(V_TR+n)}")
    for n in range(4):
        e(f"v_add_u32 {v(V_XRC+n)}, {s(S_RDX)}, {v(V_XR+n)}")
    dl = dma_list(None) if dma else []
    adv = dma_advance() if dma else []
    rdadv = [f"s_add_u32 {s(S_RDW)}, {s(S_RDW)}, {WST}\ns_cmp_ge_u32 {s(S_RDW)}, {3*WST}\ns_cselect_b32 {s(S_RDW)}, 0, {s(S_RDW)}",
             f"s_add_u32 {s(S_RDX)}, {s(S_RDX)}, {XST}\ns_cmp_ge_u32 {s(S_RDX)}, {3*XST}\ns_cselect_b32 {s(S_RDX)}, 0, {s(S_RDX)}"]
    if not dft:
        for step in range(4):
            ks_m = (step + 3) % 4
            ks_r = step
            extra = []
            for q, g in enumerate(opt.get('dmagaps', (1, 4, 6))):
                idx = step*3 + q
                if idx < len(dl): extra.append((g, dl[idx]))
            if step == 3:
                for q, ins in enumerate(adv): extra.append((7, ins))
                for ins in rdadv: extra.append((7, ins))
            do = not (first and step == 0)
            if do:
                st = stats_ops(opt, V_FX + 4*(ks_m%2))
                for q, ins in enumerate(st): extra.append(((2,3,5,7)[q//2], ins))
            def premfma(n, do=do):
                if opt.get('colsum', True) and n in (0, 4):
                    return [f"v_dot2c_f32_bf16 {v(V_CS+n//4)}, {v(V_FA+4*n+d)}, {v(V_ONE)}" for d in range(4)]
                return []
            opt['_premfma'] = premfma
            opt['_lg'] = lambda n: 12 + (1 if n > 0 else 0)
            kstep(e, opt, dft, ks_m, ks_r, extra, do_mfma=do)
    else:
        for step in range(4):
            ks_m = (step + 3) % 4
            ks_r = step
            extra = []
            nx = 0
            if step == 0:
                pass
            for q, g in enumerate(opt.get('dmagaps', (1, 4, 6))):
                idx = step*3 + q
                if idx < len(dl): extra.append((g, dl[idx]))
            if step == 3:
                for q, ins in enumerate(adv): extra.append((7, ins))
                for ins in rdadv: extra.append((7, ins))
            do = not (first and step == 0)
            if step == 0:
                for k in range(4):
                    e(f"ds_read_b128 {v(80+4*k,4)}, {v(V_XRC+k)}")
                extra.append((4, "s_waitcnt lgkmcnt(10)"))
                pm = perms(0)
                for q, ins in enumerate(pm): extra.append((4 + q//3, ins))
            if step == 1:
                pm = perms(1)
                for q, ins in enumerate(pm): extra.append((q//2, ins))
                st = stats_ops(opt, 80)
                for q, ins in enumerate(st): extra.append((4 + q//2, ins))
            if step == 2:
                st = stats_ops(opt, 84) + stats_ops(opt, 88)
                for q, ins in enumerate(st): extra.append((q//2, ins))
            if step == 3:
                st = stats_ops(opt, 92)
                for q, ins in enumerate(st): extra.append((q//2, ins))
            def premfma(n, ks_m=ks_m):
                if n == 0:
                    cst = V_T+10 if ks_m%2 == 0 else V_T+11
                    return [f"v_cndmask_b32 {v(V_FA+d)}, {v(V_FA+d)}, {v(cst)}, {s(S_MASK,2)}" for d in range(4)] + ["s_nop 1"]
                return []
            opt['_premfma'] = premfma
            if step == 0:
                opt['_lg'] = lambda n: min(15, 12 + 4)
            else:
                opt['_lg'] = lambda n: 12
            kstep(e, opt, dft, ks_m, ks_r, extra, do_mfma=do)

def perms(m):
    raw = 80 + 8*m; fe = 96 + 8*m; fo = fe + 4
    out = []
    for d in range(4):
        out.append(f"v_perm_b32 {v(fe+d)}, {v(raw+2*d+1)}, {v(raw+2*d)}, {v(V_T+12)}")
    for d in range(4):
        out.append(f"v_perm_b32 {v(fo+d)}, {v(raw+2*d+1)}, {v(raw+2*d)}, {v(V_T+13)}")
    return out

def tail(e, opt, dft):
    extra = []
    if not dft:
        st = stats_ops(opt, V_FX + 4)
        for q, ins in enumerate(st): extra.append(((2,3,5,7)[q//2], ins))
        def premfma(n):
            if opt.get('colsum', True) and n in (0, 4):
                return [f"v_dot2c_f32_bf16 {v(V_CS+n//4)}, {v(V_FA+4*n+d)}, {v(V_ONE)}" for d in range(4)]
            return []
    else:
        def premfma(n):
            if n == 0:
                return [f"v_cndmask_b32 {v(V_FA+d)}, {v(V_FA+d)}, {v(V_T+11)}, {s(S_MASK,2)}" for d in range(4)] + ["s_nop 1"]
            return []
    opt['_premfma'] = premfma
    opt['_lg'] = lambda n: max(0, 12 - 2*n)
    kstep(e, opt, dft, 3, None, extra)
    if opt.get('stamp'):
        e("s_memrealtime s[86:87]"); e("s_memtime s[82:83]")

def row_stats(e, T):
    e("s_nop 2")
    e(f"v_add_f32 {v(V_SUM)}, {v(V_SUM)}, {v(V_SUM+1)}")
    e(f"v_add_f32 {v(V_SQ)}, {v(V_SQ)}, {v(V_SQ+1)}")
    e(f"v_mov_b32 {v(V_SUM+1)}, {v(V_SUM)}"); e(f"v_mov_b32 {v(V_SQ+1)}, {v(V_SQ)}")
    e("s_nop 1")
    e(f"v_permlane32_swap_b32 {v(V_SUM)}, {v(V_SUM+1)}")
    e(f"v_permlane32_swap_b32 {v(V_SQ)}, {v(V_SQ+1)}")
    e("s_nop 1")
    e(f"v_add_f32 {v(V_SUM)}, {v(V_SUM)}, {v(V_SUM+1)}")
    e(f"v_add_f32 {v(V_SQ)}, {v(V_SQ)}, {v(V_SQ+1)}")
    e(f"v_mul_f32 {v(V_SUM)}, 0x3a800000, {v(V_SUM)}")
    e(f"v_mul_f32 {v(V_SQ)}, 0x3a800000, {v(V_SQ)}")
    e(f"v_fma_f32 {v(V_SQ)}, -{v(V_SUM)}, {v(V_SUM)}, {v(V_SQ)}")
    bf16_round(e, V_SUM, V_SUM)
    bf16_round(e, V_SQ, V_SQ)
    e(f"v_add_f32 {v(V_SQ)}, 0x3727c5ac, {v(V_SQ)}")
    bf16_round(e, V_SQ, V_SQ)
    e(f"v_sqrt_f32 {v(V_SQ)}, {v(V_SQ)}")
    e("s_nop 0")
    bf16_round(e, V_SQ, V_SQ)
    e(f"v_rcp_f32 {v(T)}, {v(V_SQ)}")
    e("s_nop 0")
    e(f"v_mul_f32 {v(T+1)}, {v(V_SUM)}, {v(T)}")

def epilogue_w1(e, opt):
    T = V_T; L = V_LANE
    row_stats(e, T)
    e(f"v_mov_b32 {v(T+2)}, {v(V_CS)}"); e(f"v_mov_b32 {v(T+3)}, {v(V_CS+1)}")
    e("s_nop 1")
    e(f"v_permlane32_swap_b32 {v(V_CS)}, {v(T+2)}")
    e(f"v_permlane32_swap_b32 {v(V_CS+1)}, {v(T+3)}")
    e("s_nop 1")
    e(f"v_add_f32 {v(V_CS)}, {v(V_CS)}, {v(T+2)}")
    e(f"v_add_f32 {v(V_CS+1)}, {v(V_CS+1)}, {v(T+3)}")
    e(f"v_and_b32 {v(T+2)}, 31, {v(L)}"); e(f"v_lshlrev_b32 {v(T+2)}, 2, {v(T+2)}")
    e(f"s_lshl_b32 {s(S_T0)}, {s(S_WAVE)}, 7"); e(f"s_add_u32 {s(S_T0)}, {s(S_T0)}, {LSP}")
    e(f"v_add_u32 {v(T+2)}, {s(S_T0)}, {v(T+2)}")
    e(f"ds_write_b32 {v(T+2)}, {v(V_CS)}")
    e(f"ds_write_b32 {v(T+2)}, {v(V_CS+1)} offset:512")
    e(f"v_lshrrev_b32 {v(T+2)}, 5, {v(L)}"); e(f"v_lshlrev_b32 {v(T+2)}, 4, {v(T+2)}")
    for n in range(4):
        e(f"s_xor_b32 {s(S_T0)}, {s(S_WAVE)}, {n}"); e(f"s_lshl_b32 {s(S_T0)}, {s(S_T0)}, 7"); e(f"s_add_u32 {s(S_T0)}, {s(S_T0)}, {LSP}")
        e(f"v_add_u32 {v(V_TRC+n)}, {s(S_T0)}, {v(T+2)}")
    e(f"s_lshl_b32 {s(S_T0)}, {s(S_RB)}, 2"); e(f"s_add_u32 {s(S_T0)}, {s(S_T0)}, {s(S_WAVE)}"); e(f"s_mul_i32 {s(S_T0)}, {s(S_T0)}, 224")
    e(f"s_lshl_b32 {s(S_T1)}, {s(S_CB)}, 4"); e(f"s_add_u32 {s(S_T0)}, {s(S_T0)}, {s(S_T1)}"); e(f"s_lshl_b32 {s(S_T0)}, {s(S_T0)}, 10")
    e(f"v_lshlrev_b32 {v(T+4)}, 4, {v(L)}"); e(f"v_add_u32 {v(T+4)}, {s(S_T0)}, {v(T+4)}")
    for n in range(4):
        e(f"s_xor_b32 {s(S_WC+n)}, {s(S_WAVE)}, {n}"); e(f"s_lshl_b32 {s(S_WC+n)}, {s(S_WC+n)}, 11")
        e(f"s_add_u32 {s(S_WC+4+n)}, {s(S_WC+n)}, 8192")
    e(f"v_sub_f32 {v(T+1)}, 0, {v(T+1)}")
    e("s_waitcnt lgkmcnt(0)")
    e("s_barrier")
    CS = 48
    RS2 = 112; MR2 = 114
    e(f"v_mov_b32 {v(RS2)}, {v(T)}"); e(f"v_mov_b32 {v(RS2+1)}, {v(T)}")
    e(f"v_mov_b32 {v(MR2)}, {v(T+1)}"); e(f"v_mov_b32 {v(MR2+1)}, {v(T+1)}")
    for half in range(2):
        for n4 in range(4):
            for q in range(4):
                e(f"ds_read_b128 {v(CS+16*n4+4*q,4)}, {v(V_TRC+n4)} offset:{half*512 + q*32}")
        for n4 in range(4):
            n = half*4 + n4
            e(f"s_waitcnt lgkmcnt({12-4*n4})")
            acc = V_ACC + 16*n
            c = CS + 16*n4
            for r in range(0, 16, 2):
                e(f"v_pk_mul_f32 {v(acc+r,2)}, {v(acc+r,2)}, {v(RS2,2)}")
                e(f"v_pk_fma_f32 {v(acc+r,2)}, {v(c+r,2)}, {v(MR2,2)}, {v(acc+r,2)}")
            for r in range(0, 16, 2):
                e(f"v_cvt_pk_bf16_f32 {v(acc+r//2)}, {v(acc+r)}, {v(acc+r+1)}")
            for r in range(8):
                e(f"v_pk_max_i16 {v(acc+r)}, {v(acc+r)}, 0")
            e(f"buffer_store_dwordx4 {v(acc,4)}, {v(T+4)}, {s(S_WS,4)}, {s(S_WC+n)} offen")
            e(f"buffer_store_dwordx4 {v(acc+4,4)}, {v(T+4)}, {s(S_WS,4)}, {s(S_WC+n)} offen offset:1024")

def epilogue_dft(e, opt):
    T = V_T; L = V_LANE
    row_stats(e, T)
    e(f"s_lshl_b32 {s(S_T0)}, {s(S_RB)}, 2"); e(f"s_add_u32 {s(S_T3)}, {s(S_T0)}, {s(S_WAVE)}")
    e(f"s_cmp_eq_u32 {s(S_T3)}, 0")
    e(f"s_cselect_b32 s46, 0x01000100, 0"); e("s_mov_b32 s47, s46")
    e(f"s_cselect_b32 s48, 0x00010001, 0"); e("s_mov_b32 s49, s48")
    e("s_mov_b32 s50, 0x00ffff00"); e("s_mov_b32 s51, s50")
    e(f"v_mov_b32 {v(T+2)}, 0"); e(f"v_sub_f32 {v(T+3)}, 0, {v(T)}")
    e(f"v_cndmask_b32 {v(T+4)}, {v(T)}, {v(T+2)}, s[46:47]")
    e(f"v_cndmask_b32 {v(T+5)}, {v(T)}, {v(T+3)}, s[50:51]")
    e(f"v_cndmask_b32 {v(T+5)}, {v(T+5)}, {v(T)}, s[46:47]")
    e(f"v_cndmask_b32 {v(T+5)}, {v(T+5)}, {v(T+2)}, s[48:49]")
    e(f"s_cmp_eq_u32 {s(S_CB)}, 15"); e("s_cselect_b64 s[50:51], -1, 0")
    e(f"v_cndmask_b32 {v(T+5)}, {v(T+4)}, {v(T+5)}, s[50:51]")
    e(f"v_and_b32 {v(T+2)}, 31, {v(L)}"); e(f"v_lshlrev_b32 {v(T+2)}, 2, {v(T+2)}")
    e(f"s_lshl_b32 {s(S_T0)}, {s(S_WAVE)}, 9"); e(f"s_add_u32 {s(S_T0)}, {s(S_T0)}, {LSP}")
    e(f"v_add_u32 {v(T+2)}, {s(S_T0)}, {v(T+2)}")
    e(f"ds_write_b32 {v(T+2)}, {v(T+5)}")
    e(f"ds_write_b32 {v(T+2)}, {v(T+4)} offset:128")
    e(f"ds_write_b32 {v(T+2)}, {v(V_SUM)} offset:256")
    e(f"ds_write_b32 {v(T+2)}, {v(T)} offset:384")
    e(f"v_lshrrev_b32 {v(T+2)}, 5, {v(L)}"); e(f"v_lshlrev_b32 {v(T+2)}, 4, {v(T+2)}"); e(f"v_add_u32 {v(T+2)}, {s(S_T0)}, {v(T+2)}")
    RHO = 48; RHOE = 64; M = 112
    e("s_waitcnt lgkmcnt(0)")
    for q in range(4):
        e(f"ds_read_b128 {v(RHO+4*q,4)}, {v(T+2)} offset:{q*32}")
    for q in range(4):
        e(f"ds_read_b128 {v(RHOE+4*q,4)}, {v(T+2)} offset:{128+q*32}")
    for q in range(4):
        e(f"ds_read_b128 {v(M+4*q,4)}, {v(T+2)} offset:{256+q*32}")
    e(f"ds_read_b32 {v(T+6)}, {v(T+2)} offset:{384+32}")
    e(f"ds_read_b32 {v(T+7)}, {v(T+2)} offset:{384+96}")
    e(f"s_sub_u32 {s(S_T0)}, {s(S_CB)}, 14"); e(f"s_mul_i32 {s(S_T0)}, {s(S_T0)}, {AE_MAT}")
    e(f"s_mul_i32 {s(S_T1)}, {s(S_WAVE)}, {AE_C}"); e(f"s_add_u32 {s(S_T0)}, {s(S_T0)}, {s(S_T1)}")
    e(f"s_lshl_b32 {s(S_T1)}, {s(S_RB)}, 9"); e(f"s_add_u32 {s(S_T0)}, {s(S_T0)}, {s(S_T1)}"); e(f"s_add_u32 {s(S_T0)}, {s(S_T0)}, {WS_AE}")
    A1 = 80; A2 = 81; A1s = 82; A2s = 83; C1 = 84; KM = 86; DG = 87
    e(f"v_lshrrev_b32 {v(T+4)}, 5, {v(L)}")
    e(f"v_mul_u32_u24 {v(T+5)}, {AE_PAR}, {v(T+4)}"); e(f"v_add_u32 {v(T+5)}, {s(S_T0)}, {v(T+5)}")
    e(f"v_mul_i32_i24 {v(DG)}, {512-AE_PAR}, {v(T+4)}"); e(f"v_add_u32 {v(DG)}, 8192, {v(DG)}")
    e(f"v_and_b32 {v(T+3)}, 31, {v(L)}")
    e(f"v_lshl_add_u32 {v(A1)}, {v(T+3)}, 4, {v(T+5)}")
    e(f"v_lshlrev_b32 {v(T+4)}, 4, {v(T+3)}"); e(f"v_sub_u32 {v(T+4)}, {v(T+5)}, {v(T+4)}")
    e(f"v_add_u32 {v(A2)}, {8*AE_ET + 512}, {v(T+4)}")
    e(f"v_add_u32 {v(T+4)}, {9*AE_ET}, {v(T+4)}")
    e(f"v_cmp_eq_u32 vcc, 0, {v(T+3)}"); e("s_nop 1")
    e(f"v_cndmask_b32 {v(A2)}, {v(A2)}, {v(T+4)}, vcc")
    for u in range(8):
        e(f"s_mov_b32 {s(S_WC+u)}, {u*AE_ET}")
    e(f"v_add_u32 {v(T+5)}, {(8*AE_ET - AE_MAT) & 0xffffffff}, {v(A1)}")
    e(f"v_cndmask_b32 {v(A1s)}, {v(A1)}, {v(T+5)}, {s(S_MASK,2)}")
    e(f"v_add_u32 {v(T+5)}, {8*AE_ET}, {v(A1)}")
    e(f"v_add_u32 {v(A2s)}, {7*AE_ET}, {v(A2)}")
    e(f"v_cndmask_b32 {v(A2s)}, {v(A2s)}, {v(T+5)}, {s(S_MASK,2)}")
    e(f"v_mov_b32 {v(T+5)}, 0"); e(f"v_mov_b32 {v(C1)}, 1.0")
    e(f"v_cndmask_b32 {v(C1)}, {v(C1)}, {v(T+5)}, {s(S_MASK,2)}")
    e(f"v_mov_b32 {v(C1+1)}, {v(C1)}")
    e(f"s_cmp_eq_u32 {s(S_CB)}, 14"); e(f"s_cselect_b32 {s(S_T1)}, 0xc4000000, 0")
    e(f"v_mov_b32 {v(T+8)}, {s(S_T1)}")
    e(f"v_cndmask_b32 {v(KM)}, {v(T+5)}, {v(T+8)}, vcc")
    e(f"s_cmp_eq_u32 {s(S_CB)}, 15"); e(f"s_cselect_b32 {s(S_T2)}, 0x80008000, 0")
    e("s_waitcnt lgkmcnt(0)")
    for r in range(16):
        e(f"v_cndmask_b32 {v(RHOE+r)}, {v(RHO+r)}, {v(RHOE+r)}, {s(S_MASK,2)}")
    O = 96
    for u in range(8):
        E = V_ACC + 16*u
        RE = RHOE if u == 0 else RHO
        for r in range(16):
            e(f"v_accvgpr_read_b32 {v(O+r)}, {a_(16*u+r)}")
        if u == 0:
            for r in range(16):
                e(f"v_fmac_f32 {v(E+r)}, {v(M+r)}, {v(KM)}")
                e(f"v_fmac_f32 {v(O+r)}, {v(M+r)}, {v(KM)}")
        e(f"s_cmp_lg_u32 {s(S_T3)}, 0"); e(f"s_cbranch_scc1 LAd_nsp{u}")
        specialG(e, u, E, O, T, A1s if u == 0 else A1, A2s if u == 0 else A2, C1, DG)
        e(f"LAd_nsp{u}:")
        for X, R in ((E, RE), (O, RHO)):
            for h in (0, 8):
                for r in (0, 2):
                    e(f"v_pk_mul_f32 {v(X+h+r,2)}, {v(X+h+r,2)}, {v(R+h+r,2)}")
                for r in (0, 2):
                    e(f"v_pk_fma_f32 {v(X+h+r,2)}, {v(X+h+4+r,2)}, {v(R+h+4+r,2)}, {v(X+h+r,2)}")
        for h in (0, 8):
            for r in (0, 2):
                if u == 0:
                    e(f"v_pk_fma_f32 {v(E+h+4+r,2)}, {v(O+h+r,2)}, {v(C1,2)}, {v(E+h+r,2)}")
                    e(f"v_pk_fma_f32 {v(O+h+4+r,2)}, {v(E+h+r,2)}, {v(C1,2)}, {v(O+h+r,2)} neg_lo:[0,0,1] neg_hi:[0,0,1]")
                else:
                    e(f"v_pk_add_f32 {v(E+h+4+r,2)}, {v(E+h+r,2)}, {v(O+h+r,2)}")
                    e(f"v_pk_add_f32 {v(O+h+4+r,2)}, {v(E+h+r,2)}, {v(O+h+r,2)} neg_lo:[0,1] neg_hi:[0,1]")
        for X in (E, O):
            for r in (0, 2):
                e(f"v_pk_add_f32 {v(X+r,2)}, {v(X+4+r,2)}, {v(X+12+r,2)}")
                e(f"v_pk_add_f32 {v(X+8+r,2)}, {v(X+4+r,2)}, {v(X+12+r,2)} neg_lo:[0,1] neg_hi:[0,1]")
        for X, D in ((E, E+4), (O, E+12)):
            e(f"v_cvt_pk_bf16_f32 {v(D)}, {v(X)}, {v(X+1)}")
            e(f"v_cvt_pk_bf16_f32 {v(D+1)}, {v(X+2)}, {v(X+3)}")
            e(f"v_cvt_pk_bf16_f32 {v(D+2)}, {v(X+8)}, {v(X+9)}")
            e(f"v_cvt_pk_bf16_f32 {v(D+3)}, {v(X+10)}, {v(X+11)}")
        for r in range(4):
            e(f"v_xor_b32 {v(E+12+r)}, {s(S_T2)}, {v(E+12+r)}")
        e(f"v_permlane32_swap_b32 {v(E+4)}, {v(E+6)}")
        e(f"v_permlane32_swap_b32 {v(E+5)}, {v(E+7)}")
        e(f"v_permlane32_swap_b32 {v(E+12)}, {v(E+14)}")
        e(f"v_permlane32_swap_b32 {v(E+13)}, {v(E+15)}")
        e("s_nop 1")
        if u == 0:
            e(f"buffer_store_dwordx4 {v(E+4,4)}, {v(A1s)}, {s(S_WS,4)}, 0 offen")
            e(f"buffer_store_dwordx4 {v(E+12,4)}, {v(A2s)}, {s(S_WS,4)}, 0 offen")
            e(f"s_cmp_eq_u32 {s(S_CB)}, 14"); e("s_cbranch_scc1 LAd_nz")
            e(f"s_mov_b64 exec, {s(S_MASK,2)}")
            for r in range(4): e(f"v_mov_b32 {v(T+8+r)}, 0")
            e(f"buffer_store_dwordx4 {v(T+8,4)}, {v(A1)}, {s(S_WS,4)}, 0 offen")
            e(f"buffer_store_dwordx4 {v(T+8,4)}, {v(A2)}, {s(S_WS,4)}, {s(S_WC+7)} offen")
            e("s_mov_b64 exec, -1")
            e("s_nop 1")
            e("LAd_nz:")
        else:
            e(f"buffer_store_dwordx4 {v(E+4,4)}, {v(A1)}, {s(S_WS,4)}, {s(S_WC+u)} offen")
            e(f"buffer_store_dwordx4 {v(E+12,4)}, {v(A2)}, {s(S_WS,4)}, {s(S_WC+7-u)} offen")

def specialG(e, u, E, O, T, A1, A2, C1, DG):
    X = 116 if u else 88
    X = 88
    if u == 0:
        e(f"v_fma_f32 {v(X)}, {v(O+4)}, {v(C1)}, {v(E+4)}"); e(f"v_fma_f32 {v(X+1)}, {v(O+12)}, {v(C1)}, {v(E+12)}")
    else:
        e(f"v_add_f32 {v(X)}, {v(O+4)}, {v(E+4)}"); e(f"v_add_f32 {v(X+1)}, {v(O+12)}, {v(E+12)}")
    e(f"v_sub_f32 {v(X+4)}, {v(E+4)}, {v(O+4)}"); e(f"v_sub_f32 {v(X+5)}, {v(E+12)}, {v(O+12)}")
    e(f"v_mul_f32 {v(X)}, {v(X)}, {v(T+6)}"); e(f"v_fmac_f32 {v(X)}, {v(X+1)}, {v(T+7)}")
    e(f"v_mul_f32 {v(X+4)}, {v(X+4)}, {v(T+6)}"); e(f"v_fmac_f32 {v(X+4)}, {v(X+5)}, {v(T+7)}")
    e(f"v_mov_b32 {v(X+1)}, 0")
    e(f"v_cvt_pk_bf16_f32 {v(X)}, {v(X)}, {v(X+1)}")
    e(f"v_cvt_pk_bf16_f32 {v(X+4)}, {v(X+4)}, {v(X+1)}")
    e(f"v_cmp_gt_u32 vcc, 32, {v(V_LANE)}")
    for r in (2, 3, 5, 6, 7): e(f"v_mov_b32 {v(X+r)}, 0")
    e(f"v_cndmask_b32 {v(X)}, {v(X+1)}, {v(X)}, vcc")
    e(f"v_cndmask_b32 {v(X+4)}, {v(X+1)}, {v(X+4)}, vcc")
    e(f"v_add_u32 {v(T+8)}, {v(A1)}, {v(DG)}"); e(f"v_add_u32 {v(T+9)}, {v(A2)}, {v(DG)}")
    if u == 0:
        e(f"buffer_store_dwordx4 {v(X,4)}, {v(T+8)}, {s(S_WS,4)}, 0 offen")
        e(f"buffer_store_dwordx4 {v(X+4,4)}, {v(T+9)}, {s(S_WS,4)}, 0 offen")
    else:
        e(f"buffer_store_dwordx4 {v(X,4)}, {v(T+8)}, {s(S_WS,4)}, {s(S_WC+u)} offen")
        e(f"buffer_store_dwordx4 {v(X+4,4)}, {v(T+9)}, {s(S_WS,4)}, {s(S_WC+7-u)} offen")
    e("s_nop 1")

def pack_job(e, opt):
    e(f"s_lshl_b32 {s(S_T0)}, s2, 2"); e(f"s_add_u32 {s(S_T0)}, {s(S_T0)}, {s(S_WAVE)}"); e(f"s_lshl_b32 {s(S_T0)}, {s(S_T0)}, 6")
    e(f"s_add_u32 {s(S_T0)}, {s(S_T0)}, {WS_FL}")
    e("s_mov_b64 exec, 1")
    e(f"buffer_store_dword {v(V_SUM)}, {v(V_SUM)}, {s(S_WS,4)}, {s(S_T0)} offen")
    e("s_mov_b64 exec, -1")

HEADER = """; Kernarg: 0 A_x, 8 seq_re, 16 seq_im, 24 hid_re, 32 hid_im, 40 B_x, 48 w1, 56 w2, 64 out, 72 debug, 80 ws
"""
def gen(opt):
    e = Asm()
    e(HEADER.rstrip())
    e("; @launch kernel=ka_kernel grid=(256,1,1) block=(256,1,1) lds=163840")
    if opt.get('two', False):
        e("; @launch kernel=kb_kernel grid=(256,1,1) block=(256,1,1) lds=163840")
    e('.amdgcn_target "amdgcn-amd-amdhsa--gfx950"')
    e(".text")
    genA(e, opt)
    if opt.get('two', False):
        import genb
        genb.genB(e, opt)
    e('.section .rodata,"a"')
    kernel_desc(e, "ka_kernel")
    if opt.get('two', False):
        kernel_desc(e, "kb_kernel", vgprs=336, accum=256)
    return e.text()

if __name__ == "__main__":
    opt = {}
    for a in sys.argv[2:]:
        k, val = a.split('='); opt[k] = eval(val)
    open(sys.argv[1], 'w').write(gen(opt))
```

```python
import sys, re

WS_H   = 0x0000000
WS_AE  = 0x1000000
WS_EX  = 0x1800000
WS_FL  = 0x2000000
AE_C = 9*1024
AE_ET = 4*AE_C
AE_PAR = 17*AE_ET
AE_MAT = 2*AE_PAR

class Asm:
    def __init__(self):
        self.lines = []
    def __call__(self, s):
        for l in s.split('\n'):
            m = re.search(r'offset:(\d+)', l)
            if m:
                lim = 65536 if l.startswith('ds_') else 4096
                assert int(m.group(1)) < lim, l
            self.lines.append(l)
    def text(self):
        return "\n".join(self.lines) + "\n"

def v(a, n=1):
    return f"v{a}" if n == 1 else f"v[{a}:{a+n-1}]"
def a_(a, n=1):
    return f"a{a}" if n == 1 else f"a[{a}:{a+n-1}]"
def s(a, n=1):
    return f"s{a}" if n == 1 else f"s[{a}:{a+n-1}]"

def kernel_desc(e, name, vgprs=512, accum=256):
    e(".p2align 6")
    e(f".amdhsa_kernel {name}")
    e(f"  .amdhsa_next_free_vgpr {vgprs}")
    e("  .amdhsa_next_free_sgpr 102")
    e(f"  .amdhsa_accum_offset {accum}")
    e("  .amdhsa_group_segment_fixed_size 0")
    e("  .amdhsa_kernarg_size 88")
    e("  .amdhsa_user_sgpr_count 2")
    e("  .amdhsa_user_sgpr_kernarg_segment_ptr 1")
    e("  .amdhsa_system_sgpr_workgroup_id_x 1")
    e(".end_amdhsa_kernel")

def ticket(e, P, end, ldsoff, stride=32):
    e("s_load_dwordx2 s[96:97], s[0:1], 72")
    e("s_getreg_b32 s92, hwreg(HW_REG_XCC_ID, 0, 4)")
    e("s_and_b32 s92, s92, 7")
    e("s_mov_b32 s98, 256"); e("s_mov_b32 s99, 0x00020000")
    e(f"v_mov_b32 v4, {ldsoff}")
    e("v_readfirstlane_b32 s93, v0")
    e("s_cmp_lg_u32 s93, 0"); e(f"s_cbranch_scc1 {P}_tkw")
    e("s_mov_b32 s94, 8")
    e("s_mov_b64 exec, 1")
    e("s_waitcnt lgkmcnt(0)")
    e(f"{P}_tkl:")
    e(f"s_mul_i32 s95, s92, {stride}")
    e("v_mov_b32 v2, 1"); e("v_mov_b32 v3, 0")
    e("buffer_atomic_add v2, v3, s[96:99], s95 offen sc0 sc1")
    e("s_waitcnt vmcnt(0)")
    e("v_readfirstlane_b32 s93, v2")
    e("s_cmp_lt_u32 s93, 32"); e(f"s_cbranch_scc1 {P}_tkg")
    e("s_add_u32 s92, s92, 1"); e("s_and_b32 s92, s92, 7")
    e("s_sub_u32 s94, s94, 1"); e("s_cmp_lg_u32 s94, 0"); e(f"s_cbranch_scc1 {P}_tkl")
    e("s_mov_b32 s93, 32")
    e(f"{P}_tkg:")
    e("s_lshl_b32 s93, s93, 3"); e("s_or_b32 s93, s93, s92")
    e("v_mov_b32 v2, s93")
    e("ds_write_b32 v4, v2")
    e("s_waitcnt lgkmcnt(0)")
    e("s_mov_b64 exec, -1")
    e(f"{P}_tkw:")
    e("s_barrier")
    e("ds_read_b32 v2, v4")
    e("s_waitcnt lgkmcnt(0)")
    e("v_readfirstlane_b32 s2, v2")
    e("s_cmp_ge_u32 s2, 256"); e(f"s_cbranch_scc1 {end}")

def bf16_round(e, dst, src):
    e(f"v_cvt_pk_bf16_f32 {v(dst)}, {v(src)}, {v(src)}")
    e(f"v_lshlrev_b32 {v(dst)}, 16, {v(dst)}")

XST = 16384
WST = 32768
LX0 = 0
LW0 = 49152
LSP = 147456

S_X, S_W, S_WS, S_T = 4, 8, 12, 16
S_WAVE, S_RB, S_CB = 20, 21, 22
S_STRIDE = 23
S_WC = 24
S_XOFF = 32
S_RDW, S_RDX = 33, 34
S_DMW, S_DMX = 35, 36
S_CNT = 37
S_WADV = 38
S_T0, S_T1, S_T2, S_T3 = 40, 41, 42, 43
S_MASK = 44
V_LANE = 1
V_WD = 2
V_XD = 6
V_TR = 10
V_XR = 14
V_TRC = 18
V_XRC = 22
V_SUM = 26
V_SQ = 28
V_CS = 30
V_ONE = 32
V_T = 34
V_FA = 48
V_FX = 80
V_ACC = 128

def genA(e, opt):
    e(".globl ka_kernel"); e(".p2align 8"); e(".type ka_kernel,@function"); e("ka_kernel:")
    e("s_cmp_ge_u32 s2, 256"); e("s_cbranch_scc1 LA_end")
    if opt.get('stamp'):
        e("s_memrealtime s[90:91]")
    if opt.get('tka'): ticket(e, "LA", "LA_end", LSP)
    e(f"s_load_dwordx2 {s(S_X,2)}, s[0:1], 0")
    e(f"s_load_dwordx2 {s(S_WS,2)}, s[0:1], 80")
    e(f"v_lshrrev_b32 {v(V_T)}, 6, v0")
    e(f"v_and_b32 {v(V_LANE)}, 63, v0")
    e(f"v_readfirstlane_b32 {s(S_WAVE)}, {v(V_T)}")
    e(f"s_and_b32 {s(S_T0)}, s2, 7"); e(f"s_lshr_b32 {s(S_T1)}, s2, 3")
    e(f"s_and_b32 {s(S_RB)}, {s(S_T0)}, 1"); e(f"s_lshl_b32 {s(S_RB)}, {s(S_RB)}, 3")
    e(f"s_and_b32 {s(S_T2)}, {s(S_T1)}, 7"); e(f"s_add_u32 {s(S_RB)}, {s(S_RB)}, {s(S_T2)}")
    e(f"s_lshr_b32 {s(S_CB)}, {s(S_T0)}, 1"); e(f"s_lshl_b32 {s(S_CB)}, {s(S_CB)}, 2")
    e(f"s_lshr_b32 {s(S_T2)}, {s(S_T1)}, 3"); e(f"s_add_u32 {s(S_CB)}, {s(S_CB)}, {s(S_T2)}")
    e(f"s_mov_b32 {s(S_X+2)}, 0x400000"); e(f"s_mov_b32 {s(S_X+3)}, 0x00020000")
    e(f"s_mov_b32 {s(S_WS+2)}, 0x10000000"); e(f"s_mov_b32 {s(S_WS+3)}, 0x00020000")
    e(f"s_mov_b32 {s(S_W+3)}, 0x00020000")
    e(f"s_cmp_ge_u32 {s(S_CB)}, 14"); e("s_cbranch_scc1 LA_dft")
    genA_path(e, opt, dft=False)
    e("LA_dft:")
    genA_path(e, opt, dft=True)
    e("LA_end:"); e("s_endpgm")

def genA_path(e, opt, dft):
    P = "LAd" if dft else "LAw"
    L = V_LANE; T = V_T
    if not dft:
        e(f"s_load_dwordx2 {s(S_W,2)}, s[0:1], 48")
        e(f"s_mov_b32 {s(S_W+2)}, {1024*3584*2}")
        stride = 7168
    else:
        e(f"s_lshl_b32 {s(S_T0)}, {s(S_CB)}, 3"); e(f"s_sub_u32 {s(S_T0)}, {s(S_T0)}, {14*8-24}")
        e(f"s_load_dwordx2 {s(S_W,2)}, s[0:1], {s(S_T0)}")
        e(f"s_mov_b32 {s(S_W+2)}, {1024*1024*2}")
        stride = 2048
    for i in range(8):
        e(f"s_mov_b32 {s(S_WC+i)}, {i*2*stride}")
    e(f"v_lshrrev_b32 {v(T)}, 5, {v(L)}")
    e(f"s_lshl_b32 {s(S_T0)}, {s(S_WAVE)}, 4")
    e(f"v_add_u32 {v(T+1)}, {s(S_T0)}, {v(T)}")
    e(f"v_mul_u32_u24 {v(T+1)}, {stride}, {v(T+1)}")
    if not dft:
        e(f"s_lshl_b32 {s(S_T0)}, {s(S_CB)}, 9")
        e(f"v_add_u32 {v(T+1)}, {s(S_T0)}, {v(T+1)}")
    e(f"v_and_b32 {v(T+2)}, 3, {v(L)}"); e(f"v_lshl_add_u32 {v(T+1)}, {v(T+2)}, 4, {v(T+1)}")
    e(f"v_bfe_u32 {v(T+2)}, {v(L)}, 2, 3")
    for i in range(4):
        if not dft:
            e(f"v_add_u32 {v(T+3)}, {(2*i)%4}, {v(T)}")
            e(f"v_xor_b32 {v(T+3)}, {v(T+3)}, {v(T+2)}")
        else:
            e(f"v_xor_b32 {v(T+3)}, {i}, {v(T+2)}")
        e(f"v_lshl_add_u32 {v(V_WD+i)}, {v(T+3)}, 6, {v(T+1)}")
    for i in range(4):
        e(f"v_lshrrev_b32 {v(T)}, 3, {v(L)}")
        if dft: rowmap_dft(e, i, T, T+1, T+2)
        e(f"v_add_u32 {v(T)}, {8*i}, {v(T)}")
        if not dft: rowmap(e, dft, T, T+1, T+2)
        e(f"v_lshrrev_b32 {v(T+2)}, 1, {v(T)}"); e(f"v_xor_b32 {v(T+2)}, {v(T+2)}, {v(L)}"); e(f"v_and_b32 {v(T+2)}, 7, {v(T+2)}")
        e(f"v_lshlrev_b32 {v(T+2)}, 4, {v(T+2)}")
        e(f"v_lshl_add_u32 {v(V_XD+i)}, {v(T+1)}, 11, {v(T+2)}")
    e(f"s_lshl_b32 {s(S_T0)}, {s(S_WAVE)}, 13"); e(f"s_add_u32 {s(S_DMW)}, {s(S_T0)}, {LW0}")
    e(f"s_lshl_b32 {s(S_DMX)}, {s(S_WAVE)}, 12")
    e(f"s_mov_b32 {s(S_XOFF)}, 0")
    e(f"s_mov_b32 {s(S_WADV)}, {64*stride}")
    e("s_waitcnt lgkmcnt(0)")
    for c in range(2):
        for ins in dma_list(c % 3 if False else None):
            e(ins)
        for ins in dma_advance(): e(ins)
    e(f"v_bfe_u32 {v(T)}, {v(L)}, 2, 2")
    e(f"v_lshrrev_b32 {v(T+1)}, 5, {v(L)}")
    if not dft:
        e(f"v_lshl_add_u32 {v(T+2)}, {v(T+1)}, 3, {v(T)}")
    else:
        e(f"v_lshlrev_b32 {v(T+2)}, 1, {v(T)}"); e(f"v_lshl_add_u32 {v(T+2)}, {v(T+1)}, 4, {v(T+2)}")
    e(f"v_lshlrev_b32 {v(T+2)}, 9, {v(T+2)}")
    e(f"v_bfe_u32 {v(T+3)}, {v(L)}, 4, 1"); e(f"v_lshl_add_u32 {v(T+2)}, {v(T+3)}, 5, {v(T+2)}")
    e(f"v_and_b32 {v(T+3)}, 3, {v(L)}"); e(f"v_lshl_add_u32 {v(T+2)}, {v(T+3)}, 3, {v(T+2)}")
    e(f"v_add_u32 {v(T+2)}, {LW0}, {v(T+2)}")
    if not dft:
        e(f"v_xor_b32 {v(T)}, {s(S_WAVE)}, {v(T)}")
    for n in range(4):
        e(f"v_xor_b32 {v(T+3)}, {n}, {v(T)}")
        e(f"v_lshl_add_u32 {v(V_TR+n)}, {v(T+3)}, 6, {v(T+2)}")
    e(f"v_and_b32 {v(T)}, 31, {v(L)}")
    e(f"v_lshlrev_b32 {v(T+2)}, 7, {v(T)}"); e(f"s_lshl_b32 {s(S_T0)}, {s(S_WAVE)}, 12"); e(f"v_add_u32 {v(T+2)}, {s(S_T0)}, {v(T+2)}")
    e(f"v_bfe_u32 {v(T)}, {v(L)}, 1, 3")
    for k in range(4):
        if not dft:
            e(f"v_add_u32 {v(T+3)}, {2*k}, {v(T+1)}")
        else:
            e(f"v_lshlrev_b32 {v(T+3)}, 1, {v(T+1)}"); e(f"v_add_u32 {v(T+3)}, {4*(k//2) + k%2}, {v(T+3)}")
        e(f"v_xor_b32 {v(T+3)}, {v(T+3)}, {v(T)}")
        e(f"v_lshl_add_u32 {v(V_XR+k)}, {v(T+3)}, 4, {v(T+2)}")
    for r in (V_SUM, V_SUM+1, V_SQ, V_SQ+1, V_CS, V_CS+1):
        e(f"v_mov_b32 {v(r)}, 0")
    e(f"v_mov_b32 {v(V_ONE)}, 0x3f803f80")
    if dft:
        e(f"s_cmp_eq_u32 {s(S_CB)}, 15"); e(f"s_cselect_b32 {s(S_MASK)}, 1, 0"); e(f"s_mov_b32 {s(S_MASK+1)}, {s(S_MASK)}")
        e(f"v_mov_b32 {v(V_T+10)}, 0xbf803f80"); e(f"v_mov_b32 {v(V_T+11)}, 0x3f80bf80")
        e(f"v_mov_b32 {v(V_T+12)}, 0x05040100"); e(f"v_mov_b32 {v(V_T+13)}, 0x07060302")
    for r in range(128):
        e(f"v_mov_b32 {v(V_ACC+r)}, 0")
    if dft:
        for r in range(128):
            e(f"v_accvgpr_write_b32 {a_(r)}, 0")
    e(f"s_mov_b32 {s(S_RDW)}, 0"); e(f"s_mov_b32 {s(S_RDX)}, 0")
    if opt.get('pack', True):
        pack_job(e, opt)
    body(e, opt, dft, first=True, dma=True, vm=13)
    e(f"s_mov_b32 {s(S_CNT)}, 13")
    e(".p2align 3")
    e(f"{P}_loop:")
    body(e, opt, dft, first=False, dma=True)
    e(f"s_sub_u32 {s(S_CNT)}, {s(S_CNT)}, 1"); e(f"s_cmp_lg_u32 {s(S_CNT)}, 0"); e(f"s_cbranch_scc1 {P}_loop")
    body(e, opt, dft, first=False, dma=False, vm=12)
    body(e, opt, dft, first=False, dma=False, vm=0, pf=opt.get('pf', 0))
    tail(e, opt, dft)
    if dft: epilogue_dft(e, opt)
    else: epilogue_w1(e, opt)
    if opt.get('stamp'):
        e("s_waitcnt vmcnt(0)")
        e("s_memrealtime s[92:93]")
        e("s_load_dwordx2 s[96:97], s[0:1], 64")
        e("s_mov_b32 s98, 0x400000"); e("s_mov_b32 s99, 0x00020000")
        e("s_waitcnt lgkmcnt(0)")
        e("v_mov_b32 v2, s90"); e("v_mov_b32 v3, s92"); e("v_mov_b32 v4, s88"); e("v_mov_b32 v5, s86")
        e("s_lshl_b32 s3, s2, 4"); e("v_mov_b32 v6, s3"); e("s_sub_u32 s82, s82, s84"); e("v_mov_b32 v7, s82")
        e("v_cmp_eq_u32 vcc, 0, v0"); e("s_and_saveexec_b64 s[94:95], vcc"); e("s_cbranch_execz LA_end")
        e("buffer_store_dwordx4 v[2:5], v6, s[96:99], 0 offen")
        e("s_mov_b32 s3, 4096"); e("buffer_store_dword v7, v6, s[96:99], s3 offen")
    e("s_endpgm")

def rowmap(e, dft, vslot, vrow, vtmp):
    if not dft:
        e(f"s_lshr_b32 {s(S_T0)}, {s(S_RB)}, 1"); e(f"s_lshl_b32 {s(S_T0)}, {s(S_T0)}, 6")
        e(f"s_and_b32 {s(S_T1)}, {s(S_RB)}, 1"); e(f"s_add_u32 {s(S_T0)}, {s(S_T0)}, {s(S_T1)}")
        e(f"v_lshl_add_u32 {v(vtmp)}, {v(vslot)}, 1, {s(S_T0)}")
        e(f"s_add_u32 {s(S_T1)}, {s(S_WAVE)}, 1"); e(f"s_lshr_b32 {s(S_T1)}, {s(S_T1)}, 1"); e(f"s_lshl_b32 {s(S_T1)}, {s(S_T1)}, 10")
        e(f"s_and_b32 {s(S_T2)}, {s(S_WAVE)}, 1"); e(f"s_cmp_eq_u32 {s(S_T2)}, 1"); e(f"s_cselect_b32 {s(S_T2)}, -1, 1")
        e(f"v_mul_lo_u32 {v(vrow)}, {v(vtmp)}, {s(S_T2)}")
        e(f"v_add_u32 {v(vrow)}, {s(S_T1)}, {v(vrow)}")
        e(f"s_cmp_ge_u32 {s(S_WAVE)}, 2"); e(f"s_cselect_b32 {s(S_T2)}, 512, 0"); e(f"s_sub_u32 {s(S_T2)}, {s(S_T1)}, {s(S_T2)}")
        e(f"v_cmp_eq_u32 vcc, 0, {v(vtmp)}")
        e(f"v_mov_b32 {v(vtmp)}, {s(S_T2)}")
        e("s_nop 0")
        e(f"v_cndmask_b32 {v(vrow)}, {v(vrow)}, {v(vtmp)}, vcc")
    else:
        raise Exception("use rowmap_dft")

def rowmap_dft(e, img, vsig, vrow, vtmp):
    e(f"s_lshl_b32 {s(S_T0)}, {s(S_RB)}, 5"); e(f"s_add_u32 {s(S_T0)}, {s(S_T0)}, {s(S_WAVE)}")
    e(f"v_lshl_add_u32 {v(vrow)}, {v(vsig)}, 2, {s(S_T0)}")
    if img == 0: return
    if img == 2:
        e(f"v_sub_u32 {v(vrow)}, 1024, {v(vrow)}"); return
    e(f"v_cmp_eq_u32 vcc, 0, {v(vrow)}")
    if img == 1:
        e(f"v_sub_u32 {v(vrow)}, 2048, {v(vrow)}"); e(f"v_mov_b32 {v(vtmp)}, 512")
    else:
        e(f"v_add_u32 {v(vrow)}, 1024, {v(vrow)}"); e(f"v_mov_b32 {v(vtmp)}, 1536")
    e(f"v_cndmask_b32 {v(vrow)}, {v(vrow)}, {v(vtmp)}, vcc")

def dma_list(_):
    out = []
    for i in range(4):
        out.append(f"s_add_u32 m0, {s(S_DMX)}, {i*1024}\ns_nop 0\nbuffer_load_dwordx4 {v(V_XD+i)}, {s(S_X,4)}, {s(S_XOFF)} offen lds")
    for i in range(8):
        out.append(f"s_add_u32 m0, {s(S_DMW)}, {i*1024}\ns_nop 0\nbuffer_load_dwordx4 {v(V_WD+i%4)}, {s(S_W,4)}, {s(S_WC+i)} offen lds")
    return out

def dma_advance():
    out = []
    for i in range(4):
        out.append(f"v_add_u32 {v(V_WD+i)}, {s(S_WADV)}, {v(V_WD+i)}")
    out.append(f"s_add_u32 {s(S_XOFF)}, {s(S_XOFF)}, 128")
    out.append(f"s_add_u32 {s(S_DMW)}, {s(S_DMW)}, {WST}\ns_cmp_ge_u32 {s(S_DMW)}, {LW0+3*WST}\ns_cselect_b32 {s(S_T0)}, {3*WST}, 0\ns_sub_u32 {s(S_DMW)}, {s(S_DMW)}, {s(S_T0)}")
    out.append(f"s_add_u32 {s(S_DMX)}, {s(S_DMX)}, {XST}\ns_cmp_ge_u32 {s(S_DMX)}, {3*XST}\ns_cselect_b32 {s(S_T0)}, {3*XST}, 0\ns_sub_u32 {s(S_DMX)}, {s(S_DMX)}, {s(S_T0)}")
    return out

def tr_reads(dft, n, ks):
    if not dft:
        off = ks*8192 + (n//4)*256
        jo = 2048
    else:
        m, par = ks//2, ks%2
        off = (32*m + par)*512 + (n//4)*256
        jo = 8*512
    return [f"ds_read_b64_tr_b16 {v(V_FA+4*n,2)}, {v(V_TRC+n%4)} offset:{off}",
            f"ds_read_b64_tr_b16 {v(V_FA+4*n+2,2)}, {v(V_TRC+n%4)} offset:{off+jo}"]

M16 = [0]
def mfma(dft, n, ks):
    if not dft:
        fx = V_FX + 4*(ks%2)
        acc = v(V_ACC+16*n, 16)
        if M16[0]:
            a0 = v(V_ACC+16*n+8*(ks%2), 4); a1 = v(V_ACC+16*n+8*(ks%2)+4, 4)
            fx2 = V_FX + 4*((ks+1)%2) if False else fx
            return f"v_mfma_f32_16x16x32_bf16 {a0}, {v(V_FA+4*n,4)}, {v(fx,4)}, {a0}\nv_mfma_f32_16x16x32_bf16 {a1}, {v(V_FA+4*(n^1),4)}, {v(fx2,4)}, {a1}"
        return f"v_mfma_f32_32x32x16_bf16 {acc}, {v(V_FA+4*n,4)}, {v(fx,4)}, {acc}"
    else:
        fx = 96 + 8*((ks//2)%2) + 4*(ks%2)
        acc = v(V_ACC+16*n, 16) if ks%2 == 0 else a_(16*n, 16)
        return f"v_mfma_f32_32x32x16_bf16 {acc}, {v(fx,4)}, {v(V_FA+4*n,4)}, {acc}"

def stats_ops(opt, reg):
    out = []
    if not opt.get('stats', True): return out
    for d in range(4):
        out.append(f"v_dot2c_f32_bf16 {v(V_SUM+d%2)}, {v(reg+d)}, {v(V_ONE)}")
        out.append(f"v_dot2c_f32_bf16 {v(V_SQ+d%2)}, {v(reg+d)}, {v(reg+d)}")
    return out

def kstep(e, opt, dft, ks_mfma, ks_read, extra, do_mfma=True):
    gaps = [[] for _ in range(8)]
    pre = []
    if ks_read is not None:
        if not dft:
            gaps[0].append(f"ds_read_b128 {v(V_FX+4*(ks_read%2),4)}, {v(V_XRC+ks_read)}")
        else:
            if ks_read % 2 == 1:
                pass
        for n in range(8):
            gaps[n] += tr_reads(dft, n, ks_read)
    for g, ins in extra:
        gaps[g].append(ins)
    for n in range(8):
        if do_mfma:
            if n % 2 == 0:
                e(f"s_waitcnt lgkmcnt({opt['_lg'](n)})")
            for ins in opt['_premfma'](n): e(ins)
            if not opt.get('nomfma'): e(mfma(dft, n, ks_mfma))
        for ins in gaps[n]:
            if opt.get('nodma') and 'lds' in ins: continue
            if opt.get('nords') and ins.startswith('ds_read'): continue
            if opt.get('halfrds') and ins.startswith('ds_read') and n % 2: continue
            e(ins)

def prefetch_w2(e, mode):
    R = 120
    e(f"s_load_dwordx2 {s(S_T,2)}, s[0:1], 56")
    e(f"s_mov_b32 {s(S_T+2)}, {3584*1024*2}"); e(f"s_mov_b32 {s(S_T+3)}, 0x00020000")
    e(f"v_lshlrev_b32 {v(R)}, 7, {v(V_LANE)}")
    if mode == 1:
        e(f"s_lshl_b32 {s(S_T0)}, s2, 2"); e(f"s_add_u32 {s(S_T0)}, {s(S_T0)}, {s(S_WAVE)}"); e(f"s_lshl_b32 {s(S_T0)}, {s(S_T0)}, 13")
        e(f"v_add_u32 {v(R)}, {s(S_T0)}, {v(R)}")
        e("s_waitcnt lgkmcnt(0)")
        e(f"buffer_load_dword a200, {v(R)}, {s(S_T,4)}, 0 offen")
    else:
        e(f"s_lshr_b32 {s(S_T0)}, s2, 3"); e(f"s_lshl_b32 {s(S_T0)}, {s(S_T0)}, 2"); e(f"s_add_u32 {s(S_T0)}, {s(S_T0)}, {s(S_WAVE)}")
        e(f"s_mul_i32 {s(S_T0)}, {s(S_T0)}, {224*128}")
        e(f"s_and_b32 {s(S_T1)}, s2, 1"); e(f"s_mul_i32 {s(S_T1)}, {s(S_T1)}, {1792*2048}"); e(f"s_add_u32 {s(S_T0)}, {s(S_T0)}, {s(S_T1)}")
        e(f"v_add_u32 {v(R)}, {s(S_T0)}, {v(R)}")
        e("s_waitcnt lgkmcnt(0)")
        for i in range(4):
            e(f"s_mov_b32 {s(S_T1)}, {min(i*64, 160)*128}")
            e(f"buffer_load_dword a{200+i}, {v(R)}, {s(S_T,4)}, {s(S_T1)} offen")

def body(e, opt, dft, first, dma, vm=12, pf=0):
    e(f"s_waitcnt vmcnt({vm})")
    if not opt.get('nobar'): e("s_barrier")
    if pf: prefetch_w2(e, pf)
    if first and opt.get('stamp'):
        e("s_memrealtime s[88:89]"); e("s_memtime s[84:85]")
    for n in range(4):
        e(f"v_add_u32 {v(V_TRC+n)}, {s(S_RDW)}, {v(V_TR+n)}")
    for n in range(4):
        e(f"v_add_u32 {v(V_XRC+n)}, {s(S_RDX)}, {v(V_XR+n)}")
    dl = dma_list(None) if dma else []
    adv = dma_advance() if dma else []
    rdadv = [f"s_add_u32 {s(S_RDW)}, {s(S_RDW)}, {WST}\ns_cmp_ge_u32 {s(S_RDW)}, {3*WST}\ns_cselect_b32 {s(S_RDW)}, 0, {s(S_RDW)}",
             f"s_add_u32 {s(S_RDX)}, {s(S_RDX)}, {XST}\ns_cmp_ge_u32 {s(S_RDX)}, {3*XST}\ns_cselect_b32 {s(S_RDX)}, 0, {s(S_RDX)}"]
    if not dft:
        for step in range(4):
            ks_m = (step + 3) % 4
            ks_r = step
            extra = []
            for q, g in enumerate(opt.get('dmagaps', (1, 4, 6))):
                idx = step*3 + q
                if idx < len(dl): extra.append((g, dl[idx]))
            if step == 3:
                for q, ins in enumerate(adv): extra.append((7, ins))
                for ins in rdadv: extra.append((7, ins))
            do = not (first and step == 0)
            if do:
                st = stats_ops(opt, V_FX + 4*(ks_m%2))
                for q, ins in enumerate(st): extra.append(((2,3,5,7)[q//2], ins))
            def premfma(n, do=do):
                if opt.get('colsum', True) and n in (0, 4):
                    return [f"v_dot2c_f32_bf16 {v(V_CS+n//4)}, {v(V_FA+4*n+d)}, {v(V_ONE)}" for d in range(4)]
                return []
            opt['_premfma'] = premfma
            opt['_lg'] = lambda n: 12 + (1 if n > 0 else 0)
            kstep(e, opt, dft, ks_m, ks_r, extra, do_mfma=do)
    else:
        for step in range(4):
            ks_m = (step + 3) % 4
            ks_r = step
            extra = []
            nx = 0
            if step == 0:
                pass
            for q, g in enumerate(opt.get('dmagaps', (1, 4, 6))):
                idx = step*3 + q
                if idx < len(dl): extra.append((g, dl[idx]))
            if step == 3:
                for q, ins in enumerate(adv): extra.append((7, ins))
                for ins in rdadv: extra.append((7, ins))
            do = not (first and step == 0)
            if step == 0:
                for k in range(4):
                    e(f"ds_read_b128 {v(80+4*k,4)}, {v(V_XRC+k)}")
                extra.append((4, "s_waitcnt lgkmcnt(10)"))
                pm = perms(0)
                for q, ins in enumerate(pm): extra.append((4 + q//3, ins))
            if step == 1:
                pm = perms(1)
                for q, ins in enumerate(pm): extra.append((q//2, ins))
                st = stats_ops(opt, 80)
                for q, ins in enumerate(st): extra.append((4 + q//2, ins))
            if step == 2:
                st = stats_ops(opt, 84) + stats_ops(opt, 88)
                for q, ins in enumerate(st): extra.append((q//2, ins))
            if step == 3:
                st = stats_ops(opt, 92)
                for q, ins in enumerate(st): extra.append((q//2, ins))
            def premfma(n, ks_m=ks_m):
                if n == 0:
                    cst = V_T+10 if ks_m%2 == 0 else V_T+11
                    return [f"v_cndmask_b32 {v(V_FA+d)}, {v(V_FA+d)}, {v(cst)}, {s(S_MASK,2)}" for d in range(4)] + ["s_nop 1"]
                return []
            opt['_premfma'] = premfma
            if step == 0:
                opt['_lg'] = lambda n: min(15, 12 + 4)
            else:
                opt['_lg'] = lambda n: 12
            kstep(e, opt, dft, ks_m, ks_r, extra, do_mfma=do)

def perms(m):
    raw = 80 + 8*m; fe = 96 + 8*m; fo = fe + 4
    out = []
    for d in range(4):
        out.append(f"v_perm_b32 {v(fe+d)}, {v(raw+2*d+1)}, {v(raw+2*d)}, {v(V_T+12)}")
    for d in range(4):
        out.append(f"v_perm_b32 {v(fo+d)}, {v(raw+2*d+1)}, {v(raw+2*d)}, {v(V_T+13)}")
    return out

def tail(e, opt, dft):
    extra = []
    if not dft:
        st = stats_ops(opt, V_FX + 4)
        for q, ins in enumerate(st): extra.append(((2,3,5,7)[q//2], ins))
        def premfma(n):
            if opt.get('colsum', True) and n in (0, 4):
                return [f"v_dot2c_f32_bf16 {v(V_CS+n//4)}, {v(V_FA+4*n+d)}, {v(V_ONE)}" for d in range(4)]
            return []
    else:
        def premfma(n):
            if n == 0:
                return [f"v_cndmask_b32 {v(V_FA+d)}, {v(V_FA+d)}, {v(V_T+11)}, {s(S_MASK,2)}" for d in range(4)] + ["s_nop 1"]
            return []
    opt['_premfma'] = premfma
    opt['_lg'] = lambda n: max(0, 12 - 2*n)
    kstep(e, opt, dft, 3, None, extra)
    if opt.get('stamp'):
        e("s_memrealtime s[86:87]"); e("s_memtime s[82:83]")

def row_stats(e, T):
    e("s_nop 2")
    e(f"v_add_f32 {v(V_SUM)}, {v(V_SUM)}, {v(V_SUM+1)}")
    e(f"v_add_f32 {v(V_SQ)}, {v(V_SQ)}, {v(V_SQ+1)}")
    e(f"v_mov_b32 {v(V_SUM+1)}, {v(V_SUM)}"); e(f"v_mov_b32 {v(V_SQ+1)}, {v(V_SQ)}")
    e("s_nop 1")
    e(f"v_permlane32_swap_b32 {v(V_SUM)}, {v(V_SUM+1)}")
    e(f"v_permlane32_swap_b32 {v(V_SQ)}, {v(V_SQ+1)}")
    e("s_nop 1")
    e(f"v_add_f32 {v(V_SUM)}, {v(V_SUM)}, {v(V_SUM+1)}")
    e(f"v_add_f32 {v(V_SQ)}, {v(V_SQ)}, {v(V_SQ+1)}")
    e(f"v_mul_f32 {v(V_SUM)}, 0x3a800000, {v(V_SUM)}")
    e(f"v_mul_f32 {v(V_SQ)}, 0x3a800000, {v(V_SQ)}")
    e(f"v_fma_f32 {v(V_SQ)}, -{v(V_SUM)}, {v(V_SUM)}, {v(V_SQ)}")
    bf16_round(e, V_SUM, V_SUM)
    bf16_round(e, V_SQ, V_SQ)
    e(f"v_add_f32 {v(V_SQ)}, 0x3727c5ac, {v(V_SQ)}")
    bf16_round(e, V_SQ, V_SQ)
    e(f"v_sqrt_f32 {v(V_SQ)}, {v(V_SQ)}")
    e("s_nop 0")
    bf16_round(e, V_SQ, V_SQ)
    e(f"v_rcp_f32 {v(T)}, {v(V_SQ)}")
    e("s_nop 0")
    e(f"v_mul_f32 {v(T+1)}, {v(V_SUM)}, {v(T)}")

def epilogue_w1(e, opt):
    T = V_T; L = V_LANE
    row_stats(e, T)
    e(f"v_mov_b32 {v(T+2)}, {v(V_CS)}"); e(f"v_mov_b32 {v(T+3)}, {v(V_CS+1)}")
    e("s_nop 1")
    e(f"v_permlane32_swap_b32 {v(V_CS)}, {v(T+2)}")
    e(f"v_permlane32_swap_b32 {v(V_CS+1)}, {v(T+3)}")
    e("s_nop 1")
    e(f"v_add_f32 {v(V_CS)}, {v(V_CS)}, {v(T+2)}")
    e(f"v_add_f32 {v(V_CS+1)}, {v(V_CS+1)}, {v(T+3)}")
    e(f"v_and_b32 {v(T+2)}, 31, {v(L)}"); e(f"v_lshlrev_b32 {v(T+2)}, 2, {v(T+2)}")
    e(f"s_lshl_b32 {s(S_T0)}, {s(S_WAVE)}, 7"); e(f"s_add_u32 {s(S_T0)}, {s(S_T0)}, {LSP}")
    e(f"v_add_u32 {v(T+2)}, {s(S_T0)}, {v(T+2)}")
    e(f"ds_write_b32 {v(T+2)}, {v(V_CS)}")
    e(f"ds_write_b32 {v(T+2)}, {v(V_CS+1)} offset:512")
    e(f"v_lshrrev_b32 {v(T+2)}, 5, {v(L)}"); e(f"v_lshlrev_b32 {v(T+2)}, 4, {v(T+2)}")
    for n in range(4):
        e(f"s_xor_b32 {s(S_T0)}, {s(S_WAVE)}, {n}"); e(f"s_lshl_b32 {s(S_T0)}, {s(S_T0)}, 7"); e(f"s_add_u32 {s(S_T0)}, {s(S_T0)}, {LSP}")
        e(f"v_add_u32 {v(V_TRC+n)}, {s(S_T0)}, {v(T+2)}")
    e(f"s_lshl_b32 {s(S_T0)}, {s(S_RB)}, 2"); e(f"s_add_u32 {s(S_T0)}, {s(S_T0)}, {s(S_WAVE)}"); e(f"s_mul_i32 {s(S_T0)}, {s(S_T0)}, 224")
    e(f"s_lshl_b32 {s(S_T1)}, {s(S_CB)}, 4"); e(f"s_add_u32 {s(S_T0)}, {s(S_T0)}, {s(S_T1)}"); e(f"s_lshl_b32 {s(S_T0)}, {s(S_T0)}, 10")
    e(f"v_lshlrev_b32 {v(T+4)}, 4, {v(L)}"); e(f"v_add_u32 {v(T+4)}, {s(S_T0)}, {v(T+4)}")
    for n in range(4):
        e(f"s_xor_b32 {s(S_WC+n)}, {s(S_WAVE)}, {n}"); e(f"s_lshl_b32 {s(S_WC+n)}, {s(S_WC+n)}, 11")
        e(f"s_add_u32 {s(S_WC+4+n)}, {s(S_WC+n)}, 8192")
    e(f"v_sub_f32 {v(T+1)}, 0, {v(T+1)}")
    e("s_waitcnt lgkmcnt(0)")
    e("s_barrier")
    CS = 48
    RS2 = 112; MR2 = 114
    e(f"v_mov_b32 {v(RS2)}, {v(T)}"); e(f"v_mov_b32 {v(RS2+1)}, {v(T)}")
    e(f"v_mov_b32 {v(MR2)}, {v(T+1)}"); e(f"v_mov_b32 {v(MR2+1)}, {v(T+1)}")
    for half in range(2):
        for n4 in range(4):
            for q in range(4):
                e(f"ds_read_b128 {v(CS+16*n4+4*q,4)}, {v(V_TRC+n4)} offset:{half*512 + q*32}")
        for n4 in range(4):
            n = half*4 + n4
            e(f"s_waitcnt lgkmcnt({12-4*n4})")
            acc = V_ACC + 16*n
            c = CS + 16*n4
            for r in range(0, 16, 2):
                e(f"v_pk_mul_f32 {v(acc+r,2)}, {v(acc+r,2)}, {v(RS2,2)}")
                e(f"v_pk_fma_f32 {v(acc+r,2)}, {v(c+r,2)}, {v(MR2,2)}, {v(acc+r,2)}")
            for r in range(0, 16, 2):
                e(f"v_cvt_pk_bf16_f32 {v(acc+r//2)}, {v(acc+r)}, {v(acc+r+1)}")
            for r in range(8):
                e(f"v_pk_max_i16 {v(acc+r)}, {v(acc+r)}, 0")
            e(f"buffer_store_dwordx4 {v(acc,4)}, {v(T+4)}, {s(S_WS,4)}, {s(S_WC+n)} offen")
            e(f"buffer_store_dwordx4 {v(acc+4,4)}, {v(T+4)}, {s(S_WS,4)}, {s(S_WC+n)} offen offset:1024")

def epilogue_dft(e, opt):
    T = V_T; L = V_LANE
    row_stats(e, T)
    e(f"s_lshl_b32 {s(S_T0)}, {s(S_RB)}, 2"); e(f"s_add_u32 {s(S_T3)}, {s(S_T0)}, {s(S_WAVE)}")
    e(f"s_cmp_eq_u32 {s(S_T3)}, 0")
    e(f"s_cselect_b32 s46, 0x01000100, 0"); e("s_mov_b32 s47, s46")
    e(f"s_cselect_b32 s48, 0x00010001, 0"); e("s_mov_b32 s49, s48")
    e("s_mov_b32 s50, 0x00ffff00"); e("s_mov_b32 s51, s50")
    e(f"v_mov_b32 {v(T+2)}, 0"); e(f"v_sub_f32 {v(T+3)}, 0, {v(T)}")
    e(f"v_cndmask_b32 {v(T+4)}, {v(T)}, {v(T+2)}, s[46:47]")
    e(f"v_cndmask_b32 {v(T+5)}, {v(T)}, {v(T+3)}, s[50:51]")
    e(f"v_cndmask_b32 {v(T+5)}, {v(T+5)}, {v(T)}, s[46:47]")
    e(f"v_cndmask_b32 {v(T+5)}, {v(T+5)}, {v(T+2)}, s[48:49]")
    e(f"s_cmp_eq_u32 {s(S_CB)}, 15"); e("s_cselect_b64 s[50:51], -1, 0")
    e(f"v_cndmask_b32 {v(T+5)}, {v(T+4)}, {v(T+5)}, s[50:51]")
    e(f"v_and_b32 {v(T+2)}, 31, {v(L)}"); e(f"v_lshlrev_b32 {v(T+2)}, 2, {v(T+2)}")
    e(f"s_lshl_b32 {s(S_T0)}, {s(S_WAVE)}, 9"); e(f"s_add_u32 {s(S_T0)}, {s(S_T0)}, {LSP}")
    e(f"v_add_u32 {v(T+2)}, {s(S_T0)}, {v(T+2)}")
    e(f"ds_write_b32 {v(T+2)}, {v(T+5)}")
    e(f"ds_write_b32 {v(T+2)}, {v(T+4)} offset:128")
    e(f"ds_write_b32 {v(T+2)}, {v(V_SUM)} offset:256")
    e(f"ds_write_b32 {v(T+2)}, {v(T)} offset:384")
    e(f"v_lshrrev_b32 {v(T+2)}, 5, {v(L)}"); e(f"v_lshlrev_b32 {v(T+2)}, 4, {v(T+2)}"); e(f"v_add_u32 {v(T+2)}, {s(S_T0)}, {v(T+2)}")
    RHO = 48; RHOE = 64; M = 112
    e("s_waitcnt lgkmcnt(0)")
    for q in range(4):
        e(f"ds_read_b128 {v(RHO+4*q,4)}, {v(T+2)} offset:{q*32}")
    for q in range(4):
        e(f"ds_read_b128 {v(RHOE+4*q,4)}, {v(T+2)} offset:{128+q*32}")
    for q in range(4):
        e(f"ds_read_b128 {v(M+4*q,4)}, {v(T+2)} offset:{256+q*32}")
    e(f"ds_read_b32 {v(T+6)}, {v(T+2)} offset:{384+32}")
    e(f"ds_read_b32 {v(T+7)}, {v(T+2)} offset:{384+96}")
    e(f"s_sub_u32 {s(S_T0)}, {s(S_CB)}, 14"); e(f"s_mul_i32 {s(S_T0)}, {s(S_T0)}, {AE_MAT}")
    e(f"s_mul_i32 {s(S_T1)}, {s(S_WAVE)}, {AE_C}"); e(f"s_add_u32 {s(S_T0)}, {s(S_T0)}, {s(S_T1)}")
    e(f"s_lshl_b32 {s(S_T1)}, {s(S_RB)}, 9"); e(f"s_add_u32 {s(S_T0)}, {s(S_T0)}, {s(S_T1)}"); e(f"s_add_u32 {s(S_T0)}, {s(S_T0)}, {WS_AE}")
    A1 = 80; A2 = 81; A1s = 82; A2s = 83; C1 = 84; KM = 86; DG = 87
    e(f"v_lshrrev_b32 {v(T+4)}, 5, {v(L)}")
    e(f"v_mul_u32_u24 {v(T+5)}, {AE_PAR}, {v(T+4)}"); e(f"v_add_u32 {v(T+5)}, {s(S_T0)}, {v(T+5)}")
    e(f"v_mul_i32_i24 {v(DG)}, {512-AE_PAR}, {v(T+4)}"); e(f"v_add_u32 {v(DG)}, 8192, {v(DG)}")
    e(f"v_and_b32 {v(T+3)}, 31, {v(L)}")
    e(f"v_lshl_add_u32 {v(A1)}, {v(T+3)}, 4, {v(T+5)}")
    e(f"v_lshlrev_b32 {v(T+4)}, 4, {v(T+3)}"); e(f"v_sub_u32 {v(T+4)}, {v(T+5)}, {v(T+4)}")
    e(f"v_add_u32 {v(A2)}, {8*AE_ET + 512}, {v(T+4)}")
    e(f"v_add_u32 {v(T+4)}, {9*AE_ET}, {v(T+4)}")
    e(f"v_cmp_eq_u32 vcc, 0, {v(T+3)}"); e("s_nop 1")
    e(f"v_cndmask_b32 {v(A2)}, {v(A2)}, {v(T+4)}, vcc")
    for u in range(8):
        e(f"s_mov_b32 {s(S_WC+u)}, {u*AE_ET}")
    e(f"v_add_u32 {v(T+5)}, {(8*AE_ET - AE_MAT) & 0xffffffff}, {v(A1)}")
    e(f"v_cndmask_b32 {v(A1s)}, {v(A1)}, {v(T+5)}, {s(S_MASK,2)}")
    e(f"v_add_u32 {v(T+5)}, {8*AE_ET}, {v(A1)}")
    e(f"v_add_u32 {v(A2s)}, {7*AE_ET}, {v(A2)}")
    e(f"v_cndmask_b32 {v(A2s)}, {v(A2s)}, {v(T+5)}, {s(S_MASK,2)}")
    e(f"v_mov_b32 {v(T+5)}, 0"); e(f"v_mov_b32 {v(C1)}, 1.0")
    e(f"v_cndmask_b32 {v(C1)}, {v(C1)}, {v(T+5)}, {s(S_MASK,2)}")
    e(f"v_mov_b32 {v(C1+1)}, {v(C1)}")
    e(f"s_cmp_eq_u32 {s(S_CB)}, 14"); e(f"s_cselect_b32 {s(S_T1)}, 0xc4000000, 0")
    e(f"v_mov_b32 {v(T+8)}, {s(S_T1)}")
    e(f"v_cndmask_b32 {v(KM)}, {v(T+5)}, {v(T+8)}, vcc")
    e(f"s_cmp_eq_u32 {s(S_CB)}, 15"); e(f"s_cselect_b32 {s(S_T2)}, 0x80008000, 0")
    e("s_waitcnt lgkmcnt(0)")
    for r in range(16):
        e(f"v_cndmask_b32 {v(RHOE+r)}, {v(RHO+r)}, {v(RHOE+r)}, {s(S_MASK,2)}")
    O = 96
    for u in range(8):
        E = V_ACC + 16*u
        RE = RHOE if u == 0 else RHO
        for r in range(16):
            e(f"v_accvgpr_read_b32 {v(O+r)}, {a_(16*u+r)}")
        if u == 0:
            for r in range(16):
                e(f"v_fmac_f32 {v(E+r)}, {v(M+r)}, {v(KM)}")
                e(f"v_fmac_f32 {v(O+r)}, {v(M+r)}, {v(KM)}")
        e(f"s_cmp_lg_u32 {s(S_T3)}, 0"); e(f"s_cbranch_scc1 LAd_nsp{u}")
        specialG(e, u, E, O, T, A1s if u == 0 else A1, A2s if u == 0 else A2, C1, DG)
        e(f"LAd_nsp{u}:")
        for X, R in ((E, RE), (O, RHO)):
            for h in (0, 8):
                for r in (0, 2):
                    e(f"v_pk_mul_f32 {v(X+h+r,2)}, {v(X+h+r,2)}, {v(R+h+r,2)}")
                for r in (0, 2):
                    e(f"v_pk_fma_f32 {v(X+h+r,2)}, {v(X+h+4+r,2)}, {v(R+h+4+r,2)}, {v(X+h+r,2)}")
        for h in (0, 8):
            for r in (0, 2):
                if u == 0:
                    e(f"v_pk_fma_f32 {v(E+h+4+r,2)}, {v(O+h+r,2)}, {v(C1,2)}, {v(E+h+r,2)}")
                    e(f"v_pk_fma_f32 {v(O+h+4+r,2)}, {v(E+h+r,2)}, {v(C1,2)}, {v(O+h+r,2)} neg_lo:[0,0,1] neg_hi:[0,0,1]")
                else:
                    e(f"v_pk_add_f32 {v(E+h+4+r,2)}, {v(E+h+r,2)}, {v(O+h+r,2)}")
                    e(f"v_pk_add_f32 {v(O+h+4+r,2)}, {v(E+h+r,2)}, {v(O+h+r,2)} neg_lo:[0,1] neg_hi:[0,1]")
        for X in (E, O):
            for r in (0, 2):
                e(f"v_pk_add_f32 {v(X+r,2)}, {v(X+4+r,2)}, {v(X+12+r,2)}")
                e(f"v_pk_add_f32 {v(X+8+r,2)}, {v(X+4+r,2)}, {v(X+12+r,2)} neg_lo:[0,1] neg_hi:[0,1]")
        for X, D in ((E, E+4), (O, E+12)):
            e(f"v_cvt_pk_bf16_f32 {v(D)}, {v(X)}, {v(X+1)}")
            e(f"v_cvt_pk_bf16_f32 {v(D+1)}, {v(X+2)}, {v(X+3)}")
            e(f"v_cvt_pk_bf16_f32 {v(D+2)}, {v(X+8)}, {v(X+9)}")
            e(f"v_cvt_pk_bf16_f32 {v(D+3)}, {v(X+10)}, {v(X+11)}")
        for r in range(4):
            e(f"v_xor_b32 {v(E+12+r)}, {s(S_T2)}, {v(E+12+r)}")
        e(f"v_permlane32_swap_b32 {v(E+4)}, {v(E+6)}")
        e(f"v_permlane32_swap_b32 {v(E+5)}, {v(E+7)}")
        e(f"v_permlane32_swap_b32 {v(E+12)}, {v(E+14)}")
        e(f"v_permlane32_swap_b32 {v(E+13)}, {v(E+15)}")
        e("s_nop 1")
        if u == 0:
            e(f"buffer_store_dwordx4 {v(E+4,4)}, {v(A1s)}, {s(S_WS,4)}, 0 offen")
            e(f"buffer_store_dwordx4 {v(E+12,4)}, {v(A2s)}, {s(S_WS,4)}, 0 offen")
            e(f"s_cmp_eq_u32 {s(S_CB)}, 14"); e("s_cbranch_scc1 LAd_nz")
            e(f"s_mov_b64 exec, {s(S_MASK,2)}")
            for r in range(4): e(f"v_mov_b32 {v(T+8+r)}, 0")
            e(f"buffer_store_dwordx4 {v(T+8,4)}, {v(A1)}, {s(S_WS,4)}, 0 offen")
            e(f"buffer_store_dwordx4 {v(T+8,4)}, {v(A2)}, {s(S_WS,4)}, {s(S_WC+7)} offen")
            e("s_mov_b64 exec, -1")
            e("s_nop 1")
            e("LAd_nz:")
        else:
            e(f"buffer_store_dwordx4 {v(E+4,4)}, {v(A1)}, {s(S_WS,4)}, {s(S_WC+u)} offen")
            e(f"buffer_store_dwordx4 {v(E+12,4)}, {v(A2)}, {s(S_WS,4)}, {s(S_WC+7-u)} offen")

def specialG(e, u, E, O, T, A1, A2, C1, DG):
    X = 116 if u else 88
    X = 88
    if u == 0:
        e(f"v_fma_f32 {v(X)}, {v(O+4)}, {v(C1)}, {v(E+4)}"); e(f"v_fma_f32 {v(X+1)}, {v(O+12)}, {v(C1)}, {v(E+12)}")
    else:
        e(f"v_add_f32 {v(X)}, {v(O+4)}, {v(E+4)}"); e(f"v_add_f32 {v(X+1)}, {v(O+12)}, {v(E+12)}")
    e(f"v_sub_f32 {v(X+4)}, {v(E+4)}, {v(O+4)}"); e(f"v_sub_f32 {v(X+5)}, {v(E+12)}, {v(O+12)}")
    e(f"v_mul_f32 {v(X)}, {v(X)}, {v(T+6)}"); e(f"v_fmac_f32 {v(X)}, {v(X+1)}, {v(T+7)}")
    e(f"v_mul_f32 {v(X+4)}, {v(X+4)}, {v(T+6)}"); e(f"v_fmac_f32 {v(X+4)}, {v(X+5)}, {v(T+7)}")
    e(f"v_mov_b32 {v(X+1)}, 0")
    e(f"v_cvt_pk_bf16_f32 {v(X)}, {v(X)}, {v(X+1)}")
    e(f"v_cvt_pk_bf16_f32 {v(X+4)}, {v(X+4)}, {v(X+1)}")
    e(f"v_cmp_gt_u32 vcc, 32, {v(V_LANE)}")
    for r in (2, 3, 5, 6, 7): e(f"v_mov_b32 {v(X+r)}, 0")
    e(f"v_cndmask_b32 {v(X)}, {v(X+1)}, {v(X)}, vcc")
    e(f"v_cndmask_b32 {v(X+4)}, {v(X+1)}, {v(X+4)}, vcc")
    e(f"v_add_u32 {v(T+8)}, {v(A1)}, {v(DG)}"); e(f"v_add_u32 {v(T+9)}, {v(A2)}, {v(DG)}")
    if u == 0:
        e(f"buffer_store_dwordx4 {v(X,4)}, {v(T+8)}, {s(S_WS,4)}, 0 offen")
        e(f"buffer_store_dwordx4 {v(X+4,4)}, {v(T+9)}, {s(S_WS,4)}, 0 offen")
    else:
        e(f"buffer_store_dwordx4 {v(X,4)}, {v(T+8)}, {s(S_WS,4)}, {s(S_WC+u)} offen")
        e(f"buffer_store_dwordx4 {v(X+4,4)}, {v(T+9)}, {s(S_WS,4)}, {s(S_WC+7-u)} offen")
    e("s_nop 1")

def pack_job(e, opt):
    e(f"s_lshl_b32 {s(S_T0)}, s2, 2"); e(f"s_add_u32 {s(S_T0)}, {s(S_T0)}, {s(S_WAVE)}"); e(f"s_lshl_b32 {s(S_T0)}, {s(S_T0)}, 6")
    e(f"s_add_u32 {s(S_T0)}, {s(S_T0)}, {WS_FL}")
    e("s_mov_b64 exec, 1")
    e(f"buffer_store_dword {v(V_SUM)}, {v(V_SUM)}, {s(S_WS,4)}, {s(S_T0)} offen")
    e("s_mov_b64 exec, -1")

HEADER = """; Kernarg: 0 A_x, 8 seq_re, 16 seq_im, 24 hid_re, 32 hid_im, 40 B_x, 48 w1, 56 w2, 64 out, 72 debug, 80 ws
"""
def gen(opt):
    e = Asm()
    M16[0] = opt.get('m16', 0)
    e(HEADER.rstrip())
    e("; @launch kernel=ka_kernel grid=(256,1,1) block=(256,1,1) lds=163840")
    if opt.get('two', False):
        e("; @launch kernel=kb_kernel grid=(256,1,1) block=(256,1,1) lds=163840")
    e('.amdgcn_target "amdgcn-amd-amdhsa--gfx950"')
    e(".text")
    genA(e, opt)
    if opt.get('two', False):
        import genb
        genb.genB(e, opt)
    e('.section .rodata,"a"')
    kernel_desc(e, "ka_kernel")
    if opt.get('two', False):
        kernel_desc(e, "kb_kernel", vgprs=336, accum=256)
    return e.text()

if __name__ == "__main__":
    opt = {}
    for a in sys.argv[2:]:
        k, val = a.split('='); opt[k] = eval(val)
    open(sys.argv[1], 'w').write(gen(opt))
```

```python
from gen2 import *
import gen2 as G2

NT = 6
STG = [RING[c % 6] for c in range(24)] + [32768, 49152, RING[0], RING[1]]
HS = [192, 208, 224, 240, 56, 72, 88, 2]
FB = 24; BWB = 104
VHL, VFL, VO, VRS = 120, 121, 122, 124
LSD = 32768; LR0 = 65536
SEL = 40
CK0, CK1 = 46, 47
HOFF = HOFF0
NORD = [0, 1, 6, 7, 2, 3, 4, 5]

def hreg(c, k, mm): return HS[c % 8] + 8*k + 4*mm

def row_atoms(g, vq, out, mm, a):
    g([f"s_and_b32 s{T1}, s{WAVE}, 3", f"s_add_u32 s{T2}, s{T1}, 1", f"s_lshr_b32 s{T2}, s{T2}, 1", f"s_lshl_b32 s{T2}, s{T2}, 10",
       f"s_add_u32 s{T0}, s{TB}, {2*mm}", f"v_lshl_add_u32 v{a}, v{vq}, 2, s{T0}",
       f"s_bitcmp1_b32 s{T1}, 0", f"s_cselect_b32 s{T0}, -1, 1", f"v_mul_lo_u32 v{out}, v{a}, s{T0}", f"v_add_u32 v{out}, s{T2}, v{out}"]
      + ([f"s_lshr_b32 s{T1}, s{T1}, 1", f"s_lshl_b32 s{T1}, s{T1}, 9", f"s_sub_u32 s{T1}, s{T2}, s{T1}",
          f"v_cmp_eq_u32 vcc, 0, v{a}", f"v_mov_b32 v{a}, s{T1}", f"v_cndmask_b32 v{out}, v{out}, v{a}, vcc"] if mm == 0 else []))

def col_atoms(g):
    g([f"s_lshl_b32 s{T0}, s{CBP}, 1", f"s_add_u32 s{T0}, s{T0}, s{KQ}", f"s_lshl_b32 s{SC1}, s{T0}, 6", f"s_sub_u32 s{SC2}, {2048-64}, s{SC1}"])

def compute_setup(opt):
    D = []; g = D.append
    A, B, C = T+10, T+11, T+12
    g([f"v_bfe_u32 v{A}, v{L}, 2, 4"]); g([f"v_lshlrev_b32 v{B}, 8, v{A}"]); g([f"v_and_b32 v{C}, 3, v{L}"]); g([f"v_lshl_add_u32 v{B}, v{C}, 3, v{B}"])
    g([f"v_and_b32 v{A}, 7, v{A}"]); g([f"s_lshl_b32 s{T0}, s{KQ}, 1", f"v_xor_b32 v{A}, s{T0}, v{A}"])
    for n in range(8):
        g([f"v_xor_b32 v{C}, {NORD[n]}, v{A}"]); g([f"v_lshl_add_u32 v{BWB+n}, v{C}, 5, v{B}"]); g([f"v_add_u32 v{BWB+8+n}, {LX}, v{BWB+n}"])
    g([f"s_mul_i32 s{T0}, s{WAVE}, 14336", f"s_add_u32 s{T0}, s{T0}, {LOH}", f"v_add_u32 v{VHL}, s{T0}, v{VL16}"])
    g([f"v_lshrrev_b32 v{A}, 3, v{L}"]); g([f"v_and_b32 v{B}, 7, v{L}"]); g([f"v_lshlrev_b32 v{B}, 2, v{B}"]); g([f"v_lshl_add_u32 v{VFL}, v{A}, 7, v{B}"])
    g([f"s_lshl_b32 s{T0}, s{RB}, 1", f"s_add_u32 s{T0}, s{T0}, s{KQ}", f"s_lshl_b32 s{SH0}, s{T0}, 10", f"s_add_u32 s{SH0}, s{SH0}, {WS_FL}"])
    g([f"s_lshl_b32 s{T0}, s{RB}, 2", f"s_add_u32 s{T0}, s{T0}, s{WAVE}", f"s_lshl_b32 s{T0}, s{T0}, 1", f"s_add_u32 s{T0}, s{T0}, s{KQ}",
       f"s_mul_i32 s{T0}, s{T0}, {56*2048}", f"s_add_u32 s{HEND}, s{T0}, {56*2048}",
       f"s_add_u32 s{T1}, s{CBP}, 1", f"s_and_b32 s{T1}, s{T1}, 7", f"s_mul_i32 s{T1}, s{T1}, {7*2048}", f"s_add_u32 s{HOFF}, s{T0}, s{T1}"])
    g([f"v_and_b32 v{A}, 15, v{L}"])
    g([f"s_lshl_b32 s{T0}, s{RB}, 3", f"s_add_u32 s{T0}, s{T0}, s{WAVE}", f"s_lshl_b32 s{T0}, s{T0}, 6", f"s_add_u32 s{T0}, s{T0}, {WS_RS}",
       f"v_lshlrev_b32 v{B}, 2, v{A}",
       ('vm', f"buffer_load_dword v{VRS}, v{B}, {s(SWS,4)}, s{T0} offen sc0 sc1", 'rs'),
       ('vm', f"buffer_load_dword v{VRS+2}, v{B}, {s(SWS,4)}, s{T0} offen offset:256 sc0 sc1", 'rs')])
    for mm in range(2): row_atoms(g, A, VO+mm, mm, B)
    g([f"v_bfe_u32 v{A}, v{L}, 4, 1"]); g([f"v_lshrrev_b32 v{B}, 5, v{L}"]); g([f"v_lshlrev_b32 v{B}, 4, v{B}"]); g([f"v_lshl_add_u32 v{A}, v{A}, 5, v{B}"])
    for mm in range(2): g([f"v_lshl_add_u32 v{VO+mm}, v{VO+mm}, 11, v{A}"])
    col_atoms(g)
    g([f"s_lshl_b32 s{T0}, s2, 2", f"s_add_u32 s{T0}, s{T0}, s{WAVE}", f"s_xor_b32 s{T1}, s{T0}, {4*[2, 1, 8][opt.get('map', 1)]}",
       f"s_lshl_b32 s{SEXS}, s{T0}, 13", f"s_add_u32 s{SEXS}, s{SEXS}, {WS_EX}", f"s_lshl_b32 s{SEXR}, s{T1}, 13", f"s_add_u32 s{SEXR}, s{SEXR}, {WS_EX}"])
    g([f"s_mov_b32 s{SEL+i}, {0x07060500 + i}" for i in range(4)] + [f"s_mov_b32 s{CK0}, 0x0c0c0400", f"s_mov_b32 s{CK1}, 0x04000c0c"])
    return D

def bstamp(e, opt, k, i):
    if opt.get('bstamp') == k: stamp(e, opt, i)

def compute(e, m, opt):
    NM = 28 - NT
    steps = [[(c, k, n) for n in range(8)] for c in range(NM) for k in range(2)]
    steps += [[(c, k, n) for k in range(2) for n in range(4, 8)] for c in range(NM, 28)]
    steps += [[(c, k, n) for k in range(2) for n in range(4)] for c in range(NM, 28)]
    NS = len(steps); SP = 2*NM + NT
    FK = opt.get('fk', 1); PK = opt.get('pk', 3)
    def wread(c, k, n, half, slot):
        off = STG[c] + k*8192 + half*4096; b = BWB + n
        if off >= LX: off -= LX; b += 8
        r = FB + 4*slot + 2*half
        return ('ds', f"ds_read_b64_tr_b16 {v(r,2)}, v{b} offset:{off}", [r, r+1])
    def hlds(kk, mm):
        r = hreg(kk//2, kk % 2, mm)
        return ('ds', f"ds_read_b128 {v(r,4)}, v{VHL} offset:{kk*2048 + mm*1024}", range(r, r+4))
    fill = [[[] for _ in range(16)] for _ in range(NS)]
    lst = [hlds(kk, mm) for kk in range(1, 7) for mm in range(2)]
    for i, x in enumerate(lst): fill[i//8][2*(i % 8)].append(x)
    pos = (FK+1)*16
    hb = opt.get('hbits', '')
    for kk in range(7, 56):
        c = kk//2
        free = 0 if c < 8 else (2*(c-8) + kk % 2 + 1)*16
        for mm in range(2):
            want = free + 2 + 6*mm
            pos = max(pos, want)
            r = hreg(c, kk % 2, mm)
            it = [('vm', f"buffer_load_dwordx4 {v(r,4)}, v{VL16}, {s(SWS,4)}, s{HOFF} offen offset:{mm*1024}{hb}", ('H', kk, mm))]
            if mm == 1:
                it.append(f"s_add_u32 s{HOFF}, s{HOFF}, 2048")
                if kk % 7 == 6: it += [f"s_cmp_ge_u32 s{HOFF}, s{HEND}", f"s_cselect_b32 s{T0}, {56*2048}, 0", f"s_sub_u32 s{HOFF}, s{HOFF}, s{T0}"]
            if not opt.get('noh'): fill[pos//16][pos % 16] += it
            pos += 1
    PA = ACC + 32
    pos = (SP-1)*16 + 13
    for i in range(8):
        q = PA + 4*i
        for half in range(2):
            fill[pos//16][pos % 16] += [f"v_perm_b32 v{q+r}, v{q+r}, v{VTOK}, s{SEL+r}" for r in (2*half, 2*half+1)]
            if half == 1:
                if i == 4: fill[pos//16][pos % 16].append(f"s_add_u32 s{SEXS}, s{SEXS}, 4096")
                fill[pos//16][pos % 16].append(('vm', f"buffer_store_dwordx4 {v(q,4)}, v{VL16}, {s(SWS,4)}, s{SEXS} offen offset:{(i%4)*1024}{opt.get('xst', ' sc0 sc1')}", 'ex'))
            pos += 1
    pos = (SP+2)*16
    fill[SP+1][15] += [f"s_lshl_b32 s{T0}, s{WAVE}, 13", f"s_add_u32 s{T0}, s{T0}, {LR0}", f"v_add_u32 v{T}, s{T0}, v{VL16}",
                       f"v_mov_b32 v{VRS+1}, v{VRS}", f"v_mov_b32 v{VRS+3}, v{VRS+2}", f"s_add_u32 s{T1}, s{SEXR}, 4096"]
    for i in range(8):
        fill[pos//16][pos % 16].append(('ds', f"ds_read_b128 {v(PA+4*i,4)}, v{T} offset:{i*1024}", range(PA+4*i, PA+4*i+4)))
        pos += 2
    PB = [hreg(NM-2, 0, 0) + 4*i for i in range(4)] + [hreg(NM-1, 0, 0) + 4*i for i in range(4)]
    pld = [('vm', f"buffer_load_dwordx4 {v(PB[i],4)}, v{VL16}, {s(SWS,4)}, s{SEXR if i < 4 else T1} offen offset:{(i%4)*1024}{opt.get('xld', ' sc0 sc1')}", 'P') for i in range(8)]
    if PK < NT:
        for i in range(8): fill[SP+PK][2*i].append(pld[i])

    if 'cprio' in opt: e(f"s_setprio {opt['cprio']}")
    m.ds0()
    e("s_barrier")
    bstamp(e, opt, 1, 3)
    m.all([hlds(0, 0), hlds(0, 1)])
    for sl, (c, k, n) in enumerate(steps[0]):
        for half in range(2): m.put(wread(c, k, n, half, sl))
    seen = {0, 1, 2}
    for i, st in enumerate(steps):
        nx = steps[i+1] if i+1 < NS else None
        if nx and nx[0][0] not in seen:
            seen.add(nx[0][0]); e("s_barrier")
            if nx[0][0] == 4: bstamp(e, opt, 1, 6)
            if nx[0][0] == 10: bstamp(e, opt, 2, 3)
            if nx[0][0] == 16: bstamp(e, opt, 2, 4)
            if nx[0][0] == 22: bstamp(e, opt, 2, 5)
            if 'bs' in opt and nx[0][0] in opt['bs']: stamp(e, opt, 3 + opt['bs'].index(nx[0][0]))
        if i == SP: bstamp(e, opt, 2, 6); bstamp(e, opt, 3, 3)
        for sl, (c, k, n) in enumerate(st):
            for mi in range(2):
                mm = mi if sl % 2 == 0 else 1 - mi
                h = hreg(c, k, mm)
                need = list(range(h, h+4))
                if mi == 0: need += list(range(FB+4*sl, FB+4*sl+4))
                m.nds(need); m.nvm(('H', 2*c+k, mm))
                acc = v(ACC+8*n+4*mm, 4)
                if not opt.get('nobm'): e(f"v_mfma_f32_16x16x32_bf16 {acc}, {v(FB+4*sl,4)}, {v(h,4)}, {'0' if i == 0 else acc}")
                g = 2*sl + mi
                if nx:
                    if mi == 1: m.put(wread(*nx[sl], 0, sl))
                    if mi == 0 and sl > 0: m.put(wread(*nx[sl-1], 1, sl-1))
                    if g == 15: m.put(wread(*nx[7], 1, 7))
                m.all(fill[i][g])
        if i == FK:
            hflag(e, m)
            bstamp(e, opt, 1, 4)
            e(f"s_mov_b32 s{BND}, 4000")
            e("LC_g0:")
            e(f"buffer_load_dword v{T}, v{VFL}, {s(SWS,4)}, s{SH0} offen{opt.get('fld', ' sc0 sc1')}"); m.vm0()
            e(f"v_cmp_ne_u32 vcc, v{VTOK}, v{T}"); e("s_cmp_eq_u64 vcc, 0"); e("s_cbranch_scc1 LC_g1")
            e(f"s_sub_u32 s{BND}, s{BND}, 1"); e(f"s_cmp_lg_u32 s{BND}, 0"); e("s_cbranch_scc1 LC_g0")
            e("LC_g1:")
            bstamp(e, opt, 1, 5)
    bstamp(e, opt, 3, 4)
    if PK >= NT: m.all(pld)
    m.ds0()
    e("s_nop 7")
    for i in range(8):
        mm = i % 2
        for r in (0, 2):
            e(f"v_pk_fma_f32 {v(ACC+4*i+r,2)}, {v(ACC+4*i+r,2)}, {v(VRS+2*mm,2)}, {v(PA+4*i+r,2)}")
    e(f"s_mov_b32 s{BND}, 4000")
    e("LC_p0:")
    K = FB
    for i in range(8):
        if i % 2 == 0: e(f"s_waitcnt vmcnt({6-i})")
        e(f"v_perm_b32 v{K+2*i}, v{PB[i]+1}, v{PB[i]}, s{CK0}"); e(f"v_perm_b32 v{K+2*i+1}, v{PB[i]+3}, v{PB[i]+2}, s{CK1}")
        e(f"v_bitop3_b32 v{K+2*i}, v{K+2*i}, v{K+2*i+1}, v{VTOK} bitop3:0x56")
        for r in (0, 2):
            e(f"v_pk_fma_f32 {v(PA+4*i+r,2)}, {v(PB[i]+r,2)}, {v(VRS+2*(i%2),2)}, {v(ACC+4*i+r,2)}")
    m.vq = []
    e(f"v_or3_b32 v{K}, v{K}, v{K+2}, v{K+4}"); e(f"v_or3_b32 v{K+6}, v{K+6}, v{K+8}, v{K+10}"); e(f"v_or3_b32 v{K}, v{K}, v{K+12}, v{K+14}")
    e(f"v_or_b32 v{K}, v{K}, v{K+6}")
    e(f"v_cmp_ne_u32 vcc, 0, v{K}"); e("s_cmp_eq_u64 vcc, 0"); e("s_cbranch_scc1 LC_p1")
    e(f"s_sub_u32 s{BND}, s{BND}, 1"); e(f"s_cmp_eq_u32 s{BND}, 0"); e("s_cbranch_scc1 LC_p1")
    for x in pld: e(x[1])
    e("s_branch LC_p0")
    e("LC_p1:")
    bstamp(e, opt, 3, 5)
    if opt.get('bstamp') == 3: e(f"s_sub_u32 s92, 4000, s{BND}")
    O = FB + 16
    for hf in range(2):
        for mm in range(2):
            D = O + 8*hf + 4*mm
            for b in range(2):
                a = PA + 8*(2*hf+b) + 4*mm
                e(f"v_cvt_pk_bf16_f32 v{D+2*b}, v{a}, v{a+1}"); e(f"v_cvt_pk_bf16_f32 v{D+2*b+1}, v{a+2}, v{a+3}")
    for j in range(4):
        D = O + 4*j
        e(f"v_permlane16_swap_b32 v{D}, v{D+2}"); e(f"v_permlane16_swap_b32 v{D+1}, v{D+3}")
    e("s_nop 1")
    for j in range(4):
        e(f"buffer_store_dwordx4 {v(O+4*j,4)}, v{VO+j%2}, {s(SO,4)}, s{SC1+j//2} offen")
    write_stamps(e, opt)
    e("s_endpgm")

CS = 40; SN = 72; XR = 104
VREV, VX = 124, 125
Y = 128; AF = 192; GF = 2; VP = 10
SPY = FM
HC = 44

def atoms(lines):
    out = []; cur = []
    for l in lines:
        cur.append(l)
        if isinstance(l, str) and (l.startswith('s_cmp') or l.startswith('s_bitcmp')): continue
        out.append(cur); cur = []
    assert not cur
    return out

def trig_lines():
    o = []; e = o.append
    A = Y
    TQ = T+8; TQS = T+9; B0 = T+10; B0S = T+11; D2 = T+16; D2S = T+18
    vt, vhi = T, T+1
    e(f"s_and_b32 s{HC}, s{WAVE}, 3")
    e(f"v_and_b32 v{vt}, 15, v{L}"); e(f"v_lshl_add_u32 v{vt}, v{vt}, 2, s{TB}"); e(f"v_bfe_u32 v{vhi}, v{L}, 4, 1"); e(f"v_lshl_add_u32 v{vt}, v{vhi}, 1, v{vt}")
    e(f"v_lshrrev_b32 v{vhi}, 5, v{L}")
    e(f"v_cmp_eq_u32 {s(SPY,2)}, 0, v{vt}")
    e(f"v_cvt_f32_u32 v{TQ}, v{vt}"); e(f"v_mul_f32 v{TQ}, 0x3a000000, v{TQ}")
    e(f"v_mov_b32 v{T+2}, 0x3e800000")
    e(f"v_cndmask_b32 v{TQS}, v{TQ}, v{T+2}, {s(SPY,2)}")
    e(f"v_lshl_add_u32 v{T+2}, v{vhi}, 5, s{HC}"); e(f"v_cvt_f32_u32 v{T+2}, v{T+2}")
    e(f"v_mul_f32 v{B0}, v{TQ}, v{T+2}"); e(f"v_mul_f32 v{B0S}, v{TQS}, v{T+2}")
    for kk in range(2):
        for jj in range(8):
            e(f"v_fmamk_f32 v{A+8*kk+jj}, v{TQ}, {fl(64*kk+4*jj)}, v{B0}")
            e(f"v_fmamk_f32 v{A+16+8*kk+jj}, v{TQS}, {fl(64*kk+4*jj)}, v{B0S}")
    e(f"v_mul_f32 v{D2}, 0x42800000, v{TQ}"); e(f"v_mul_f32 v{D2S}, 0x42800000, v{TQS}")
    e(f"v_mul_f32 v{T+12}, 0x44000000, v{TQ}"); e(f"v_mul_f32 v{T+13}, 0x44000000, v{TQS}")
    for r in [A+i for i in range(32)] + [D2, D2S, T+12, T+13]: e(f"v_fract_f32 v{r}, v{r}")
    for r in [A+i for i in range(16)] + [D2, D2S, T+12]: e(f"v_cos_f32 v{r}, v{r}")
    for r in [A+16+i for i in range(16)] + [T+13]: e(f"v_sin_f32 v{r}, v{r}")
    e("s_nop 0")
    e(f"v_add_f32 v{D2}, v{D2}, v{D2}"); e(f"v_add_f32 v{D2S}, v{D2S}, v{D2S}")
    e(f"v_mov_b32 v{D2+1}, v{D2}"); e(f"v_mov_b32 v{D2S+1}, v{D2S}")
    for kk in range(8):
        o_ = 8*(kk % 2)
        if kk >= 2:
            for base, D in ((A, D2), (A+16, D2S)):
                for jj in range(0, 8, 2):
                    e(f"v_pk_fma_f32 {v(base+o_+jj,2)}, {v(base+8-o_+jj,2)}, {v(D,2)}, {v(base+o_+jj,2)} neg_lo:[0,0,1] neg_hi:[0,0,1]")
        for d in range(4):
            e(f"v_cvt_pk_bf16_f32 v{CS+4*kk+d}, v{A+o_+2*d}, v{A+o_+2*d+1}")
            e(f"v_cvt_pk_bf16_f32 v{SN+4*kk+d}, v{A+16+o_+2*d}, v{A+16+o_+2*d+1}")
        if kk == 0:
            e(f"v_cvt_pk_bf16_f32 v{T+2}, v{T+13}, v{A+16+1}")
            e(f"s_cmp_eq_u32 s{HC}, 0"); e(f"s_cselect_b32 s{M2}, -1, 0"); e(f"s_mov_b32 s{M2+1}, 0")
            e(f"v_cndmask_b32 v{SN}, v{SN}, v{T+2}, {s(M2,2)}")
    e(f"v_cvt_pk_bf16_f32 v{T+12}, v{T+12}, v{T+12}")
    for r in (13, 14, 15): e(f"v_mov_b32 v{T+r}, 0")
    return atoms(o)

def addr_atoms():
    D = []; g = D.append
    A, B = T+2, T+3
    g([f"s_and_b32 s{T0}, s{RB}, 1", f"s_mul_i32 s{SAE}, s{T0}, {AE_PAR}",
       f"s_lshl_b32 s{T0}, s{CBP}, 1", f"s_add_u32 s{T0}, s{T0}, s{KQ}", f"s_mul_i32 s{T0}, s{T0}, {AE_ET}", f"s_add_u32 s{SAE}, s{SAE}, s{T0}",
       f"s_mul_i32 s{T0}, s{HC}, {AE_C}", f"s_add_u32 s{SAE}, s{SAE}, s{T0}", f"s_add_u32 s{SAE}, s{SAE}, {WS_AE}"])
    g([f"v_and_b32 v{A}, 31, v{L}", f"v_cmp_eq_u32 vcc, 0, v{A}", f"v_lshlrev_b32 v{A}, 5, v{A}", f"v_sub_u32 v{A}, v{VL16}, v{A}",
       f"v_add_u32 v{B}, {AE_ET}, v{A}", f"v_add_u32 v{A}, 512, v{A}", f"v_cndmask_b32 v{VREV}, v{A}, v{B}, vcc"])
    g([f"v_and_b32 v{A}, 15, v{L}"])
    for mm in range(2): row_atoms(g, A, VX+mm, mm, B)
    g([f"v_lshrrev_b32 v{A}, 4, v{L}", f"v_lshlrev_b32 v{A}, 3, v{A}"] + [f"v_lshl_add_u32 v{VX+mm}, v{VX+mm}, 11, v{A}" for mm in range(2)])
    col_atoms(g)
    g([f"s_lshl_b32 s{SH0}, s{HC}, 9", f"s_add_u32 s{SH0}, s{SH0}, {WS_FD}", f"v_lshlrev_b32 v{VP+2}, 3, v{L}"])
    return D

def helper(e, m, opt, sp):
    P = "HS" if sp else "HN"
    W = {c: [] for c in range(28)}
    def dma(c):
        for j in range(4):
            if j == 0: e(f"s_add_u32 m0, s{MW2}, {STG[c]}"); e("s_nop 0")
            m.put(('vm', f"buffer_load_dwordx4 v{VW2D+j}, {s(SW2,4)}, s{W2OFF} offen offset:{j*1024} lds", ('W', c)))
        for x in W2_ADV: e(x)
    DM = {0: [3, 4, 5], 3: [6, 7, 8], 18: [23, 24, 25], 19: [26], 20: [27]}
    for c in range(4, 18): DM[c] = [c+5]
    FC = opt.get('fc', 9); Y1 = opt.get('y1', 12); Y2 = opt.get('y2', 15); YW = opt.get('yw', 16)
    assert YW <= 16
    tr = trig_lines() + addr_atoms()
    if sp:
        def fdflag():
            m.nvm('AE')
            e("s_mov_b64 exec, 1")
            m.put(('vm', f"buffer_store_dword v{VTOK}, v{VZ}, {s(SWS,4)}, s{SFD} offen sc0 sc1", 'fl'))
            e("s_mov_b64 exec, -1")
        tr.insert(opt.get('fd', 100), [fdflag])
    for a in tr: W[0] += a
    poll = f"buffer_load_dwordx2 {v(VP,2)}, v{VP+2}, {s(SWS,4)}, s{SH0} offen sc0 sc1"
    W[FC-2].append(('vm', poll, 'fp'))
    def aeld(kk):
        b = AF + 16*(kk % 4); o = []
        for mat in range(2):
            o.append(f"s_add_u32 s{T0}, s{SAE}, {mat*AE_MAT + (kk//4)*4096}")
            for rv in range(2):
                o.append(('vm', f"buffer_load_dwordx4 {v(b+8*mat+4*rv,4)}, v{VREV if rv else VL16}, {s(SWS,4)}, s{T0} offen offset:{(kk%4)*1024}", ('Y', kk)))
        return o
    def check():
        m.nvm('fp')
        e(f"s_mov_b32 s{BND}, 4000")
        e(f"{P}_f0:")
        e(f"v_cmp_ne_u32 vcc, v{VTOK}, v{VP}"); e(f"v_cmp_ne_u32 {s(M2,2)}, v{VTOK}, v{VP+1}"); e(f"s_or_b64 vcc, vcc, {s(M2,2)}"); e(f"s_cbranch_scc0 {P}_f1")
        e(f"s_sub_u32 s{BND}, s{BND}, 1"); e(f"s_cmp_eq_u32 s{BND}, 0"); e(f"s_cbranch_scc1 {P}_f1")
        e(poll); e("s_waitcnt vmcnt(0)"); e(f"s_branch {P}_f0")
        e(f"{P}_f1:")
        bstamp(e, opt, 2, 3)
        if opt.get('bstamp') == 2: e(f"s_sub_u32 s92, 4000, s{BND}")
    W[FC].append(check)
    for kk in range(4): W[FC] += aeld(kk)
    W[FC] += [f"s_add_u32 s{T0}, s{SAE}, 8192"] + [('vm', f"buffer_load_dwordx4 {v(GF+4*rv,4)}, v{VREV if rv else VL16}, {s(SWS,4)}, s{T0} offen", 'G') for rv in range(2)]
    for i in range(8):
        n, mm = i//2, i % 2
        W[FC+1].append(('vm', f"buffer_load_dwordx2 {v(XR+2*i,2)}, v{VX+mm}, {s(SX,4)}, s{SC1+n//2} offen offset:{(n%2)*32}", 'xr'))
    def ymf(kk):
        o = [('nvm', ('Y', kk))]
        b = AF + 16*(kk % 4)
        for q in range(4):
            acc = v(Y+16*q, 16)
            o.append(f"v_mfma_f32_32x32x16_bf16 {acc}, {v(b+4*q,4)}, {v((CS if q < 2 else SN)+4*kk,4)}, {'0' if kk == 0 else acc}")
        return o
    for kk in range(4):
        W[Y1] += ymf(kk)
        if kk > 0: W[Y1] += aeld(kk+3)
    W[Y1] += ["s_nop 7"] + aeld(7)
    def gstep():
        m.nvm('G')
        e(f"s_and_b32 s{T0}, s{RB}, 1"); e(f"s_or_b32 s{T0}, s{T0}, s{HC}"); e(f"s_cmp_lg_u32 s{T0}, 0"); e(f"s_cbranch_scc1 {P}_ng")
        for q in range(2):
            acc = v(Y+16*q, 16)
            e(f"v_mfma_f32_32x32x16_bf16 {acc}, {v(GF+4*q,4)}, {v(T+12,4)}, {acc}")
        e(f"{P}_ng:")
    W[Y2].append(gstep)
    for kk in range(4, 8): W[Y2] += ymf(kk)
    def sdwrite():
        A = T+2
        e(f"v_bfe_u32 v{A}, v{L}, 4, 1"); e(f"v_lshlrev_b32 v{A}, 10, v{A}"); e(f"v_lshrrev_b32 v{A+1}, 5, v{L}"); e(f"v_lshl_add_u32 v{A}, v{A+1}, 8, v{A}")
        e(f"v_and_b32 v{A+1}, 15, v{L}"); e(f"v_lshl_add_u32 v{A}, v{A+1}, 4, v{A}")
        e(f"s_lshl_b32 s{T0}, s{HC}, 14"); e(f"s_add_u32 s{T0}, s{T0}, {LSD}"); e(f"v_add_u32 v{A}, s{T0}, v{A}")
        e(f"s_bitcmp1_b32 s{HC}, 0"); e(f"s_cselect_b64 {s(M2,2)}, {s(SPY,2)}, 0")
        e(f"v_mov_b32 v{T+18}, -2.0"); e(f"v_mov_b32 v{T+19}, -2.0")
        e("s_nop 7"); e("s_nop 7")
        e(f"s_andn2_b64 exec, -1, {s(M2,2)}")
        for r in range(0, 32, 2): e(f"v_pk_add_f32 {v(Y+r,2)}, {v(Y+r,2)}, {v(Y+32+r,2)}")
        for r in range(0, 32, 2): e(f"v_pk_fma_f32 {v(Y+32+r,2)}, {v(Y+32+r,2)}, {v(T+18,2)}, {v(Y+r,2)}")
        e("s_mov_b64 exec, -1")
        for arr, src in ((0, 0), (2, 16), (1, 32), (3, 48)):
            for rq in range(4):
                m.put(('ds', f"ds_write_b128 v{A}, {v(Y+src+4*rq,4)} offset:{arr*4096 + (rq//2)*2048 + (rq%2)*512}", []))
        m.ds0()
    W[YW].append(sdwrite)
    def combine():
        e(f"s_cmp_eq_u32 s{TB}, 0"); e(f"s_cselect_b32 s{SPY}, 0x00010001, 0"); e(f"s_mov_b32 s{SPY+1}, s{SPY}")
        e(f"s_and_b32 s{T0}, s{HC}, 1"); e(f"s_lshl_b32 s{T0}, s{T0}, 12")
        e(f"s_add_u32 s{T1}, s{T0}, {LSD}"); e(f"v_add_u32 v{T+2}, s{T1}, v{VL16}")
        e(f"s_sub_u32 s{T1}, {LSD+12288}, s{T0}"); e(f"v_add_u32 v{T+3}, s{T1}, v{VL16}")
        e(f"s_lshr_b32 s{T0}, s{HC}, 1"); e(f"s_lshl_b32 s{T0}, s{T0}, 12"); e(f"s_add_u32 s{T0}, s{T0}, {LSD}")
        e(f"v_add_u32 v{T+6}, s{T0}, v{VL16}"); e(f"v_add_u32 v{T+7}, 8192, v{T+6}")
        e(f"v_cndmask_b32 v{T+6}, v{T+2}, v{T+6}, {s(SPY,2)}"); e(f"v_cndmask_b32 v{T+7}, v{T+3}, v{T+7}, {s(SPY,2)}")
        R = AF
        def reads(half):
            for c in (0, 2, 1, 3):
                for q in range(4):
                    ad = T+6+half if (c % 2 and q % 2 == 0) else T+2+half
                    r = R + 16*c + 4*q
                    m.put(('ds', f"ds_read_b128 {v(r,4)}, v{ad} offset:{c*16384 + q*1024}", range(r, r+4)))
        reads(0)
        K2 = T+8; K1A = T+10; K1B = T+16
        e(f"s_cmp_ge_u32 s{HC}, 2"); e(f"s_cselect_b32 s{T0}, 0xbf800000, 0x3f800000")
        e(f"s_add_u32 s{T1}, s{HC}, 1"); e(f"s_bitcmp1_b32 s{T1}, 1"); e(f"s_cselect_b32 s{T1}, 0xbf800000, 0x3f800000")
        e(f"v_mov_b32 v{K2}, 1.0"); e(f"v_mov_b32 v{K2+1}, s{T0}")
        e(f"v_cndmask_b32 v{K2}, v{K2}, v{K2+1}, {s(SPY,2)}"); e(f"v_mov_b32 v{K2+1}, v{K2}")
        e(f"v_mul_f32 v{K1A}, s{T1}, v{K2}"); e(f"v_mov_b32 v{K1A+1}, v{K1A}")
        e(f"v_mov_b32 v{K1B}, s{T1}"); e(f"v_mov_b32 v{K1B+1}, s{T1}")
        m.nvm('xr')
        for i in range(8):
            for d in range(2):
                e(f"v_lshlrev_b32 v{Y+4*i+2*d}, 16, v{XR+2*i+d}"); e(f"v_and_b32 v{Y+4*i+2*d+1}, 0xffff0000, v{XR+2*i+d}")
        for half in range(2):
            if half: reads(1)
            Yh = Y + 16*half
            m.nds(range(R, R+16))
            for r in range(0, 16, 2): e(f"v_pk_add_f32 {v(Yh+r,2)}, {v(Yh+r,2)}, {v(R+r,2)}")
            m.nds(range(R+32, R+48))
            for r in range(0, 16, 2):
                if (r//4) % 2 == 0: e(f"v_pk_fma_f32 {v(Yh+r,2)}, {v(R+32+r,2)}, {v(K2,2)}, {v(Yh+r,2)}")
                else: e(f"v_pk_add_f32 {v(Yh+r,2)}, {v(Yh+r,2)}, {v(R+32+r,2)}")
            for c in (1, 3):
                m.nds(range(R+16*c, R+16*c+16))
                for r in range(0, 16, 2):
                    K1 = K1A if (half == 0 and (r//4) % 2 == 0) else K1B
                    e(f"v_pk_fma_f32 {v(Yh+r,2)}, {v(R+16*c+r,2)}, {v(K1,2)}, {v(Yh+r,2)}")
    W[YW+1].append(combine)
    def rwrite():
        e(f"s_lshl_b32 s{T0}, s{HC}, 13"); e(f"s_add_u32 s{T0}, s{T0}, {LR0}"); e(f"v_add_u32 v{T+2}, s{T0}, v{VL16}")
        for i in range(8): m.put(('ds', f"ds_write_b128 v{T+2}, {v(Y+4*i,4)} offset:{i*1024}", []))
        m.ds0()
        bstamp(e, opt, 2, 4)
    W[YW+2].append(rwrite)

    e(f"s_setprio {opt.get('hprio', 0)}")
    m.ds0()
    for c in [0] + list(range(3, 28)):
        if 'bs' in opt and c in opt['bs'] and not opt.get('bsw'): stamp(e, opt, 3 + opt['bs'].index(c))
        m.nvm(('W', 2 if c == 0 else c))
        if 'bs' in opt and c in opt['bs'] and opt.get('bsw'): stamp(e, opt, 3 + opt['bs'].index(c))
        e("s_barrier")
        for d in DM.get(c, []): dma(d)
        if c == 0:
            if sp: dft_epilogue(e, m, opt, True)
            else: hflag(e, m)
            bstamp(e, opt, 1, 4)
        if c == 3: bstamp(e, opt, 1, 5)
        if opt.get('noy') and c >= opt['noy']: continue
        for x in W[c]:
            if callable(x): x()
            else: m.put(x)
    if not sp:
        e(f"s_cmp_lg_u32 s{WAVE}, 4"); e("s_cbranch_scc1 HN_tb")
        tokbump(e, "HN")
    write_stamps(e, opt)
    e("s_endpgm")
```

```python
from gen import *

BST = 16384
LY = 65536
YSL = 1056
YW = 17*YSL + 32
B_H, B_W2, B_WS, B_X, B_O = 4, 8, 12, 16, 20
B_WAVE, B_RB, B_EB, B_KQ = 24, 25, 26, 27
B_HOFF, B_WOFF, B_DM, B_CNT = 28, 29, 30, 31
B_T0, B_T1, B_T2, B_T3 = 32, 33, 34, 35
B_YM = 36
B_AE = 37
B_EXS, B_EXR, B_FLS, B_FLR = 38, 39, 40, 41
B_SPM = 42
B_M2 = 44
W_L = 1; W_HO = 2; W_ROW = 3
W_WD = 4
W_TR = 8
W_T = 12
W_FA = 32
W_H = 64
W_Y = 128
W_CS = 192; W_SN = 224

def b_loads(c):
    st = c % 4
    hl = [f"buffer_load_dwordx4 {v(W_H+16*st+4*i,4)}, {v(W_HO)}, {s(B_WS,4)}, {s(B_HOFF)} offen offset:{i*1024}" for i in range(4)]
    dm = [f"s_add_u32 m0, {s(B_DM)}, {st*BST + i*1024}\ns_nop 0\nbuffer_load_dwordx4 {v(W_WD+i)}, {s(B_W2,4)}, {s(B_WOFF)} offen lds" for i in range(4)]
    adv = [f"s_add_u32 {s(B_HOFF)}, {s(B_HOFF)}, 4096", f"s_add_u32 {s(B_WOFF)}, {s(B_WOFF)}, {64*2048}"]
    return hl, dm, adv

def b_tr(st, ks, n, slot):
    off = st*BST + ks*4096
    return [f"ds_read_b64_tr_b16 {v(W_FA+4*slot,2)}, {v(W_TR+n)} offset:{off}",
            f"ds_read_b64_tr_b16 {v(W_FA+4*slot+2,2)}, {v(W_TR+n)} offset:{off+2048}"]

ORD = [2, 3, 0, 1]

def b_super(e, opt, cm, hm, cr, hr, extra, zero=False):
    for q in range(8):
        ks = q // 4; n = ORD[q % 4]
        if cm is not None:
            if q % 2 == 0:
                e(f"s_waitcnt lgkmcnt({12 if cr is not None else max(0, 12-2*q)})")
            acc = a_(16*n, 16)
            c = "0" if (zero and ks == 0) else acc
            if not opt.get('bnomfma'):
                e(f"v_mfma_f32_32x32x16_bf16 {acc}, {v(W_FA+4*q,4)}, {v(W_H+16*(cm%4)+4*(2*hm+ks),4)}, {c}")
        if cr is not None:
            for ins in b_tr(cr % 4, 2*hr + ks, n, q):
                if not opt.get('bnords'): e(ins)
        for g, ins in extra:
            if opt.get('bnoh') and 'buffer_load' in ins and 'lds' not in ins: continue
            if opt.get('bnodma') and 'lds' in ins: continue
            if g == q: e(ins)

def b_body(e, opt, c, vm, vmem):
    e(f"s_waitcnt vmcnt({vm})")
    e("s_barrier")
    for half in range(2):
        extra = []
        gs = (1, 3, 5, 7, 2, 4, 6, 0)
        for i, ins in enumerate(vmem[half]): extra.append((gs[i] if i < 4 else 7, ins))
        if half == 0:
            b_super(e, opt, (c-1) if c > 0 else None, 1, c, 0, extra)
        else:
            b_super(e, opt, c, 0, c, 1, extra, zero=(c == 0))

def main_vmem(c):
    hl, dm, adv = b_loads(c)
    return [[hl[0], hl[1], dm[0], dm[1]], [hl[2], hl[3], dm[2], dm[3]] + adv]

def genB(e, opt):
    L = W_L; T = W_T
    e(".globl kb_kernel"); e(".p2align 8"); e(".type kb_kernel,@function"); e("kb_kernel:")
    e("s_cmp_ge_u32 s2, 256"); e("s_cbranch_scc1 LB_end")
    if opt.get('stampb'): e("s_memrealtime s[90:91]")
    if opt.get('tkb'): ticket(e, "LB", "LB_end", 160000)
    e(f"s_load_dwordx2 {s(B_W2,2)}, s[0:1], 56")
    e(f"s_load_dwordx2 {s(B_WS,2)}, s[0:1], 80")
    e(f"s_load_dwordx2 {s(B_X,2)}, s[0:1], 0")
    e(f"s_load_dwordx2 {s(B_O,2)}, s[0:1], 64")
    e(f"v_lshrrev_b32 {v(T)}, 6, v0"); e(f"v_and_b32 {v(L)}, 63, v0")
    e(f"v_readfirstlane_b32 {s(B_WAVE)}, {v(T)}")
    e(f"s_and_b32 {s(B_KQ)}, s2, 1")
    e(f"s_bfe_u32 {s(B_RB)}, s2, 0x20001"); e(f"s_lshl_b32 {s(B_RB)}, {s(B_RB)}, 2")
    e(f"s_bfe_u32 {s(B_T0)}, s2, 0x20003"); e(f"s_add_u32 {s(B_RB)}, {s(B_RB)}, {s(B_T0)}")
    e(f"s_lshr_b32 {s(B_EB)}, s2, 5")
    for r, n in ((B_W2, 3584*1024*2), (B_WS, 0x10000000), (B_X, 0x400000), (B_O, 0x400000)):
        e(f"s_mov_b32 {s(r+2)}, {n}"); e(f"s_mov_b32 {s(r+3)}, 0x00020000")
    e(f"s_lshl_b32 {s(B_T0)}, {s(B_RB)}, 2"); e(f"s_add_u32 {s(B_T0)}, {s(B_T0)}, {s(B_WAVE)}"); e(f"s_lshl_b32 {s(B_T0)}, {s(B_T0)}, 1")
    e(f"s_add_u32 {s(B_T0)}, {s(B_T0)}, {s(B_KQ)}"); e(f"s_mul_i32 {s(B_HOFF)}, {s(B_T0)}, {112*1024}")
    e(f"v_lshlrev_b32 {v(W_HO)}, 4, {v(L)}")
    e(f"s_mul_i32 {s(B_WOFF)}, {s(B_KQ)}, {1792*2048}")
    e(f"v_lshrrev_b32 {v(T)}, 4, {v(L)}")
    e(f"v_bfe_u32 {v(T+1)}, {v(L)}, 2, 2"); e(f"v_xor_b32 {v(T+1)}, {v(T+1)}, {v(T)}")
    e(f"s_lshl_b32 {s(B_T0)}, {s(B_EB)}, 7")
    e(f"s_sub_u32 {s(B_T1)}, {2048-128-128}, {s(B_T0)}")
    e(f"v_mov_b32 {v(T+2)}, {s(B_T0)}"); e(f"v_mov_b32 {v(T+3)}, {s(B_T1)}")
    e(f"v_cmp_lt_u32 vcc, 1, {v(T+1)}")
    e(f"s_lshl_b32 {s(B_T2)}, {s(B_WAVE)}, 4")
    e(f"v_add_u32 {v(T)}, {s(B_T2)}, {v(T)}")
    e(f"v_cndmask_b32 {v(T+2)}, {v(T+2)}, {v(T+3)}, vcc")
    e(f"v_lshl_add_u32 {v(T+2)}, {v(T+1)}, 6, {v(T+2)}")
    e(f"v_and_b32 {v(T+3)}, 3, {v(L)}"); e(f"v_lshl_add_u32 {v(T+2)}, {v(T+3)}, 4, {v(T+2)}")
    e(f"v_lshl_add_u32 {v(W_WD)}, {v(T)}, 11, {v(T+2)}")
    for i in range(1, 4):
        e(f"v_add_u32 {v(W_WD+i)}, {i*8192}, {v(W_WD)}")
    e(f"s_lshl_b32 {s(B_DM)}, {s(B_WAVE)}, 12")
    e("s_waitcnt lgkmcnt(0)")
    for c in range(3):
        vm = main_vmem(c)
        for ins in vm[0] + vm[1]: e(ins)
    e(f"v_bfe_u32 {v(T)}, {v(L)}, 2, 2"); e(f"v_lshrrev_b32 {v(T+1)}, 5, {v(L)}")
    e(f"v_lshl_add_u32 {v(T+2)}, {v(T+1)}, 2, {v(T)}"); e(f"v_lshlrev_b32 {v(T+2)}, 8, {v(T+2)}")
    e(f"v_bfe_u32 {v(T+3)}, {v(L)}, 4, 1"); e(f"v_lshl_add_u32 {v(T+2)}, {v(T+3)}, 5, {v(T+2)}")
    e(f"v_and_b32 {v(T+3)}, 3, {v(L)}"); e(f"v_lshl_add_u32 {v(T+2)}, {v(T+3)}, 3, {v(T+2)}")
    e(f"v_xor_b32 {v(T)}, {s(B_KQ)}, {v(T)}")
    for n in range(4):
        e(f"v_xor_b32 {v(T+3)}, {[0,3,1,2][n]}, {v(T)}")
        e(f"v_lshl_add_u32 {v(W_TR+n)}, {v(T+3)}, 6, {v(T+2)}")
    e(f"s_lshr_b32 {s(B_T0)}, {s(B_RB)}, 1"); e(f"s_lshl_b32 {s(B_T0)}, {s(B_T0)}, 6")
    e(f"s_and_b32 {s(B_T1)}, {s(B_RB)}, 1"); e(f"s_add_u32 {s(B_T0)}, {s(B_T0)}, {s(B_T1)}")
    e(f"v_and_b32 {v(T)}, 31, {v(L)}"); e(f"v_lshl_add_u32 {v(T)}, {v(T)}, 1, {s(B_T0)}")
    e(f"v_cmp_eq_u32 {s(B_SPM,2)}, 0, {v(T)}")
    e(f"s_add_u32 {s(B_T1)}, {s(B_WAVE)}, 1"); e(f"s_lshr_b32 {s(B_T1)}, {s(B_T1)}, 1"); e(f"s_lshl_b32 {s(B_T1)}, {s(B_T1)}, 10")
    e(f"s_and_b32 {s(B_T2)}, {s(B_WAVE)}, 1"); e(f"s_cmp_eq_u32 {s(B_T2)}, 1"); e(f"s_cselect_b32 {s(B_T2)}, -1, 1")
    e(f"v_mul_lo_u32 {v(W_ROW)}, {v(T)}, {s(B_T2)}"); e(f"v_add_u32 {v(W_ROW)}, {s(B_T1)}, {v(W_ROW)}")
    e(f"s_cmp_ge_u32 {s(B_WAVE)}, 2"); e(f"s_cselect_b32 {s(B_T2)}, 512, 0"); e(f"s_sub_u32 {s(B_T2)}, {s(B_T1)}, {s(B_T2)}")
    e(f"v_mov_b32 {v(T+2)}, {s(B_T2)}")
    e(f"v_cndmask_b32 {v(W_ROW)}, {v(W_ROW)}, {v(T+2)}, {s(B_SPM,2)}")
    e(f"v_lshlrev_b32 {v(W_ROW)}, 11, {v(W_ROW)}"); e(f"v_lshl_add_u32 {v(W_ROW)}, {v(T+1)}, 4, {v(W_ROW)}")
    gen_trig(e, opt, T, T+1)
    e(f"s_and_b32 {s(B_T0)}, {s(B_RB)}, 1"); e(f"s_mul_i32 {s(B_AE)}, {s(B_T0)}, {AE_PAR}")
    e(f"s_lshl_b32 {s(B_T0)}, {s(B_EB)}, 1"); e(f"s_add_u32 {s(B_T0)}, {s(B_T0)}, {s(B_KQ)}"); e(f"s_mul_i32 {s(B_T0)}, {s(B_T0)}, {AE_ET}")
    e(f"s_add_u32 {s(B_AE)}, {s(B_AE)}, {s(B_T0)}")
    e(f"s_mul_i32 {s(B_T0)}, {s(B_WAVE)}, {AE_C}"); e(f"s_add_u32 {s(B_AE)}, {s(B_AE)}, {s(B_T0)}"); e(f"s_add_u32 {s(B_AE)}, {s(B_AE)}, {WS_AE}")
    e(f"s_mul_i32 {s(B_YM)}, {s(B_WAVE)}, {YW}"); e(f"s_add_u32 {s(B_YM)}, {s(B_YM)}, {LY}")
    e(f"s_lshl_b32 {s(B_T0)}, s2, 2"); e(f"s_add_u32 {s(B_T0)}, {s(B_T0)}, {s(B_WAVE)}"); e(f"s_xor_b32 {s(B_T1)}, {s(B_T0)}, 4")
    e(f"s_lshl_b32 {s(B_EXS)}, {s(B_T0)}, 13"); e(f"s_add_u32 {s(B_EXS)}, {s(B_EXS)}, {WS_EX}")
    e(f"s_lshl_b32 {s(B_EXR)}, {s(B_T1)}, 13"); e(f"s_add_u32 {s(B_EXR)}, {s(B_EXR)}, {WS_EX}")
    e(f"s_lshl_b32 {s(B_FLS)}, {s(B_T0)}, 6"); e(f"s_add_u32 {s(B_FLS)}, {s(B_FLS)}, {WS_FL}")
    e(f"s_lshl_b32 {s(B_FLR)}, {s(B_T1)}, 6"); e(f"s_add_u32 {s(B_FLR)}, {s(B_FLR)}, {WS_FL}")
    X33 = T+4
    e(f"v_min_u32 {v(T+2)}, 33, {v(L)}")
    e(f"v_lshrrev_b32 {v(T+3)}, 1, {v(T+2)}"); e(f"v_and_b32 {v(T+2)}, 1, {v(T+2)}")
    e(f"v_mul_u32_u24 {v(T+5)}, {YSL}, {v(T+3)}"); e(f"v_lshl_add_u32 {v(T+5)}, {v(T+2)}, 4, {v(T+5)}")
    e(f"v_add_u32 {v(T+5)}, {s(B_YM)}, {v(T+5)}"); e(f"v_add_u32 {v(T+5)}, 1024, {v(T+5)}")
    e(f"v_and_b32 {v(T+6)}, 7, {v(T+3)}"); e(f"v_lshlrev_b32 {v(T+6)}, 10, {v(T+6)}"); e(f"v_lshl_add_u32 {v(T+6)}, {v(T+2)}, 9, {v(T+6)}")
    e(f"v_bfe_u32 {v(T+2)}, {v(T+3)}, 3, 1"); e(f"v_mul_u32_u24 {v(T+2)}, {AE_MAT}, {v(T+2)}"); e(f"v_add_u32 {v(T+6)}, {v(T+6)}, {v(T+2)}")
    e(f"v_lshrrev_b32 {v(T+2)}, 4, {v(T+3)}"); e(f"v_lshl_add_u32 {v(T+6)}, {v(T+2)}, 13, {v(T+6)}")
    e(f"v_add_u32 {v(X33)}, {AE_ET}, {v(T+6)}")
    e(f"s_lshl_b32 {s(B_T0)}, {s(B_EB)}, 7"); e(f"s_lshl_b32 {s(B_T1)}, {s(B_KQ)}, 6"); e(f"s_add_u32 s46, {s(B_T0)}, {s(B_T1)}")
    e(f"s_sub_u32 s47, {2048-64}, s46")
    if opt.get('stampb'): e("s_memrealtime s[88:89]"); e("s_memtime s[80:81]")
    b_body(e, opt, 0, 16, main_vmem(3))
    e(f"s_mov_b32 {s(B_CNT)}, 6")
    e(".p2align 3")
    e("LB_loop:")
    for c in range(1, 5):
        b_body(e, opt, c, 16, main_vmem(c+3))
    e(f"s_sub_u32 {s(B_CNT)}, {s(B_CNT)}, 1"); e(f"s_cmp_lg_u32 {s(B_CNT)}, 0"); e("s_cbranch_scc1 LB_loop")
    yl = []
    for sl in range(17):
        goff = (sl % 8)*1024 + (AE_MAT if 8 <= sl < 16 else 0) + (8192 if sl == 16 else 0)
        yl.append(f"s_add_u32 m0, {s(B_YM)}, {sl*YSL}\ns_add_u32 {s(B_T0)}, {s(B_AE)}, {goff}\nbuffer_load_dwordx4 {v(W_HO)}, {s(B_WS,4)}, {s(B_T0)} offen lds")
    yl.append(f"buffer_load_dwordx4 {v(T+8,4)}, {v(X33)}, {s(B_WS,4)}, {s(B_AE)} offen")
    XR = 240
    for i in range(4):
        yl.append(f"buffer_load_dwordx4 {a_(64+4*i,4)}, {v(W_ROW)}, {s(B_X,4)}, s{46 + i//2} offen offset:{(i%2)*32}")
    b_body(e, opt, 25, 16, [yl[0:4], yl[4:8]])
    b_body(e, opt, 26, 16, [yl[8:12], yl[12:16]])
    b_body(e, opt, 27, 16, [yl[16:20], yl[20:22]])
    b_super(e, opt, 27, 1, None, 0, [])
    if opt.get('stampb'): e("s_memrealtime s[86:87]"); e("s_memtime s[82:83]")
    e("s_nop 7"); e("s_nop 7")
    for i in range(8):
        if i == 4: e(f"s_add_u32 {s(B_EXS)}, {s(B_EXS)}, 4096")
        e(f"buffer_store_dwordx4 {a_(32+4*i,4)}, {v(W_HO)}, {s(B_WS,4)}, {s(B_EXS)} offen offset:{(i%4)*1024} sc0 sc1")
    e("s_waitcnt vmcnt(12)")
    e(f"ds_write_b128 {v(T+5)}, {v(T+8,4)}")
    e(f"v_add_u32 {v(T)}, {s(B_YM)}, {v(W_HO)}")
    e(f"v_and_b32 {v(T+2)}, 31, {v(L)}"); e(f"v_lshrrev_b32 {v(T+3)}, 5, {v(L)}")
    e(f"v_lshlrev_b32 {v(T+6)}, 5, {v(T+2)}"); e(f"v_sub_u32 {v(T+1)}, {v(T)}, {v(T+6)}"); e(f"v_add_u32 {v(T+1)}, 512, {v(T+1)}")
    e(f"v_lshlrev_b32 {v(T+6)}, 4, {v(T+3)}"); e(f"v_add_u32 {v(T+6)}, {s(B_YM)}, {v(T+6)}"); e(f"v_add_u32 {v(T+6)}, 1024, {v(T+6)}")
    e(f"v_cmp_eq_u32 vcc, 0, {v(T+2)}"); e("s_nop 1")
    e(f"v_cndmask_b32 {v(T+1)}, {v(T+1)}, {v(T+6)}, vcc")
    e("s_waitcnt lgkmcnt(0)")
    def yreads(kk):
        b = W_FA + 16*(kk%2)
        return [f"ds_read_b128 {v(b,4)}, {v(T)} offset:{kk*YSL}", f"ds_read_b128 {v(b+4,4)}, {v(T+1)} offset:{kk*YSL}",
                f"ds_read_b128 {v(b+8,4)}, {v(T)} offset:{(8+kk)*YSL}", f"ds_read_b128 {v(b+12,4)}, {v(T+1)} offset:{(8+kk)*YSL}"]
    for ins in yreads(0) + yreads(1): e(ins)
    GF = W_H
    e(f"ds_read_b128 {v(GF,4)}, {v(T)} offset:{16*YSL}"); e(f"ds_read_b128 {v(GF+4,4)}, {v(T+1)} offset:{16*YSL}")
    for kk in range(8):
        b = W_FA + 16*(kk%2)
        e(f"s_waitcnt lgkmcnt({6 if kk == 0 else 4 if kk < 7 else 0})")
        nxt = yreads(kk+2) if kk + 2 < 8 else []
        for q in range(4):
            acc = v(W_Y+16*q, 16)
            bf = v((W_CS if q < 2 else W_SN) + 4*kk, 4)
            e(f"v_mfma_f32_32x32x16_bf16 {acc}, {v(b+4*q,4)}, {bf}, {'0' if kk == 0 else acc}")
            if nxt: e(nxt[q])
        if kk == 3:
            e("s_waitcnt vmcnt(0)")
            e(f"v_mov_b32 {v(T+8)}, 1"); e(f"v_mov_b32 {v(T+9)}, 0")
            e("s_mov_b64 exec, 1")
            e(f"buffer_store_dword {v(T+8)}, {v(T+9)}, {s(B_WS,4)}, {s(B_FLS)} offen sc0 sc1")
            e("s_mov_b64 exec, -1")
    e(f"s_and_b32 {s(B_T0)}, {s(B_RB)}, 1"); e(f"s_or_b32 {s(B_T0)}, {s(B_T0)}, {s(B_WAVE)}"); e(f"s_cmp_lg_u32 {s(B_T0)}, 0"); e("s_cbranch_scc1 LB_nog")
    for q in range(2):
        acc = v(W_Y+16*q, 16)
        e(f"v_mfma_f32_32x32x16_bf16 {acc}, {v(GF+4*q,4)}, {v(T+12,4)}, {acc}")
    e("LB_nog:")
    e(f"s_and_b32 {s(B_T0)}, {s(B_WAVE)}, 1"); e(f"s_lshl_b32 {s(B_T0)}, {s(B_T0)}, 12")
    e(f"s_add_u32 {s(B_T1)}, {s(B_T0)}, {LY}"); e(f"v_add_u32 {v(T+2)}, {s(B_T1)}, {v(W_HO)}")
    e(f"s_sub_u32 {s(B_T1)}, {LY+12288}, {s(B_T0)}"); e(f"v_add_u32 {v(T+3)}, {s(B_T1)}, {v(W_HO)}")
    e(f"s_lshr_b32 {s(B_T0)}, {s(B_WAVE)}, 1"); e(f"s_lshl_b32 {s(B_T0)}, {s(B_T0)}, 12"); e(f"s_add_u32 {s(B_T0)}, {s(B_T0)}, {LY}")
    e(f"v_add_u32 {v(T+6)}, {s(B_T0)}, {v(W_HO)}"); e(f"v_add_u32 {v(T+7)}, 8192, {v(T+6)}")
    e(f"v_cndmask_b32 {v(T+6)}, {v(T+2)}, {v(T+6)}, {s(B_SPM,2)}")
    e(f"v_cndmask_b32 {v(T+7)}, {v(T+3)}, {v(T+7)}, {s(B_SPM,2)}")
    K2 = T+8; K1A = T+10; K1B = T+12+4
    e(f"s_cmp_ge_u32 {s(B_WAVE)}, 2"); e(f"s_cselect_b32 {s(B_T0)}, 0xbf800000, 0x3f800000")
    e(f"s_add_u32 {s(B_T1)}, {s(B_WAVE)}, 1"); e(f"s_bitcmp1_b32 {s(B_T1)}, 1"); e(f"s_cselect_b32 {s(B_T1)}, 0xbf800000, 0x3f800000")
    e(f"v_mov_b32 {v(K2)}, 1.0"); e(f"v_mov_b32 {v(K2+1)}, {s(B_T0)}")
    e(f"v_cndmask_b32 {v(K2)}, {v(K2)}, {v(K2+1)}, {s(B_SPM,2)}"); e(f"v_mov_b32 {v(K2+1)}, {v(K2)}")
    e(f"v_mul_f32 {v(K1A)}, {s(B_T1)}, {v(K2)}"); e(f"v_mov_b32 {v(K1A+1)}, {v(K1A)}")
    e(f"v_mov_b32 {v(K1B)}, {s(B_T1)}"); e(f"v_mov_b32 {v(K1B+1)}, {s(B_T1)}")
    e(f"s_bitcmp1_b32 {s(B_WAVE)}, 0"); e(f"s_cselect_b64 {s(B_M2,2)}, {s(B_SPM,2)}, 0")
    e(f"v_mov_b32 {v(T+18)}, -2.0"); e(f"v_mov_b32 {v(T+19)}, -2.0")
    e("s_nop 7"); e("s_nop 3")
    e(f"s_andn2_b64 exec, -1, {s(B_M2,2)}")
    for r in range(0, 32, 2):
        e(f"v_pk_add_f32 {v(W_Y+r,2)}, {v(W_Y+r,2)}, {v(W_Y+32+r,2)}")
    for r in range(0, 32, 2):
        e(f"v_pk_fma_f32 {v(W_Y+32+r,2)}, {v(W_Y+32+r,2)}, {v(T+18,2)}, {v(W_Y+r,2)}")
    e("s_mov_b64 exec, -1")
    for arr, src in ((0, 0), (2, 16), (1, 32), (3, 48)):
        for q in range(4):
            e(f"ds_write_b128 {v(T)}, {v(W_Y+src+4*q,4)} offset:{arr*4096+q*1024}")
    e("s_waitcnt lgkmcnt(0)")
    e("s_barrier")
    R = W_H
    for half in range(2):
        for c in range(4):
            ad = (T+2+half) if c % 2 == 0 else (T+6+half)
            for q in range(4):
                e(f"ds_read_b128 {v(R+16*c+4*q,4)}, {v(ad)} offset:{c*YW+q*1024}")
        K1 = K1A if half == 0 else K1B
        Y = W_Y + 16*half
        e("s_waitcnt lgkmcnt(4)")
        for r in range(0, 16, 2):
            e(f"v_pk_fma_f32 {v(Y+r,2)}, {v(R+32+r,2)}, {v(K2,2)}, {v(R+r,2)}")
        e("s_waitcnt lgkmcnt(0)")
        for r in range(0, 16, 2):
            e(f"v_pk_add_f32 {v(R+16+r,2)}, {v(R+16+r,2)}, {v(R+48+r,2)}")
        for r in range(0, 16, 2):
            e(f"v_pk_fma_f32 {v(Y+r,2)}, {v(R+16+r,2)}, {v(K1,2)}, {v(Y+r,2)}")
    for r in range(32):
        e(f"v_accvgpr_read_b32 {v(W_Y+32+r)}, {a_(r)}")
    for r in range(0, 32, 2):
        e(f"v_pk_add_f32 {v(W_Y+r,2)}, {v(W_Y+r,2)}, {v(W_Y+32+r,2)}")
    e(f"v_mov_b32 {v(T+9)}, 0")
    e(f"s_mov_b32 {s(B_CNT)}, 200000")
    e("LB_poll:")
    e(f"buffer_load_dword {v(T+8)}, {v(T+9)}, {s(B_WS,4)}, {s(B_FLR)} offen sc0 sc1")
    e("s_waitcnt vmcnt(0)")
    e(f"v_readfirstlane_b32 {s(B_T0)}, {v(T+8)}")
    e(f"s_cmp_eq_u32 {s(B_T0)}, 1"); e("s_cbranch_scc1 LB_got")
    e("s_sleep 1")
    e(f"s_sub_u32 {s(B_CNT)}, {s(B_CNT)}, 1"); e(f"s_cmp_lg_u32 {s(B_CNT)}, 0"); e("s_cbranch_scc1 LB_poll")
    e("LB_got:")
    if opt.get('stampb'): e("s_memrealtime s[84:85]")
    for i in range(8):
        if i == 4: e(f"s_add_u32 {s(B_EXR)}, {s(B_EXR)}, 4096")
        e(f"buffer_load_dwordx4 {v(R+4*i,4)}, {v(W_HO)}, {s(B_WS,4)}, {s(B_EXR)} offen offset:{(i%4)*1024} sc0 sc1")
    XV = W_Y + 32
    for r in range(16):
        e(f"v_accvgpr_read_b32 {v(XV+r)}, {a_(64+r)}")
    for i in range(4):
        e(f"s_waitcnt vmcnt({6-i})")
        Y = W_Y + 8*i
        for r in range(0, 8, 2):
            e(f"v_pk_add_f32 {v(Y+r,2)}, {v(Y+r,2)}, {v(R+8*i+r,2)}")
        e("s_nop 0")
        for r in range(4):
            e(f"v_permlane32_swap_b32 {v(Y+r)}, {v(Y+4+r)}")
        for d in range(4):
            e(f"v_lshlrev_b32 {v(T+2)}, 16, {v(XV+4*i+d)}"); e(f"v_and_b32 {v(T+3)}, 0xffff0000, {v(XV+4*i+d)}")
            e(f"v_pk_add_f32 {v(Y+2*d,2)}, {v(Y+2*d,2)}, {v(T+2,2)}")
            e(f"v_cvt_pk_bf16_f32 {v(XV+4*i+d)}, {v(Y+2*d)}, {v(Y+2*d+1)}")
        e(f"buffer_store_dwordx4 {v(XV+4*i,4)}, {v(W_ROW)}, {s(B_O,4)}, s{46 + i//2} offen offset:{(i%2)*32}")
    if opt.get('stampb'):
        e("s_waitcnt vmcnt(0)")
        e("s_memrealtime s[92:93]")
        e("s_waitcnt lgkmcnt(0)")
        e("v_mov_b32 v2, s90"); e("v_mov_b32 v3, s92"); e("v_mov_b32 v4, s88"); e("v_mov_b32 v5, s86"); e("v_mov_b32 v8, s84"); e("s_sub_u32 s82, s82, s80"); e("v_mov_b32 v9, s82")
        e("s_lshl_b32 s3, s2, 5"); e("s_add_u32 s3, s3, 0x3000000"); e("v_mov_b32 v6, s3")
        e("v_cmp_eq_u32 vcc, 0, v0"); e("s_and_saveexec_b64 s[94:95], vcc"); e("s_cbranch_execz LB_end")
        e(f"buffer_store_dwordx4 v[2:5], v6, {s(B_WS,4)}, 0 offen")
        e(f"buffer_store_dwordx2 v[8:9], v6, {s(B_WS,4)}, 0 offen offset:16")
    e("LB_end:"); e("s_endpgm")

def gen_trig(e, opt, vt, vhi):
    T = W_T
    A = W_Y
    TQ = T+8; TQS = T+9; B0 = T+10; B0S = T+11; D2 = T+16; D2S = T+18
    e(f"v_cvt_f32_u32 {v(TQ)}, {v(vt)}"); e(f"v_mul_f32 {v(TQ)}, 0x3a000000, {v(TQ)}")
    e(f"v_mov_b32 {v(T+2)}, 0x3e800000")
    e(f"v_cndmask_b32 {v(TQS)}, {v(TQ)}, {v(T+2)}, {s(B_SPM,2)}")
    e(f"v_lshl_add_u32 {v(T+2)}, {v(vhi)}, 5, {s(B_WAVE)}"); e(f"v_cvt_f32_u32 {v(T+2)}, {v(T+2)}")
    e(f"v_mul_f32 {v(B0)}, {v(TQ)}, {v(T+2)}"); e(f"v_mul_f32 {v(B0S)}, {v(TQS)}, {v(T+2)}")
    import struct
    fl = lambda x: hex(struct.unpack('<I', struct.pack('<f', float(x)))[0])
    for kk in range(2):
        for jj in range(8):
            e(f"v_fmaak_f32 {v(A+8*kk+jj)}, {v(TQ)}, {v(B0)}, 0" if False else f"v_mov_b32 {v(T+2)}, {fl(64*kk+4*jj)}")
            e(f"v_fma_f32 {v(A+8*kk+jj)}, {v(TQ)}, {v(T+2)}, {v(B0)}")
            e(f"v_fma_f32 {v(A+16+8*kk+jj)}, {v(TQS)}, {v(T+2)}, {v(B0S)}")
    e(f"v_mul_f32 {v(D2)}, 0x42800000, {v(TQ)}"); e(f"v_mul_f32 {v(D2S)}, 0x42800000, {v(TQS)}")
    e(f"v_mul_f32 {v(T+12)}, 0x44000000, {v(TQ)}"); e(f"v_mul_f32 {v(T+13)}, 0x44000000, {v(TQS)}")
    for r in [A+i for i in range(32)] + [D2, D2S, T+12, T+13]:
        e(f"v_fract_f32 {v(r)}, {v(r)}")
    for r in [A+i for i in range(16)] + [D2, D2S, T+12]:
        e(f"v_cos_f32 {v(r)}, {v(r)}")
    for r in [A+16+i for i in range(16)] + [T+13]:
        e(f"v_sin_f32 {v(r)}, {v(r)}")
    e("s_nop 0")
    e(f"v_add_f32 {v(D2)}, {v(D2)}, {v(D2)}"); e(f"v_add_f32 {v(D2S)}, {v(D2S)}, {v(D2S)}")
    e(f"v_mov_b32 {v(D2+1)}, {v(D2)}"); e(f"v_mov_b32 {v(D2S+1)}, {v(D2S)}")
    for kk in range(8):
        o = 8*(kk % 2)
        if kk >= 2:
            for base, D in ((A, D2), (A+16, D2S)):
                for jj in range(0, 8, 2):
                    e(f"v_pk_fma_f32 {v(base+o+jj,2)}, {v(base+8-o+jj,2)}, {v(D,2)}, {v(base+o+jj,2)} neg_lo:[0,0,1] neg_hi:[0,0,1]")
        for d in range(4):
            e(f"v_cvt_pk_bf16_f32 {v(W_CS+4*kk+d)}, {v(A+o+2*d)}, {v(A+o+2*d+1)}")
            e(f"v_cvt_pk_bf16_f32 {v(W_SN+4*kk+d)}, {v(A+16+o+2*d)}, {v(A+16+o+2*d+1)}")
        if kk == 0:
            e(f"v_cvt_pk_bf16_f32 {v(T+2)}, {v(T+13)}, {v(A+16+1)}")
            e(f"s_cmp_eq_u32 {s(B_WAVE)}, 0"); e(f"s_cselect_b32 {s(B_M2)}, -1, 0"); e(f"s_mov_b32 {s(B_M2+1)}, 0")
            e(f"v_cndmask_b32 {v(W_SN)}, {v(W_SN)}, {v(T+2)}, {s(B_M2,2)}")
    e(f"v_cvt_pk_bf16_f32 {v(T+12)}, {v(T+12)}, {v(T+12)}")
    for r in (13, 14, 15): e(f"v_mov_b32 {v(T+r)}, 0")
```

```python
import sys, struct
from gen import Asm, v, s, kernel_desc, AE_C, AE_ET, AE_PAR, AE_MAT

WS_H  = 0x0000000
WS_AE = 0x1000000
WS_EX = 0x1800000
WS_NM = 0x2000000
WS_RS = 0x2008000
WS_MF = 0x200A000
WS_CS = 0x2010000
WS_FL = 0x2100000
WS_FD = 0x2108000
WS_TOK = 0x2108800
WS_STAMP = 0x3000000

WST = 32768; LX = 98304; XST = 16384; LDF = 28672
RING = [114688, 147456, 131072, 0, 16384, 98304]
LOH = 32768
PARTNER = 2

SX, SW, SWS, SW2, SO = 4, 8, 12, 16, 20
TOK = 24; KEY2 = 25; SWF = 26
WAVE, RB, KQ, CBP, WR, WC, C16, TB = range(28, 36)
T0, T1, T2, T3 = 36, 37, 38, 39
XOFF, WOFF, MX, MW, CNT, KEY, WADV, WEND = range(40, 48)
SFL, SFD, W2OFF, W2END, MW2, HOFF0, HOFF1, HEND = range(48, 56)
SPM = 56
M2 = 58
FM = 60
SH0, SH1 = 62, 63
SC1, SC2 = 64, 65
SAE, SEXS, SEXR, BND = 66, 67, 68, 69
U0 = 70

L = 1; VXD = 2; VWD = 4; VWB = 8; VXB = 16; VL16 = 18; VZ = 19; T = 20; VTOK = 0
FW = 40; FX = 56; EO = 88; VW2D = 120; ACC = 128

fl = lambda x: hex(struct.unpack('<I', struct.pack('<f', float(x)))[0])

class Em:
    def __init__(self, e, opt): self.e = e; self.dq = []; self.vq = []; self.opt = opt
    def put(self, it):
        if isinstance(it, str): self.e(it); return
        k = it[0]
        if k == 'ds':
            if self.opt.get('nords') and 'read' in it[1]: return
            self.e(it[1]); self.dq.append(set(it[2]))
        elif k == 'vm':
            if self.opt.get('nodma') and it[1].endswith('lds'): return
            self.e(it[1]); self.vq.append(it[2])
        elif k == 'nds': self.nds(it[1])
        elif k == 'nvm': self.nvm(*it[1:])
        else: raise Exception(it)
    def all(self, l):
        for x in l: self.put(x)
    def nds(self, regs):
        regs = set(regs); last = -1
        for i, r in enumerate(self.dq):
            if r & regs: last = i
        if last >= 0:
            n = min(15, len(self.dq) - 1 - last)
            self.e(f"s_waitcnt lgkmcnt({n})")
            self.dq = self.dq[len(self.dq)-n:] if n else []
    def nvm(self, *tags):
        last = -1
        for i, t in enumerate(self.vq):
            if t in tags: last = i
        if last >= 0:
            n = min(63, len(self.vq) - 1 - last)
            self.e(f"s_waitcnt vmcnt({n})")
            self.vq = self.vq[len(self.vq)-n:] if n else []
    def vm0(self): self.e("s_waitcnt vmcnt(0)"); self.vq = []
    def ds0(self): self.e("s_waitcnt lgkmcnt(0)"); self.dq = []

def stamp(e, opt, i):
    if opt.get('stamp'): e(f"{'s_memtime' if opt.get('cyc') else 's_memrealtime'} s[{80+2*i}:{81+2*i}]")

def vrow(e, vimg, vt, out, a, b):
    e(f"v_add_u32 v{a}, 1, v{vimg}"); e(f"v_lshrrev_b32 v{a}, 1, v{a}"); e(f"v_lshlrev_b32 v{a}, 10, v{a}")
    e(f"v_and_b32 v{b}, 1, v{vimg}"); e(f"v_cmp_eq_u32 vcc, 1, v{b}")
    e(f"v_sub_u32 v{out}, v{a}, v{vt}"); e(f"v_add_u32 v{b}, v{a}, v{vt}")
    e(f"v_cndmask_b32 v{out}, v{b}, v{out}, vcc")
    e(f"v_cmp_eq_u32 vcc, 0, v{vt}")
    e(f"v_lshrrev_b32 v{b}, 1, v{vimg}"); e(f"v_lshlrev_b32 v{b}, 9, v{b}"); e(f"v_sub_u32 v{b}, v{a}, v{b}")
    e(f"v_cndmask_b32 v{out}, v{out}, v{b}, vcc")

def bf16r(e, d):
    e(f"v_cvt_pk_bf16_f32 v{d}, v{d}, v{d}"); e(f"v_lshlrev_b32 v{d}, 16, v{d}")

def a_dmas(st):
    out = []
    for j in range(2):
        out.append((f"s_add_u32 m0, s{MX}, {st*XST}" if j == 0 else None,
                    f"buffer_load_dwordx4 v{VXD+j}, {s(SX,4)}, s{XOFF} offen offset:{j*1024} lds"))
    for j in range(4):
        out.append((f"s_add_u32 m0, s{MW}, {st*WST}" if j == 0 else None,
                    f"buffer_load_dwordx4 v{VWD+j}, {s(SW,4)}, s{WOFF} offen offset:{j*1024} lds"))
    return out
A_ADV = [f"s_add_u32 s{XOFF}, s{XOFF}, 128", f"s_and_b32 s{XOFF}, s{XOFF}, 0x7ff",
         f"s_add_u32 s{WOFF}, s{WOFF}, s{WADV}", f"s_cmp_eq_u32 s{WOFF}, s{WEND}", f"s_cselect_b32 s{WOFF}, 0, s{WOFF}"]

def w2_dmas(i):
    out = []
    for j in range(4):
        out.append((f"s_add_u32 m0, s{MW2}, {RING[i % 6]}" if j == 0 else None,
                    f"buffer_load_dwordx4 v{VW2D+j}, {s(SW2,4)}, s{W2OFF} offen offset:{j*1024} lds"))
    return out
W2_ADV = [f"s_add_u32 s{W2OFF}, s{W2OFF}, {64*2048}", f"s_cmp_ge_u32 s{W2OFF}, s{W2END}",
          f"s_cselect_b32 s{T3}, {1792*2048}, 0", f"s_sub_u32 s{W2OFF}, s{W2OFF}, s{T3}"]

def prologue(e, m, opt):
    e("s_cmp_ge_u32 s2, 256"); e("s_cbranch_scc1 L_end")
    stamp(e, opt, 0)
    e(f"s_load_dwordx2 {s(SX,2)}, s[0:1], 0"); e(f"s_load_dwordx2 {s(SWS,2)}, s[0:1], 80")
    e(f"v_lshrrev_b32 v{T}, 6, v0"); e(f"v_and_b32 v{L}, 63, v0"); e(f"v_readfirstlane_b32 s{WAVE}, v{T}")
    MAP = opt.get('map', 1)
    e(f"s_bfe_u32 s{KQ}, s2, {['0x10001', '0x10000', '0x10003'][MAP]}")
    e(f"s_lshl_b32 s{T0}, s{KQ}, 3"); e(f"s_add_u32 s{T1}, s{T0}, 24")
    e(f"s_cmp_eq_u32 s{WAVE}, 7"); e(f"s_cselect_b32 s{T1}, s{T1}, 48")
    e(f"s_load_dwordx2 {s(SW,2)}, s[0:1], s{T1}")
    e(f"s_mov_b32 s{SW+2}, {1024*3584*2}"); e(f"s_mov_b32 s{WADV}, {64*7168}")
    e(f"s_cselect_b32 s{SW+2}, {1024*1024*2}, s{SW+2}")
    e(f"s_cselect_b32 s{WADV}, {64*2048}, s{WADV}")
    if opt.get('pp', 1):
        e(f"s_cmp_lt_u32 s{WAVE}, 4"); e("s_cbranch_scc1 L_pp"); e(f"s_setprio {opt.get('pp', 1)}"); e("L_pp:")
    if MAP == 0:
        e(f"s_and_b32 s{RB}, s2, 1"); e(f"s_lshl_b32 s{RB}, s{RB}, 3"); e(f"s_bfe_u32 s{T1}, s2, 0x30003"); e(f"s_add_u32 s{RB}, s{RB}, s{T1}")
        e(f"s_and_b32 s{CBP}, s2, 4"); e(f"s_lshr_b32 s{T1}, s2, 6"); e(f"s_add_u32 s{CBP}, s{CBP}, s{T1}")
    elif MAP == 1:
        e(f"s_and_b32 s{RB}, s2, 6"); e(f"s_lshl_b32 s{RB}, s{RB}, 1"); e(f"s_bfe_u32 s{T1}, s2, 0x20003"); e(f"s_add_u32 s{RB}, s{RB}, s{T1}")
        e(f"s_lshr_b32 s{CBP}, s2, 5")
    else:
        e(f"s_and_b32 s{RB}, s2, 7"); e(f"s_lshl_b32 s{RB}, s{RB}, 1"); e(f"s_bfe_u32 s{T1}, s2, 0x10004"); e(f"s_add_u32 s{RB}, s{RB}, s{T1}")
        e(f"s_lshr_b32 s{CBP}, s2, 5")
    e(f"s_add_u32 s{C16}, s{T0}, s{CBP}")
    e(f"s_lshr_b32 s{TB}, s{RB}, 1"); e(f"s_lshl_b32 s{TB}, s{TB}, 6"); e(f"s_and_b32 s{T1}, s{RB}, 1"); e(f"s_add_u32 s{TB}, s{TB}, s{T1}")
    e(f"s_mov_b32 s{SX+2}, 0x400000"); e(f"s_mov_b32 s{SX+3}, 0x00020000"); e(f"s_mov_b32 s{SW+3}, 0x00020000")
    e(f"s_lshl_b32 s{XOFF}, s{RB}, 7"); e(f"s_mul_i32 s{WOFF}, s{RB}, s{WADV}")
    e(f"s_lshl_b32 s{MW}, s{WAVE}, 12"); e(f"s_lshl_b32 s{MX}, s{WAVE}, 11"); e(f"s_add_u32 s{MX}, s{MX}, {LX}")
    e(f"s_lshr_b32 s{T0}, s{WAVE}, 2"); e(f"s_lshl_b32 s{T0}, s{T0}, 1"); e(f"s_add_u32 s{T0}, s{T0}, s{TB}")
    e(f"s_and_b32 s{T1}, s{WAVE}, 3")
    e(f"s_add_u32 s{T2}, s{T1}, 1"); e(f"s_lshr_b32 s{T2}, s{T2}, 1"); e(f"s_lshl_b32 s{T2}, s{T2}, 10")
    e(f"s_bitcmp1_b32 s{T1}, 0"); e(f"s_cselect_b32 s{T3}, -1, 1")
    e(f"s_lshr_b32 s{T1}, s{T1}, 1"); e(f"s_lshl_b32 s{T1}, s{T1}, 9"); e(f"s_sub_u32 s{T1}, s{T2}, s{T1}")
    e(f"v_lshrrev_b32 v{T}, 3, v{L}")
    e(f"v_lshl_add_u32 v{T+1}, v{T}, 2, s{T0}")
    e(f"v_cmp_eq_u32 vcc, 0, v{T+1}")
    e(f"v_mul_lo_u32 v{T+2}, v{T+1}, s{T3}"); e(f"v_add_u32 v{T+2}, s{T2}, v{T+2}")
    e(f"s_lshl_b32 s{T3}, s{T3}, 5"); e(f"v_add_u32 v{T+3}, s{T3}, v{T+2}")
    e(f"v_mov_b32 v{T+4}, s{T1}"); e(f"v_cndmask_b32 v{T+2}, v{T+2}, v{T+4}, vcc")
    e(f"v_lshrrev_b32 v{T+4}, 1, v{T}"); e(f"v_xor_b32 v{T+4}, v{T+4}, v{L}"); e(f"v_and_b32 v{T+4}, 7, v{T+4}"); e(f"v_lshlrev_b32 v{T+4}, 4, v{T+4}")
    e(f"v_lshl_add_u32 v{VXD}, v{T+2}, 11, v{T+4}")
    e(f"v_xor_b32 v{T+4}, 64, v{T+4}"); e(f"v_lshl_add_u32 v{VXD+1}, v{T+3}, 11, v{T+4}"); e(f"v_subrev_u32 v{VXD+1}, 1024, v{VXD+1}")
    e(f"s_cmp_eq_u32 s{WAVE}, 7"); e("s_cbranch_scc1 L_wd7")
    e(f"s_lshl_b32 s{T0}, s{WAVE}, 8"); e(f"s_mul_i32 s{T1}, s{C16}, 448"); e(f"s_add_u32 s{T1}, s{T1}, s{MW}")
    e(f"v_add_u32 v{T}, s{T0}, v{L}"); e(f"v_mul_u32_u24 v{T}, 2341, v{T}"); e(f"v_lshl_add_u32 v{T+5}, v{L}, 4, s{T1}")
    e(f"s_movk_i32 s{T2}, {7168-448}")
    for j in range(4):
        if j: e(f"v_add_u32 v{T}, {64*2341}, v{T}")
        e(f"v_lshrrev_b32 v{T+1}, 16, v{T}")
        e(f"v_bfe_u32 v{T+3}, v{T}, 19, 1"); e(f"v_mad_u32_u24 v{T+2}, v{T+1}, s{T2}, v{T+5}")
        e(f"v_lshlrev_b32 v{T+3}, 5, v{T+3}"); e(f"v_xor_b32 v{VWD+j}, v{T+2}, v{T+3}")
    e("s_branch L_wdj")
    e("L_wd7:")
    e(f"v_lshrrev_b32 v{T}, 2, v{L}")
    e(f"v_lshrrev_b32 v{T+1}, 3, v{L}"); e(f"v_xor_b32 v{T+1}, v{T+1}, v{L}")
    e(f"v_and_b32 v{T+1}, 2, v{T+1}"); e(f"v_lshlrev_b32 v{T}, 12, v{T}")
    e(f"v_and_or_b32 v{T+1}, v{L}, 1, v{T+1}"); e(f"v_lshl_add_u32 v{T}, v{T+1}, 4, v{T}")
    e(f"s_lshl_b32 s{T0}, s{CBP}, 6"); e(f"v_add_u32 v{VWD}, s{T0}, v{T}")
    for j in range(1, 4):
        e(f"v_add_u32 v{VWD+j}, {(j&1)*65536 + (j>>1)*2048 - j*1024}, v{VWD}")
    e("L_wdj:")
    e(f"s_lshl_b32 s{WEND}, s{WADV}, 4"); e(f"s_mov_b32 s{T0}, {WS_TOK}")
    e("s_waitcnt lgkmcnt(0)")
    def burst(c):
        for mm, d in a_dmas(c):
            if mm: e(mm); e("s_nop 0")
            m.put(('vm', d, ('A', c)))
        for x in A_ADV: e(x)
    burst(0)
    e(f"s_load_dword s{TOK}, {s(SWS,2)}, s{T0}")
    e(f"s_load_dwordx2 {s(SW2,2)}, s[0:1], 56"); e(f"s_load_dwordx2 {s(SO,2)}, s[0:1], 64")
    e(f"s_and_b32 s{WR}, s{WAVE}, 1"); e(f"s_lshr_b32 s{WC}, s{WAVE}, 1")
    e(f"v_bfe_u32 v{T}, v{L}, 2, 2"); e(f"v_lshrrev_b32 v{T+1}, 4, v{L}")
    e(f"v_lshl_add_u32 v{T+2}, v{T+1}, 3, v{T}"); e(f"v_mul_u32_u24 v{T+2}, 448, v{T+2}")
    e(f"v_and_b32 v{T+3}, 3, v{L}"); e(f"v_lshlrev_b32 v{T+3}, 3, v{T+3}"); e(f"v_add_u32 v{T+2}, v{T+2}, v{T+3}")
    e(f"v_and_b32 v{T+4}, 1, v{T+1}")
    e(f"s_lshl_b32 s{T0}, s{WAVE}, 1"); e(f"s_cmp_eq_u32 s{WC}, 3"); e(f"s_cselect_b32 s{T0}, 12, s{T0}"); e(f"s_cselect_b64 {s(M2,2)}, -1, 0")
    e(f"v_xor_b32 v{T+5}, s{T0}, v{T+4}")
    e(f"v_bfe_u32 v{T+6}, v{L}, 2, 4"); e(f"v_lshl_add_u32 v{T+6}, v{T+6}, 6, v{T+3}"); e(f"v_add_u32 v{T+6}, {LDF}, v{T+6}")
    e(f"v_lshl_add_u32 v{T+6}, v{T+4}, 5, v{T+6}"); e(f"v_xor_b32 v{T+7}, 32, v{T+6}")
    for n in range(4):
        e(f"v_xor_b32 v{T+3}, {n}, v{T+5}"); e(f"v_lshl_add_u32 v{VWB+n}, v{T+3}, 5, v{T+2}")
        if n >= 2: e(f"v_cndmask_b32 v{VWB+n}, v{VWB+n}, v{T+4+n}, {s(M2,2)}")
    e(f"v_and_b32 v{T}, 15, v{L}"); e(f"v_lshlrev_b32 v{T+2}, 7, v{T}")
    e(f"s_lshl_b32 s{T0}, s{WR}, 13"); e(f"s_add_u32 s{T0}, s{T0}, {LX}"); e(f"v_add_u32 v{T+2}, s{T0}, v{T+2}")
    e(f"v_lshrrev_b32 v{T}, 1, v{T}"); e(f"v_xor_b32 v{T}, v{T}, v{T+1}")
    e(f"v_lshl_add_u32 v{VXB}, v{T}, 4, v{T+2}"); e(f"v_xor_b32 v{VXB+1}, 64, v{VXB}")
    ms = misc_setup()
    dl = a_dmas(1)
    for i, (mm, d) in enumerate(dl):
        if mm: e(mm); e("s_nop 0")
        m.put(('vm', d, ('A', 1)))
        for grp in ms[(i*len(ms))//6:((i+1)*len(ms))//6]: m.all(grp)
    for x in A_ADV: e(x)
    e(f"v_lshlrev_b32 v{VL16}, 4, v{L}")
    e(f"s_lshl_b32 s{U0}, s{C16}, 3"); e(f"s_add_u32 s{U0}, s{U0}, s{WAVE}")
    e(f"s_and_b32 s{T0}, s{U0}, 15"); e(f"s_lshl_b32 s{T0}, s{T0}, 2"); e(f"s_add_u32 s{T0}, s{T0}, s{TB}")
    e(f"s_lshl_b32 s{T1}, s{KQ}, 1"); e(f"s_add_u32 s{T0}, s{T0}, s{T1}")
    e(f"s_bfe_u32 s{T1}, s{U0}, 0x20004")
    e(f"s_add_u32 s{T2}, s{T1}, 1"); e(f"s_lshr_b32 s{T2}, s{T2}, 1"); e(f"s_lshl_b32 s{T2}, s{T2}, 10")
    e(f"s_add_u32 s{T3}, s{T2}, s{T0}"); e(f"s_sub_u32 s{U0+1}, s{T2}, s{T0}")
    e(f"s_bitcmp1_b32 s{T1}, 0"); e(f"s_cselect_b32 s{T3}, s{U0+1}, s{T3}")
    e(f"s_lshr_b32 s{T1}, s{T1}, 1"); e(f"s_lshl_b32 s{T1}, s{T1}, 9"); e(f"s_sub_u32 s{T1}, s{T2}, s{T1}")
    e(f"s_cmp_eq_u32 s{T0}, 0"); e(f"s_cselect_b32 s{T3}, s{T1}, s{T3}")
    e(f"s_lshl_b32 s{T3}, s{T3}, 11")
    m.put(('vm', f"buffer_load_dwordx4 {v(SR,4)}, v{VL16}, {s(SX,4)}, s{T3} offen", 'st'))
    m.put(('vm', f"buffer_load_dwordx4 {v(SR+4,4)}, v{VL16}, {s(SX,4)}, s{T3} offen offset:1024", 'st'))
    e(f"s_lshl_b32 s{T0}, s{RB}, 7"); e(f"s_add_u32 s{U0}, s{U0}, s{T0}"); e(f"s_lshl_b32 s{T0}, s{U0}, 4"); e(f"s_add_u32 s{T0}, s{T0}, {WS_NM}")
    e(f"s_lshl_b32 s{T1}, s{U0}, 2"); e(f"s_add_u32 s{T1}, s{T1}, {WS_RS}"); e(f"s_add_u32 s{T2}, s{T1}, {WS_MF-WS_RS}")
    if opt.get('astamp') == 1: stamp(e, opt, 3)

ONES = 124; CS0 = 224
SR = 232
PSEL = 36

def misc_setup():
    D = []; g = D.append
    g([f"v_mov_b32 v{ONES+r}, 0x3f803f80" for r in range(4)])
    g([f"v_add_u32 v{VWB+4+n}, 0x10000, v{VWB+n}" for n in range(4)])
    for r, n in ((SWS, 0x10000000), (SW2, 3584*1024*2), (SO, 0x400000)):
        g([f"s_mov_b32 s{r+2}, {n}", f"s_mov_b32 s{r+3}, 0x00020000"])
    g([f"s_lshl_b32 s{T0}, s{RB}, 4", f"s_add_u32 s{T0}, s{T0}, s{C16}", f"s_lshl_b32 s{T0}, s{T0}, 5", f"s_add_u32 s{T0}, s{T0}, s{WAVE}",
       f"s_lshl_b32 s{SFL}, s{T0}, 2", f"s_add_u32 s{SFL}, s{SFL}, {WS_FL}"])
    g([f"s_and_b32 s{T0}, s{RB}, 1", f"s_lshl_b32 s{T1}, s{WR}, 1", f"s_add_u32 s{T0}, s{T0}, s{T1}", f"s_lshl_b32 s{T0}, s{T0}, 3",
       f"s_lshr_b32 s{T1}, s{RB}, 1", f"s_add_u32 s{T0}, s{T0}, s{T1}", f"s_lshl_b32 s{T0}, s{T0}, 4", f"s_add_u32 s{T0}, s{T0}, s{C16}"])
    g([f"s_lshl_b32 s{SFD}, s{T0}, 2", f"s_add_u32 s{SFD}, s{SFD}, {WS_FD}"])
    g([f"v_lshrrev_b32 v{T+1}, 4, v{L}", f"s_lshl_b32 s{T0}, s{WR}, 4", f"v_add_u32 v{T}, s{T0}, v{T+1}"])
    g([f"v_bfe_u32 v{T+2}, v{L}, 1, 3", f"v_xor_b32 v{T+2}, v{T+2}, v{T+1}"])
    g([f"s_lshl_b32 s{T0}, s{CBP}, 7", f"s_sub_u32 s{T1}, {2048-256}, s{T0}", f"v_mov_b32 v{T+3}, s{T0}", f"v_mov_b32 v{T+4}, s{T1}"])
    g([f"v_and_b32 v{T+5}, 1, v{L}", f"v_lshlrev_b32 v{T+5}, 4, v{T+5}", f"v_lshl_add_u32 v{T+5}, v{T}, 11, v{T+5}"])
    for j in range(2):
        g(([f"v_xor_b32 v{T+2}, 4, v{T+2}"] if j else []) + [f"v_cmp_lt_u32 vcc, 3, v{T+2}", f"v_lshl_add_u32 v{T+7}, v{T+2}, 5, v{T+5}"])
        g([f"v_cndmask_b32 v{T+6}, v{T+3}, v{T+4}, vcc", f"v_add_u32 v{VW2D+j}, v{T+6}, v{T+7}"])
    g([f"v_add_u32 v{VW2D+1}, {8192-1024}, v{VW2D+1}", f"v_add_u32 v{VW2D+2}, {16384-2048}, v{VW2D}", f"v_add_u32 v{VW2D+3}, {16384-2048}, v{VW2D+1}"])
    g([f"s_and_b32 s{MW2}, s{WAVE}, 3", f"s_lshl_b32 s{MW2}, s{MW2}, 12",
       f"s_mul_i32 s{T0}, s{KQ}, 56", f"s_add_u32 s{W2END}, s{T0}, 56", f"s_lshl_b32 s{W2END}, s{W2END}, 16"])
    g([f"s_mul_i32 s{T1}, s{CBP}, 7", f"s_add_u32 s{T0}, s{T0}, s{T1}", f"s_bfe_u32 s{T1}, s{WAVE}, 0x10001", f"s_add_u32 s{T0}, s{T0}, s{T1}",
       f"s_lshl_b32 s{W2OFF}, s{T0}, 16"])
    g([f"s_cmp_eq_u32 s{WAVE}, 0", f"s_cselect_b32 s{KEY}, 3, 60", f"s_cselect_b32 s{KEY2}, 1, 60"])
    g([f"v_and_b32 v{T+1}, 15, v{L}", f"s_lshl_b32 s{T0}, s{RB}, 4", f"v_add_u32 v{T+2}, s{T0}, v{T+1}", f"v_lshlrev_b32 v{T}, 4, v{T+1}", f"v_add_u32 v{T+1}, s{C16}, v{T}"])
    g([f"v_and_b32 v{T+3}, 16, v{L}", f"v_cmp_eq_u32 vcc, 0, v{T+3}", f"s_mov_b32 s{SWF}, {WS_FL+64}", f"v_cndmask_b32 v{T+1}, v{T+1}, v{T+2}, vcc", f"v_lshlrev_b32 v{T+1}, 7, v{T+1}"])
    g([f"s_lshl_b32 s{T0}, s{WAVE}, 1", f"s_min_u32 s{T0}, s{T0}, 12", f"s_lshl_b32 s{T0}, s{T0}, 8",
       f"s_lshl_b32 s{T1}, s{C16}, 14", f"s_add_u32 s{T0}, s{T0}, s{T1}", f"s_add_u32 s{U0+2}, s{T1}, {WS_CS}"])
    g([f"s_lshr_b32 s{T1}, s{RB}, 2", f"s_lshl_b32 s{T1}, s{T1}, 12", f"s_add_u32 s{T0}, s{T0}, s{T1}",
       f"s_and_b32 s{T1}, s{RB}, 3", f"s_lshl_b32 s{T1}, s{T1}, 2", f"s_add_u32 s{T0}, s{T0}, s{T1}", f"s_add_u32 s{U0+3}, s{T0}, {WS_CS}"])
    g([f"v_lshrrev_b32 v{T+3}, 5, v{L}", f"v_lshl_add_u32 v{T}, v{T+3}, 8, v{T}", f"v_cmp_gt_u32 vcc, 32, v{L}"])
    g([f"v_mov_b32 v{T+8}, 0", f"v_mov_b32 v{T+9}, 0", f"v_mov_b32 v{VZ}, 0"])
    return D

def deferred(opt):
    D = []; g = D.append
    S1, S2, S3, S4, ON, NM = T+8, T+9, T+10, T+11, ONES, T+12
    g([f"s_add_u32 s{TOK}, s{TOK}, 1", f"v_mov_b32 v{VTOK}, s{TOK}"])
    for d in range(8):
        g([f"v_dot2c_f32_bf16 v{S1}, v{SR+d}, v{ON}"]); g([f"v_dot2c_f32_bf16 v{S2}, v{SR+d}, v{SR+d}"])
    g([f"v_cndmask_b32 v{CS0}, v{CS0+4}, v{CS0}, vcc"]); g([f"v_cvt_pk_bf16_f32 v{CS0+1}, v{CS0}, v{CS0}"]); g([f"v_lshlrev_b32 v{CS0+1}, 16, v{CS0+1}"])
    g([f"v_sub_f32 v{CS0+1}, v{CS0}, v{CS0+1}"]); g([f"v_cvt_pk_bf16_f32 v{CS0+1}, v{CS0}, v{CS0+1}"])
    g([('vm', f"buffer_store_dword v{CS0+1}, v{T}, {s(SWS,4)}, s{U0+3} offen sc0 sc1", 'x')])
    for dpp in ("quad_perm:[1,0,3,2] row_mask:0xf", "quad_perm:[2,3,0,1] row_mask:0xf", "row_half_mirror row_mask:0xf", "row_mirror row_mask:0xf",
                "row_bcast:15 row_mask:0xa", "row_bcast:31 row_mask:0xc"):
        g(["s_nop 0", f"v_add_f32_dpp v{S1}, v{S1}, v{S1} {dpp} bank_mask:0xf"]); g(["s_nop 0", f"v_add_f32_dpp v{S2}, v{S2}, v{S2} {dpp} bank_mask:0xf"])
    def bfr(d): g([f"v_cvt_pk_bf16_f32 v{d}, v{d}, v{d}"]); g([f"v_lshlrev_b32 v{d}, 16, v{d}"])
    g([f"v_mul_f32 v{S1}, 0x3a800000, v{S1}"]); g([f"v_mul_f32 v{S2}, 0x3a800000, v{S2}"]); g([f"v_fma_f32 v{S2}, -v{S1}, v{S1}, v{S2}"])
    bfr(S2); g([f"v_add_f32 v{S2}, 0x3727c5ac, v{S2}"])
    bfr(S2); g([f"v_sqrt_f32 v{S2}, v{S2}"])
    g([f"v_cvt_pk_bf16_f32 v{NM}, -v{S1}, -v{S1}"]); bfr(S1)
    bfr(S2); g([f"v_rcp_f32 v{S2}, v{S2}"])
    for r in (1, 2, 3): g([f"v_mov_b32 v{NM+r}, v{NM}"])
    g(["s_mov_b32 exec_lo, 0", "s_brev_b32 exec_hi, 1",
       ('vm', f"buffer_store_dwordx4 {v(NM,4)}, v{VZ}, {s(SWS,4)}, s{T0} offen sc0 sc1", 'x'),
       ('vm', f"buffer_store_dword v{S1}, v{VZ}, {s(SWS,4)}, s{T2} offen sc0 sc1", 'x'),
       ('vm', f"buffer_store_dword v{S2}, v{VZ}, {s(SWS,4)}, s{T1} offen sc0 sc1", 'x'),
       "s_mov_b64 exec, -1"])
    return D

def phaseA(e, m, opt, sp):
    P = "LS" if sp else "LN"
    A = PhaseA(e, m, opt, sp)
    if sp:
        e(f"s_setprio {opt.get('psp', 2)}")
        e(f"v_mov_b32 v{PSEL}, 0x05040100"); e(f"v_mov_b32 v{PSEL+1}, 0x07060302")
        e(f"v_mov_b32 v{PSEL+2}, 0xbf803f80"); e(f"v_mov_b32 v{PSEL+3}, 0x3f80bf80")
        e(f"s_cmp_eq_u32 s{C16}, 8"); e(f"s_cselect_b32 s{SPM}, 0x00010001, 0"); e(f"s_mov_b32 s{SPM+1}, s{SPM}")
    elif 'pn' in opt:
        e(f"s_cmp_lt_u32 s{WAVE}, 4"); e(f"s_cbranch_scc1 LN_pr"); e(f"s_setprio {opt['pn']}"); e("LN_pr:")
    D = deferred(opt)
    if sp: gl = [(c, g) for c in (1, 2, 3) for g in list(range(16)) + [18, 22, 26]]
    else: gl = [(c, g) for c in (1, 2, 3) for g in range(32)][:opt.get('dspan', 90)]
    DD = {1: [], 2: [], 3: []}
    for i, grp in enumerate(D):
        c, g = gl[(i*len(gl))//len(D)]
        DD[c].append((g, grp))
    for c in range(4):
        A.body(c, defer=DD.get(c))
        if opt.get('astamp') == 2: stamp(e, opt, 3+c)
    if opt.get('astamp') == 1: stamp(e, opt, 4)
    e(f"s_mov_b32 s{CNT}, 3")
    if opt.get('astamp') == 4: stamp(e, opt, 3)
    e(".p2align 3"); e(f"{P}_loop:")
    for c in (4, 5, 6): A.body(c)
    if opt.get('astamp') == 4:
        e("s_mov_b64 s[88:89], s[90:91]"); e("s_mov_b64 s[90:91], s[92:93]"); stamp(e, opt, 6)
    e(f"s_sub_u32 s{CNT}, s{CNT}, 1"); e(f"s_cmp_gt_i32 s{CNT}, 0"); e(f"s_cbranch_scc1 {P}_loop")
    m.vq = [(t[0], t[1]+6) if isinstance(t, tuple) else t for t in m.vq]
    if opt.get('astamp') == 1: stamp(e, opt, 5)
    A.body(13)
    if opt.get('astamp') == 1: stamp(e, opt, 6)
    return A

class PhaseA:
    def __init__(self, e, m, opt, sp): self.e = e; self.m = m; self.opt = opt; self.sp = sp
    def wread(self, st, off, n, j, half):
        off += st*WST; b = VWB + n
        if off >= 65536: off -= 65536; b += 4
        r = FW + 4*j + 2*half
        return ('ds', f"ds_read_b64_tr_b16 {v(r,2)}, v{b} offset:{off}", [r, r+1])
    def xread(self, st, ks, mm):
        r = FX + 16*ks + 4*mm
        return ('ds', f"ds_read_b128 {v(r,4)}, v{VXB+ks} offset:{st*XST + mm*2048}", range(r, r+4))
    def frag(self, h, j):
        if not self.sp: return j, lambda half: h*14336 + half*1792
        if h == 0: return j % 2, lambda half: (j//2)*14336 + half*1792
        return 2 + j % 2, lambda half: (j//2)*2048 + half*1024
    def mfma(self, h, j, mm, zero):
        w = v(FW+4*j, 4)
        if not self.sp:
            acc = v(ACC+16*j+4*mm, 4); x = v(FX+16*h+4*mm, 4); a, b = w, x; z = zero and h == 0
        elif h == 0:
            acc = v(ACC+16*(j%2)+4*mm, 4); x = v(FX+16*(j//2)+4*mm, 4); a, b = w, x; z = zero and j < 2
        else:
            acc = v(ACC+32+32*(j//2)+16*(j%2)+4*mm, 4); x = v(EO+16*(j//2)+4*mm, 4); a, b = x, w; z = zero
        return f"v_mfma_f32_16x16x32_bf16 {acc}, {a}, {b}, {'0' if z else acc}"
    def xregs(self, h, j):
        if not self.sp: return range(FX+16*h, FX+16*h+16) if j == 0 else []
        if h == 0: return range(FX+16*(j//2), FX+16*(j//2)+16) if j % 2 == 0 else []
        return []
    def step(self, mf, rd, extra):
        e, m, sp = self.e, self.m, self.sp
        fill = [[] for _ in range(16)]
        if mf is not None and sp and mf[1] == 0:
            for mm in range(4):
                for par in range(2):
                    for d in range(4):
                        raw = FX + 16*(d//2) + 4*mm + 2*(d % 2)
                        g = (8 if d >= 2 else 0) + 2*mm + par
                        if not self.opt.get('noperm'): fill[g].append(f"v_perm_b32 v{EO+16*par+4*mm+d}, v{raw+1}, v{raw}, v{PSEL+par}")
        duty = mf is not None and mf[0] == 0 and not (sp and mf[1] == 1)
        if rd is not None:
            c, h = rd; st = c % 3
            if not sp:
                for mm in range(4): fill[2*mm+1].append(self.xread(st, h, mm))
            elif h == 0:
                for q in range(8): fill[(0,1,2,5,6,9,10,13)[q]].append(self.xread(st, q//4, q % 4))
            for j in range(4):
                n, of = self.frag(h, j)
                for half in range(2):
                    fill[min(15, 4*j+3+half)].append(self.wread(st, of(half), n, j, half))
        for g, l in extra.items(): fill[g] += l
        for j in range(4):
            for mi in range(4):
                mm = mi if j % 2 == 0 else 3 - mi
                if mf is not None:
                    if mi == 0:
                        m.nds(list(range(FW+4*j, FW+4*j+4)) + list(self.xregs(mf[1], j)))
                        if sp and mf[1] == 1 and j % 2 == 0:
                            for d in range(4): e(f"v_cndmask_b32 v{FW+4*j+d}, v{FW+4*j+d}, v{PSEL+2+j//2}, {s(SPM,2)}")
                            e("s_nop 1")
                    if not self.opt.get('nomfma'): e(self.mfma(mf[1], j, mm, mf[0] == 0))
                    if duty and mi == 1 and (sp or j < 2):
                        cs = v(CS0+4*(j % 2), 4)
                        first = (j < 2) if sp else mf[1] == 0
                        e(f"v_mfma_f32_16x16x32_bf16 {cs}, {v(ONES,4)}, {v(FW+4*j,4)}, {'0' if first else cs}")
                m.all(fill[4*j+mi])
    def body(self, c, vmx=None, pre=None, defer=None):
        e, m, opt = self.e, self.m, self.opt
        P = "LS" if self.sp else "LN"
        if c == 4:
            assert opt.get('nodma') or m.vq[-1] == ('A', 5)
            e("s_waitcnt vmcnt(6)"); m.vq = m.vq[-6:]
        elif c == 1: m.nvm(('A', c), 'st'); m.ds0()
        else: m.nvm(('A', c))
        if c == 13 and not self.sp:
            e(f"s_cmp_lg_u32 s{WAVE}, 0"); e(f"s_cbranch_scc1 {P}_ck2")
            e(f"s_mov_b32 s{BND}, 4000")
            e(f"{P}_ck0:")
            e(f"v_cmp_ne_u32 vcc, v{VTOK}, v{T+2}"); e("s_cmp_eq_u64 vcc, 0"); e(f"s_cbranch_scc1 {P}_ck2")
            e(f"s_sub_u32 s{BND}, s{BND}, 1"); e(f"s_cmp_eq_u32 s{BND}, 0"); e(f"s_cbranch_scc1 {P}_ck2")
            e(f"buffer_load_dword v{T+2}, v{T+1}, {s(SWS,4)}, s{SWF} offen sc0 sc1"); e("s_waitcnt vmcnt(0)")
            e(f"s_branch {P}_ck0")
            e(f"{P}_ck2:")
        e("s_barrier")
        if c == 0: stamp(e, opt, 1)
        if c == 5 and not self.sp:
            e(f"s_cmp_lg_u32 s{CNT}, s{KEY}"); e(f"s_cbranch_scc1 {P}_nf")
            e("s_mov_b64 exec, 1")
            e(f"buffer_store_dword v{VTOK}, v{VZ}, {s(SWS,4)}, s{SFL} offen offset:64 sc0 sc1")
            e("s_mov_b64 exec, -1")
            e(f"{P}_nf:")
        if c == 6 and not self.sp:
            e(f"s_cmp_lg_u32 s{CNT}, s{KEY2}"); e(f"s_cbranch_scc1 {P}_np")
            e(f"buffer_load_dword v{T+2}, v{T+1}, {s(SWS,4)}, s{SWF} offen sc0 sc1")
            e(f"{P}_np:")
        if pre: m.all(pre)
        ex = [{}, {}]
        def at(g, it): ex[g//16].setdefault(g % 16, []).append(it)
        if vmx is None:
            vmx = [(mm, ('vm', d, ('A', c+2)), None) for mm, d in a_dmas((c+2) % 3)]
            vmx[-1] = (vmx[-1][0], vmx[-1][1], A_ADV)
        for i, (mm, d, post) in enumerate(vmx):
            g = min(30, 1 + (i*32)//len(vmx))
            if mm: at(g-1, mm)
            at(g, d)
            if post:
                for x in post: at(g+1, x)
        for g, grp in (defer or []):
            for x in grp: at(g, x)
        self.step((c-1, 1) if c > 0 else None, (c, 0), ex[0])
        self.step((c, 0), (c, 1), ex[1])

    def tail(self, helper):
        e, m, opt, sp = self.e, self.m, self.opt, self.sp
        NB = 2 if sp else 4
        WX = 224; NMF = 240; RHO = 192 if not sp else None
        pre = [f"v_lshrrev_b32 v{T+5}, 4, v{L}", f"v_and_b32 v{T+4}, 15, v{L}", f"v_lshlrev_b32 v{T+4}, 4, v{T+4}",
               f"v_lshl_add_u32 v{T+3}, v{T+5}, 12, v{T+4}",
               f"s_lshl_b32 s{T0}, s{WAVE}, 1", f"s_min_u32 s{T0}, s{T0}, 12", f"s_lshl_b32 s{T0}, s{T0}, 8",
               f"s_add_u32 s{U0+3}, s{U0+2}, s{T0}", f"s_xor_b32 s{U0+4}, s{U0+3}, 512",
               f"s_lshl_b32 s{T0}, s{RB}, 1", f"s_add_u32 s{T0}, s{T0}, s{WR}", f"s_lshl_b32 s{U0+5}, s{T0}, 10", f"s_add_u32 s{U0+5}, s{U0+5}, {WS_NM}",
               f"s_lshl_b32 s{U0+6}, s{T0}, 8", f"s_add_u32 s{U0+6}, s{U0+6}, {WS_RS}", f"v_lshlrev_b32 v{T+5}, 4, v{T+5}"]
        ld = []
        for n in range(NB):
            ld.append((None, ('vm', f"buffer_load_dwordx4 {v(WX+4*n,4)}, v{T+3}, {s(SWS,4)}, s{U0+3+n//2} offen offset:{(n%2)*256} sc0 sc1", 'ext'), None))
        for mm in range(4):
            ld.append((None, ('vm', f"buffer_load_dwordx4 {v(NMF+4*mm,4)}, v{T+4}, {s(SWS,4)}, s{U0+5} offen offset:{mm*256} sc0 sc1", 'ext'), None))
        def w2l(i):
            l = [(mm, ('vm', d, ('W', i)), None) for mm, d in w2_dmas(i)]
            l[-1] = (l[-1][0], l[-1][1], W2_ADV)
            return l
        if opt.get('astamp') == 3: stamp(e, opt, 3)
        DD = [[], []]
        if not helper and not opt.get('aonly'):
            import gen2b
            D = gen2b.compute_setup(opt)
            for i, grp in enumerate(D):
                g = (i*62)//len(D); DD[g//32].append((g % 32, grp))
        self.body(14, ld + (w2l(0) + w2l(1) if helper else []), pre, DD[0])
        if opt.get('astamp') == 3: stamp(e, opt, 4)
        self.body(15, w2l(2) if helper else [], None, DD[1])
        if opt.get('astamp') == 3: stamp(e, opt, 5)
        post = [f"s_mul_i32 s{T0}, s{RB}, {4*112*2048}", f"s_mul_i32 s{T1}, s{C16}, {7*2048}", f"s_add_u32 s{T0}, s{T0}, s{T1}",
                f"s_min_u32 s{T1}, s{WAVE}, 6", f"s_lshl_b32 s{T1}, s{T1}, 11", f"s_lshl_b32 s{T2}, s{WR}, 10", f"s_add_u32 s{T1}, s{T1}, s{T2}",
                f"v_add_u32 v{T+6}, s{T1}, v{VL16}", f"v_xor_b32 v{T+7}, 2048, v{T+6}"]
        post += [f"s_add_u32 s{U0+7+i}, s{T0}, {i*112*2048}" for i in range(1, 3)] + [f"s_add_u32 s{T1}, s{T0}, {3*112*2048}"]
        sH = [T0, U0+8, U0+9, T1]
        ex = {}
        for i, x in enumerate(post): ex.setdefault(i, []).append(x)
        if sp:
            for mm in range(4):
                ex.setdefault(12, []).append(('vm', f"buffer_load_dwordx4 {v(FX+4*mm,4)}, v{T+5}, {s(SWS,4)}, s{U0+6} offen offset:{mm*64} sc0 sc1", 'rho'))
            ex[12].append(f"s_add_u32 s{U0+6}, s{U0+6}, {WS_MF-WS_RS}")
            for mm in range(4):
                ex.setdefault(13, []).append(('vm', f"buffer_load_dwordx4 {v(FX+16+4*mm,4)}, v{T+5}, {s(SWS,4)}, s{U0+6} offen offset:{mm*64} sc0 sc1", 'rho'))
        self.step((15, 1), None, ex)
        stamp(e, opt, 2)
        m.nvm('ext')
        pk = [(p, mm) for p in range(NB//2) for mm in range(4)]
        PK = EO if sp else FX
        def fin(i):
            p, mm = pk[i]; D = PK + 4*i
            for b in range(2):
                a = ACC + 16*(2*p+b) + 4*mm
                e(f"v_cvt_pk_bf16_f32 v{D+2*b}, v{a}, v{a+1}"); e(f"v_cvt_pk_bf16_f32 v{D+2*b+1}, v{a+2}, v{a+3}")
            for d in range(4): e(f"v_pk_max_i16 v{D+d}, v{D+d}, 0")
            m.put(('vm', f"buffer_store_dwordx4 {v(D,4)}, v{T+6+p}, {s(SWS,4)}, s{sH[mm]} offen{opt.get('hst', ' sc0 sc1')}", 'H'))
            m.put(('ds', f"ds_write_b128 v{T+6+p}, {v(D,4)} offset:{LOH + mm*14336 - (32768 if mm >= 2 else 0)}".replace(f"v{T+6+p},", f"v{T+6+p+(2 if mm >= 2 else 0)},"), []))
        e(f"v_add_u32 v{T+8}, 32768, v{T+6}"); e(f"v_add_u32 v{T+9}, 32768, v{T+7}")
        for i, (p, mm) in enumerate(pk):
            for b in range(2):
                acc = v(ACC+16*(2*p+b)+4*mm, 4)
                e(f"v_mfma_f32_16x16x32_bf16 {acc}, {v(WX+4*(2*p+b),4)}, {v(NMF+4*mm,4)}, {acc}")
            if i >= 2: fin(i-2)
        e("s_nop 7")
        fin(len(pk)-2); fin(len(pk)-1)
        if opt.get('astamp') == 3: stamp(e, opt, 6)
        if sp and opt.get('aonly'): dft_epilogue(e, m, opt)

def dft_epilogue(e, m, opt, flag=False):
    RHO = FX; MF = FX+16; RE = FW
    A1, A2E, A2O, A1s, A2s, C1, KM = T, T+1, T+2, T+3, T+4, 130, T+5
    G = 132
    e(f"s_mul_i32 s{T0}, s{KQ}, {AE_MAT}")
    e(f"s_and_b32 s{T1}, s{RB}, 1"); e(f"s_lshl_b32 s{T2}, s{WR}, 1"); e(f"s_add_u32 s{T1}, s{T1}, s{T2}"); e(f"s_mul_i32 s{T1}, s{T1}, {AE_C}"); e(f"s_add_u32 s{T0}, s{T0}, s{T1}")
    e(f"s_lshr_b32 s{T1}, s{RB}, 1"); e(f"s_lshl_b32 s{T1}, s{T1}, 10"); e(f"s_add_u32 s{T0}, s{T0}, s{T1}"); e(f"s_add_u32 s{T0}, s{T0}, {WS_AE}")
    e(f"v_bfe_u32 v{T+8}, v{L}, 4, 1"); e(f"v_mul_u32_u24 v{T+8}, {AE_PAR}, v{T+8}")
    e(f"v_lshrrev_b32 v{T+9}, 5, v{L}"); e(f"v_lshl_add_u32 v{T+8}, v{T+9}, 9, v{T+8}"); e(f"v_add_u32 v{T+8}, s{T0}, v{T+8}")
    e(f"v_and_b32 v{T+9}, 15, v{L}"); e(f"v_cmp_eq_u32 vcc, 0, v{T+9}"); e(f"v_lshlrev_b32 v{T+9}, 4, v{T+9}")
    e(f"s_mul_i32 s{T1}, s{CBP}, {AE_ET}"); e(f"s_sub_u32 s{T2}, {15*AE_ET}, s{T1}")
    e(f"v_add3_u32 v{A1}, v{T+8}, v{T+9}, s{T1}")
    e(f"v_sub_u32 v{T+9}, v{T+8}, v{T+9}"); e(f"v_add_u32 v{T+9}, s{T2}, v{T+9}")
    e(f"v_add_u32 v{A2O}, 256, v{T+9}"); e(f"v_add_u32 v{A2E}, 512, v{T+9}"); e(f"v_add_u32 v{T+9}, {AE_ET}, v{T+9}")
    e(f"v_cndmask_b32 v{A2E}, v{A2E}, v{T+9}, vcc")
    e(f"v_add_u32 v{T+9}, {(8*AE_ET - AE_MAT) & 0xffffffff}, v{A1}"); e(f"v_cndmask_b32 v{A1s}, v{A1}, v{T+9}, {s(SPM,2)}")
    e(f"v_add_u32 v{T+9}, {8*AE_ET}, v{A1}"); e(f"v_cndmask_b32 v{A2s}, v{A2E}, v{T+9}, {s(SPM,2)}")
    e(f"v_mov_b32 v{C1}, 1.0"); e(f"v_cndmask_b32 v{C1}, v{C1}, v{VZ}, {s(SPM,2)}"); e(f"v_mov_b32 v{C1+1}, v{C1}")
    e(f"s_cmp_eq_u32 s{C16}, 0"); e(f"s_cselect_b32 s{T1}, 0xc4000000, 0"); e(f"v_mov_b32 v{T+9}, s{T1}")
    e(f"v_cndmask_b32 v{KM}, v{VZ}, v{T+9}, vcc")
    e(f"s_lshl_b32 s{T3}, s{KQ}, 31"); e(f"s_mul_i32 s{T2}, s{KQ}, 0x80008000")
    e(f"s_or_b32 s{U0}, s{RB}, s{WR}")
    E = lambda n, i: ACC+32+16*n+4*i
    O = lambda n, i: ACC+64+16*n+4*i
    m.nvm('rho')
    for r in range(16):
        e(f"v_fmac_f32 v{E(0,0)+r}, v{MF+r}, v{KM}"); e(f"v_fmac_f32 v{O(0,0)+r}, v{MF+r}, v{KM}")
    e(f"s_cmp_lg_u32 s{U0}, 0"); e("s_cbranch_scc1 LD_nz")
    e(f"v_cmp_gt_u32 {s(M2,2)}, 16, v{L}")
    for r in range(16): e(f"v_mov_b32 v{G+r}, 0")
    for n in range(2):
        X = G + 8*n; Y = T+8
        if n == 0:
            e(f"v_fma_f32 v{Y}, v{O(n,2)}, v{C1}, v{E(n,2)}"); e(f"v_fma_f32 v{Y+1}, v{O(n,3)}, v{C1}, v{E(n,3)}")
        else:
            e(f"v_add_f32 v{Y}, v{O(n,2)}, v{E(n,2)}"); e(f"v_add_f32 v{Y+1}, v{O(n,3)}, v{E(n,3)}")
        e(f"v_sub_f32 v{Y+2}, v{E(n,2)}, v{O(n,2)}"); e(f"v_sub_f32 v{Y+3}, v{E(n,3)}, v{O(n,3)}")
        e(f"v_mul_f32 v{Y}, v{Y}, v{RHO+8}"); e(f"v_fmac_f32 v{Y}, v{Y+1}, v{RHO+12}")
        e(f"v_mul_f32 v{Y+2}, v{Y+2}, v{RHO+8}"); e(f"v_fmac_f32 v{Y+2}, v{Y+3}, v{RHO+12}")
        e(f"v_cvt_pk_bf16_f32 v{Y}, v{Y}, v{VZ}"); e(f"v_cvt_pk_bf16_f32 v{Y+2}, v{Y+2}, v{VZ}")
        e(f"v_cndmask_b32 v{X}, v{VZ}, v{Y}, {s(M2,2)}"); e(f"v_cndmask_b32 v{X+4}, v{VZ}, v{Y+2}, {s(M2,2)}")
    e(f"s_movk_i32 s{T0}, 8192")
    e(f"buffer_store_dwordx4 {v(G,4)}, v{A1s}, {s(SWS,4)}, s{T0} offen sc0 sc1")
    e(f"buffer_store_dwordx4 {v(G+4,4)}, v{A2s}, {s(SWS,4)}, s{T0} offen sc0 sc1")
    e(f"buffer_store_dwordx4 {v(G+8,4)}, v{A1}, {s(SWS,4)}, s{T0} offen offset:256 sc0 sc1")
    e(f"buffer_store_dwordx4 {v(G+12,4)}, v{A2O}, {s(SWS,4)}, s{T0} offen sc0 sc1")
    e("LD_nz:")
    e(f"s_cmp_lg_u32 s{C16}, 8"); e("s_cbranch_scc1 LD_ns")
    for r in range(4): e(f"v_mov_b32 v{T+8+r}, 0")
    e(f"s_mov_b64 exec, {s(SPM,2)}")
    e(f"buffer_store_dwordx4 {v(T+8,4)}, v{A1}, {s(SWS,4)}, 0 offen sc0 sc1")
    e(f"buffer_store_dwordx4 {v(T+8,4)}, v{A2E}, {s(SWS,4)}, 0 offen sc0 sc1")
    e("s_mov_b64 exec, -1")
    e("LD_ns:")
    e(f"s_cmp_eq_u32 s{U0}, 0"); e(f"s_cselect_b32 s{M2}, 0xffff, 0"); e(f"s_mov_b32 s{M2+1}, 0")
    for r in range(16): e(f"v_mov_b32 v{RE+r}, v{RHO+r}")
    e(f"v_cndmask_b32 v{RE+8}, v{RE+8}, v{VZ}, {s(M2,2)}"); e(f"v_cndmask_b32 v{RE+12}, v{RE+12}, v{VZ}, {s(M2,2)}")
    e(f"s_cmp_eq_u32 s{KQ}, 0"); e("s_cbranch_scc1 LD_cos")
    for r in range(4):
        e(f"v_xor_b32 v{RHO+4+r}, s{T3}, v{RHO+4+r}"); e(f"v_xor_b32 v{RHO+12+r}, s{T3}, v{RHO+12+r}")
    e(f"v_xor_b32 v{T+8}, s{T3}, v{RHO+8}")
    e(f"v_cndmask_b32 v{RHO}, v{RHO}, v{VZ}, {s(M2,2)}"); e(f"v_cndmask_b32 v{RHO+4}, v{RHO+4}, v{VZ}, {s(M2,2)}")
    e(f"v_cndmask_b32 v{RHO+8}, v{RHO+8}, v{T+8}, {s(M2,2)}")
    for r in range(16): e(f"v_cndmask_b32 v{RE+r}, v{RHO+r}, v{RE+r}, {s(SPM,2)}")
    e("s_branch LD_go")
    e("LD_cos:")
    e(f"v_mov_b32 v{RHO+8}, v{RE+8}"); e(f"v_mov_b32 v{RHO+12}, v{RE+12}")
    e("LD_go:")
    for n in range(2):
        for X, R in ((E, RE if n == 0 else RHO), (O, RHO)):
            for r in (0, 2):
                e(f"v_pk_mul_f32 {v(X(n,0)+r,2)}, {v(X(n,0)+r,2)}, {v(R+r,2)}")
                e(f"v_pk_mul_f32 {v(X(n,1)+r,2)}, {v(X(n,1)+r,2)}, {v(R+4+r,2)}")
            for r in (0, 2):
                e(f"v_pk_fma_f32 {v(X(n,0)+r,2)}, {v(X(n,3)+r,2)}, {v(R+12+r,2)}, {v(X(n,0)+r,2)}")
                e(f"v_pk_fma_f32 {v(X(n,1)+r,2)}, {v(X(n,2)+r,2)}, {v(R+8+r,2)}, {v(X(n,1)+r,2)}")
        for i in (0, 1):
            for r in (0, 2):
                if n == 0:
                    e(f"v_pk_fma_f32 {v(E(n,2+i)+r,2)}, {v(O(n,i)+r,2)}, {v(C1,2)}, {v(E(n,i)+r,2)}")
                    e(f"v_pk_fma_f32 {v(O(n,2+i)+r,2)}, {v(E(n,i)+r,2)}, {v(C1,2)}, {v(O(n,i)+r,2)} neg_lo:[0,0,1] neg_hi:[0,0,1]")
                else:
                    e(f"v_pk_add_f32 {v(E(n,2+i)+r,2)}, {v(E(n,i)+r,2)}, {v(O(n,i)+r,2)}")
                    e(f"v_pk_add_f32 {v(O(n,2+i)+r,2)}, {v(E(n,i)+r,2)}, {v(O(n,i)+r,2)} neg_lo:[0,1] neg_hi:[0,1]")
        for X in (E, O):
            for r in (0, 2):
                e(f"v_pk_add_f32 {v(X(n,0)+r,2)}, {v(X(n,2)+r,2)}, {v(X(n,3)+r,2)}")
                e(f"v_pk_add_f32 {v(X(n,1)+r,2)}, {v(X(n,2)+r,2)}, {v(X(n,3)+r,2)} neg_lo:[0,1] neg_hi:[0,1]")
        for X in (E, O):
            for d in range(4):
                e(f"v_cvt_pk_bf16_f32 v{X(n,2)+d}, v{X(n,0)+2*d}, v{X(n,0)+2*d+1}")
        for d in range(4): e(f"v_xor_b32 v{O(n,2)+d}, s{T2}, v{O(n,2)+d}")
        e("s_nop 0")
        for X in (E, O):
            e(f"v_permlane16_swap_b32 v{X(n,2)}, v{X(n,2)+2}"); e(f"v_permlane16_swap_b32 v{X(n,2)+1}, v{X(n,2)+3}")
        e("s_nop 1")
        if n == 0:
            if flag: hflag(e, m)
            m.put(('vm', f"buffer_store_dwordx4 {v(E(n,2),4)}, v{A1s}, {s(SWS,4)}, 0 offen sc0 sc1", 'AE'))
            m.put(('vm', f"buffer_store_dwordx4 {v(O(n,2),4)}, v{A2s}, {s(SWS,4)}, 0 offen sc0 sc1", 'AE'))
        else:
            m.put(('vm', f"buffer_store_dwordx4 {v(E(n,2),4)}, v{A1}, {s(SWS,4)}, 0 offen offset:256 sc0 sc1", 'AE'))
            m.put(('vm', f"buffer_store_dwordx4 {v(O(n,2),4)}, v{A2O}, {s(SWS,4)}, 0 offen sc0 sc1", 'AE'))

def hflag(e, m):
    m.nvm('H')
    e("s_mov_b64 exec, 1")
    m.put(('vm', f"buffer_store_dword v{VTOK}, v{VZ}, {s(SWS,4)}, s{SFL} offen{m.opt.get('fst', ' sc0 sc1')}", 'fl'))
    e("s_mov_b64 exec, -1")

def tokbump(e, P):
    e("s_cmp_lg_u32 s2, 0"); e(f"s_cbranch_scc1 {P}_tb")
    e(f"s_mov_b32 s{T0}, {WS_TOK}"); e("s_mov_b64 exec, 1")
    e(f"buffer_store_dword v{VTOK}, v{VZ}, {s(SWS,4)}, s{T0} offen sc0 sc1")
    e("s_mov_b64 exec, -1")
    e(f"{P}_tb:")

def write_stamps(e, opt):
    if not opt.get('stamp'): return
    e("s_waitcnt vmcnt(0)")
    stamp(e, opt, 7)
    e("s_waitcnt lgkmcnt(0)")
    for i in range(8): e(f"v_mov_b32 v{2+i}, s{80+2*i}")
    e(f"s_lshl_b32 s3, s2, 3"); e(f"s_add_u32 s3, s3, s{WAVE}"); e("s_lshl_b32 s3, s3, 5"); e(f"s_add_u32 s3, s3, {WS_STAMP}")
    e("s_mov_b64 exec, 1"); e("v_mov_b32 v10, 0")
    e(f"buffer_store_dwordx4 v[2:5], v10, {s(SWS,4)}, s3 offen")
    e(f"buffer_store_dwordx4 v[6:9], v10, {s(SWS,4)}, s3 offen offset:16")

KN = "parallel_sum__spectral_fnet__dense_activation_relu__prompt_kernel"
def gen(opt):
    import copy
    e = Asm(); m = Em(e, opt)
    e("; @launch grid=(256,1,1) block=(512,1,1) lds=163840")
    e('.amdgcn_target "amdgcn-amd-amdhsa--gfx950"'); e(".text")
    e(f".globl {KN}"); e(".p2align 8"); e(f".type {KN},@function"); e(f"{KN}:")
    if opt.get('stamp'):
        for i in range(80, 96): e(f"s_mov_b32 s{i}, 0")
    prologue(e, m, opt)
    e(f"s_cmp_ge_u32 s{WAVE}, 6"); e("s_cbranch_scc1 L_spec")
    st0 = (list(m.dq), list(m.vq))
    A = phaseA(e, m, opt, False)
    e(f"s_cmp_ge_u32 s{WAVE}, 4"); e("s_cbranch_scc1 L_nh")
    st1 = (list(m.dq), list(m.vq))
    aonly = opt.get('aonly')
    import gen2b
    A.tail(False)
    if aonly: hflag(e, m); tokbump(e, "LA"); write_stamps(e, opt); e("s_endpgm")
    else: gen2b.compute(e, m, opt)
    e("L_spec:")
    m.dq, m.vq = list(st0[0]), list(st0[1])
    S = phaseA(e, m, opt, True)
    S.tail(True)
    if aonly: hflag(e, m); write_stamps(e, opt); e("s_endpgm")
    else: gen2b.helper(e, m, opt, True)
    e("L_nh:")
    m.dq, m.vq = list(st1[0]), list(st1[1])
    A.tail(True)
    if aonly: hflag(e, m); write_stamps(e, opt); e("s_endpgm")
    else: gen2b.helper(e, m, opt, False)
    e("L_end:"); e("s_endpgm")
    e('.section .rodata,"a"')
    kernel_desc(e, KN, vgprs=256, accum=256)
    return fix_hazards(e.text())

import re
def fix_hazards(txt):
    out = []; hist = []
    def regs(tok, kind):
        tok = tok.strip()
        if kind == 's' and tok == 'vcc': return {'vcc'}
        mm = re.fullmatch(kind + r'\[(\d+):(\d+)\]', tok.lstrip('-'))
        if mm: return set(range(int(mm.group(1)), int(mm.group(2))+1))
        mm = re.fullmatch(kind + r'(\d+)', tok.lstrip('-'))
        return {int(mm.group(1))} if mm else set()
    n = 0
    for l in txt.split('\n'):
        op = l.split(' ')[0]
        if not l or op.startswith(('.', ';')) or l.startswith(' '): out.append(l); continue
        if l.endswith(':'): out.append(l); continue
        ws = set(); wt = set()
        if op.startswith('v_'):
            args = [a.split(' ')[0] for a in [x.strip() for x in l[len(op):].split(',')]]
            rs = set(); rv = set()
            for a in args[1:]: rs |= regs(a, 's'); rv |= regs(a, 'v')
            need = 0
            for d, (s_, t_) in enumerate(reversed(hist[-2:])):
                if s_ & rs: need = max(need, 2 - d)
                if d == 0 and t_ & rv: need = max(need, 1)
            if need:
                out.append(f"s_nop {need-1}"); hist += [(set(), set())]*need; n += 1
            if op.startswith('v_cmp') or op.startswith('v_readfirstlane'): ws = regs(args[0], 's')
            if op in ('v_cos_f32', 'v_sin_f32', 'v_rcp_f32', 'v_sqrt_f32'): wt = regs(args[0], 'v')
        out.append(l)
        if op == 's_nop': hist += [(set(), set())]*(int(l.split()[1])+1)
        else: hist.append((ws, wt))
        hist = hist[-4:]
    return '\n'.join(out)

if __name__ == "__main__":
    opt = {}
    for a in sys.argv[2:]:
        k, val = a.split('='); opt[k] = eval(val)
    open(sys.argv[1], 'w').write(gen(opt))
```

```python
from gen2 import *
import gen2 as G2

NT = 6
SLOT = [114688, 147456, 131072, 0, 16384, 98304, 32768, 49152]
STG = [SLOT[c % 8] for c in range(28)]
HS = [192, 208, 224, 240, 56, 72, 88, 2]
FB = 24; BWB = 104
VHL, VFA, VFV, VFR = 124, 125, 126, 127
LPB = 65536; LCD = 90112; LFL = 97792
SEL = 40
CK0, CK1 = 46, 47
HOFF = HOFF0
NORD = [0, 1, 6, 7, 2, 3, 4, 5]
FX2 = FM

def hreg(c, k, mm): return HS[c % 8] + 8*k + 4*mm

def compute_setup(opt):
    D = []; g = D.append
    A, B, C = T+10, T+11, T+12
    g([f"v_bfe_u32 v{A}, v{L}, 2, 4"]); g([f"v_lshlrev_b32 v{B}, 8, v{A}"]); g([f"v_and_b32 v{C}, 3, v{L}"]); g([f"v_lshl_add_u32 v{B}, v{C}, 3, v{B}"])
    g([f"v_and_b32 v{A}, 7, v{A}"]); g([f"s_lshl_b32 s{T0}, s{KQ}, 1", f"v_xor_b32 v{A}, s{T0}, v{A}"])
    for n in range(8):
        g([f"v_xor_b32 v{C}, {NORD[n]}, v{A}"]); g([f"v_lshl_add_u32 v{BWB+n}, v{C}, 5, v{B}"]); g([f"v_add_u32 v{BWB+8+n}, {LX}, v{BWB+n}"])
    g([f"s_mul_i32 s{T0}, s{WAVE}, 14336", f"s_add_u32 s{T0}, s{T0}, {LOH}", f"v_add_u32 v{VHL}, s{T0}, v{VL16}"])
    g([f"v_lshlrev_b32 v{VFA}, 2, v{L}"]); g([f"v_add_u32 v{VFA}, {LFL}, v{VFA}"])
    g([f"s_lshl_b32 s{FX2}, 0x11111111, s{WAVE}", f"s_mov_b32 s{FX2+1}, 0"])
    g([f"s_lshl_b32 s{T0}, s{RB}, 2", f"s_add_u32 s{T0}, s{T0}, s{WAVE}", f"s_lshl_b32 s{T0}, s{T0}, 1", f"s_add_u32 s{T0}, s{T0}, s{KQ}",
       f"s_mul_i32 s{T0}, s{T0}, {56*2048}", f"s_add_u32 s{HEND}, s{T0}, {56*2048}",
       f"s_add_u32 s{T1}, s{CBP}, 1", f"s_and_b32 s{T1}, s{T1}, 7", f"s_mul_i32 s{T1}, s{T1}, {7*2048}", f"s_add_u32 s{HOFF}, s{T0}, s{T1}"])
    g([f"s_add_u32 s{W2OFF}, s{W2OFF}, {2*64*2048}"] + W2_ADV)
    g([f"s_lshl_b32 s{T0}, s2, 2", f"s_add_u32 s{T0}, s{T0}, s{WAVE}", f"s_lshl_b32 s{SEXS}, s{T0}, 13", f"s_add_u32 s{SEXS}, s{SEXS}, {WS_EX}"])
    g([f"s_mov_b32 s{SEL+i}, {0x07060500 + i}" for i in range(4)])
    return D

def bstamp(e, opt, k, i):
    if opt.get('bstamp') == k: stamp(e, opt, i)

class Plan:
    def __init__(self, opt):
        NM = self.NM = 28 - NT
        steps = [[(c, k, n) for n in range(8)] for c in range(NM) for k in range(2)]
        steps += [[(c, k, n) for k in range(2) for n in range(4, 8)] for c in range(NM, 28)]
        own = [(c, k, n) for n in range(4) for c in range(NM, 28) for k in range(2)]
        steps += [own[8*i:8*i+8] for i in range(NT)]
        self.steps = steps; NS = self.NS = len(steps); self.SP = 2*NM + NT
        FK = self.FK = opt.get('fk', 2); assert FK % 2 == 0
        touch = {}; use = {}
        for i, st in enumerate(steps):
            for (c, k, n) in st:
                touch.setdefault(c, i-1); use.setdefault(2*c+k, i)
        self.pub = {}
        for c in range(3, 28): self.pub.setdefault(touch[c]-2, []).append(c)
        self.pub.setdefault(1, [])
        self.chk = sorted(i+1 for i in self.pub)
        assert FK in self.chk
        VR = opt.get('vr', 3); VR0 = opt.get('vr0', 2)
        dq = []
        for c in range(3, 28):
            av = 0 if c < 6 else (3*16 if c < 8 else (2*(c-8)+3)*16)
            for j in range(4): dq.append((av, (touch[c]-2)*16 + 14 - opt.get('db', 0), ('W', c, j)))
        hq = []
        for kk in range(7, 56):
            c = kk//2
            av = max((FK+1)*16, 0 if c < 8 else (2*(c-8) + kk % 2 + 1)*16 + 2)
            for mm in range(2): hq.append((av, use[kk]*16 + (8*(kk % 2) if c >= NM else 0), ('H', kk, mm)))
        self.vm = {}; pos = 1; self.lead = {}
        while dq or hq:
            cand = [q for q in (hq, dq) if q and q[0][0] <= pos]
            if not cand: pos += 1; continue
            q = min(cand, key=lambda q: q[0][1])
            av, dl, it = q.pop(0)
            assert dl - pos >= 16, (it, pos, dl)
            self.vm[pos] = it; self.lead[it] = dl - pos
            pos += VR0 if pos < (FK+1)*16 - VR0 else VR
        first = {}
        for p_, it in sorted(self.vm.items()):
            if it[0] == 'H': first.setdefault(it[1]//7, p_)
        th = {t: max(c for c in self.chk if (c+1)*16 <= p_) for t, p_ in first.items()}
        if opt.get('g1'): th = {t: FK for t in th}
        self.gate = [th[j+1]-1 for j in range(7)] + [255]
        self.done = [100+n for n in range(4)]
        self.LAC = [STG[NM-2], STG[NM-1]]

def publish(val):
    return [f"v_mov_b32 v{VFV}, {val}", f"s_mov_b64 exec, {s(FX2,2)}", ('ds', f"ds_write_b32 v{VFA}, v{VFV}", []), "s_mov_b64 exec, -1"]

def compute(e, m, opt):
    pl = Plan(opt); steps = pl.steps; NS = pl.NS; SP = pl.SP; NM = pl.NM
    def wread(c, k, n, half, slot):
        off = STG[c] + k*8192 + half*4096; b = BWB + n
        if off >= LX: off -= LX; b += 8
        r = FB + 4*slot + 2*half
        return ('ds', f"ds_read_b64_tr_b16 {v(r,2)}, v{b} offset:{off}", [r, r+1])
    def hlds(kk, mm):
        r = hreg(kk//2, kk % 2, mm)
        return ('ds', f"ds_read_b128 {v(r,4)}, v{VHL} offset:{kk*2048 + mm*1024}", range(r, r+4))
    fill = [[[] for _ in range(16)] for _ in range(NS+1)]
    def at(p_, l): fill[p_//16][p_ % 16] += l
    lst = [hlds(kk, mm) for kk in range(1, 7) for mm in range(2)]
    for i, x in enumerate(lst): at(2*i, [x])
    hb = opt.get('hbits', '')
    for p_, it in sorted(pl.vm.items()):
        if it[0] == 'H':
            _, kk, mm = it
            r = hreg(kk//2, kk % 2, mm)
            if opt.get('noh'): continue
            at(p_, [('vm', f"buffer_load_dwordx4 {v(r,4)}, v{VL16}, {s(SWS,4)}, s{HOFF} offen offset:{mm*1024}{hb}", it)])
            if mm == 1:
                l = [f"s_add_u32 s{HOFF}, s{HOFF}, 2048"]
                if kk % 7 == 6: l += [f"s_cmp_ge_u32 s{HOFF}, s{HEND}", f"s_cselect_b32 s{T0}, {56*2048}, 0", f"s_sub_u32 s{HOFF}, s{HOFF}, s{T0}"]
                at(p_+1, l)
        else:
            _, c, j = it
            if j == 0: at(p_-1, [f"s_add_u32 m0, s{MW2}, {STG[c]}"])
            at(p_, [('vm', f"buffer_load_dwordx4 v{VW2D+j}, {s(SW2,4)}, s{W2OFF} offen offset:{j*1024} lds", ('W', c))])
            if j == 3: at(p_+1, W2_ADV)
    for i, cs in pl.pub.items():
        at(i*16 + 14, [('nvm',) + tuple(('W', c) for c in cs)] + publish(i+1))
    RG = opt.get('rg', 9)
    frd = ('ds', f"ds_read_b32 v{VFR}, v{VFA}", [VFR])
    for i in pl.chk:
        at(i*16 + RG, [frd]); at(i*16 + 14, [('nds', [VFR]), f"v_cmp_gt_u32 vcc, {i}, v{VFR}"])
    at(opt.get('hf', 30), [lambda: (hflag(e, m, "LC"), bstamp(e, opt, 1, 4))])
    PA = ACC + 32
    pos = (SP-1)*16 + 13
    for i in range(8):
        q = PA + 4*i
        for half in range(2):
            at(pos, [f"v_perm_b32 v{q+r}, v{q+r}, v{VTOK}, s{SEL+r}" for r in (2*half, 2*half+1)])
            if half == 1:
                if i == 4: at(pos, [f"s_add_u32 s{SEXS}, s{SEXS}, 4096"])
                at(pos, [('vm', f"buffer_store_dwordx4 {v(q,4)}, v{VL16}, {s(SWS,4)}, s{SEXS} offen offset:{(i%4)*1024}{opt.get('xst', ' sc0 sc1')}", 'ex')])
            pos += 1
    at(SP*16 + 14, [f"s_cmp_lt_u32 s{WAVE}, 2", f"s_cselect_b32 s{T0}, 0, {pl.LAC[1]-pl.LAC[0]}", f"s_lshl_b32 s{T1}, s{WR}, 13", f"s_add_u32 s{T0}, s{T0}, s{T1}", f"s_add_u32 s{T0}, s{T0}, {pl.LAC[0]}",
                    f"v_add_u32 v{VHL}, s{T0}, v{VL16}"])
    for n in range(4):
        p_ = SP*16 + 4*NT*(n+1) + 2
        l = [('ds', f"ds_write_b128 v{VHL}, {v(ACC+8*n+4*mm,4)} offset:{n*2048+mm*1024}", []) for mm in range(2)]
        if n < 3:
            at(p_, l[:1]); at(p_+1, l[1:]); at(p_+2, publish(pl.done[n]))
        else: at(NS*16, ["s_nop 7"] + l + publish(pl.done[n]))

    if 'cprio' in opt: e(f"s_setprio {opt['cprio']}")
    m.ds0()
    e("s_barrier")
    bstamp(e, opt, 1, 3)
    m.all([hlds(0, 0), hlds(0, 1)])
    for sl, (c, k, n) in enumerate(steps[0]):
        for half in range(2): m.put(wread(c, k, n, half, sl))
    def emit(l):
        for x in l:
            if callable(x): x()
            else: m.put(x)
    slow = []
    for i, st in enumerate(steps):
        nx = steps[i+1] if i+1 < NS else None
        if i == 8: bstamp(e, opt, 1, 6)
        if i == 20: bstamp(e, opt, 2, 3)
        if i == 32: bstamp(e, opt, 2, 4)
        if i == 44: bstamp(e, opt, 2, 5)
        if i == SP: bstamp(e, opt, 2, 6)
        if 'bs' in opt and i in opt['bs']: stamp(e, opt, 3 + opt['bs'].index(i))
        for sl, (c, k, n) in enumerate(st):
            for mi in range(2):
                mm = mi if (sl % 2 == 0 or i >= SP) else 1 - mi
                h = hreg(c, k, mm)
                need = list(range(h, h+4))
                if mi == 0: need += list(range(FB+4*sl, FB+4*sl+4))
                m.nds(need); m.nvm(('H', 2*c+k, mm))
                acc = v(ACC+8*n+4*mm, 4)
                if not opt.get('nobm'): e(f"v_mfma_f32_16x16x32_bf16 {acc}, {v(FB+4*sl,4)}, {v(h,4)}, {'0' if i == 0 else acc}")
                g = 2*sl + mi
                if nx:
                    if mi == 1: m.put(wread(*nx[sl], 0, sl))
                    if mi == 0 and sl > 0: m.put(wread(*nx[sl-1], 1, sl-1))
                    if g == 15: m.put(wread(*nx[7], 1, 7))
                emit(fill[i][g])
        if i in pl.chk:
            e(f"s_cbranch_vccnz LC_s{i}"); e(f"LC_b{i}:"); slow.append(i)
            if i == pl.FK: bstamp(e, opt, 1, 5)
    emit(fill[NS][0])
    write_stamps(e, opt)
    e("s_endpgm")
    for i in slow:
        e(f"LC_s{i}:")
        e(f"s_mov_b32 s{BND}, 100000")
        e(f"LC_l{i}:")
        e(frd[1]); e("s_waitcnt lgkmcnt(0)")
        e(f"v_cmp_gt_u32 vcc, {i}, v{VFR}"); e(f"s_cbranch_vccz LC_b{i}")
        e(f"s_sub_u32 s{BND}, s{BND}, 1"); e(f"s_cmp_lg_u32 s{BND}, 0"); e(f"s_cbranch_scc1 LC_l{i}")
        e(f"s_branch LC_b{i}")

TR = 40; XR = 104
VO = 120
VA0, VA1, VQ, HFA = 124, 125, 126, 127
Y = 128; AF = 192; GF = 2; VP = 10; RS = 14
SPY = FM
HC = 44
SIM = 40
SCOL = 45
HFX = SPM
WG_ = T+12

def trig(e):
    A = Y
    TQ = T+8; B0 = T+10; B1 = T+11; D2 = T+16; PH = M2
    vt, vhi = T, T+1
    e(f"v_and_b32 v{vt}, 15, v{L}"); e(f"v_lshl_add_u32 v{vt}, v{vt}, 2, s{TB}"); e(f"v_bfe_u32 v{vhi}, v{L}, 4, 1"); e(f"v_lshl_add_u32 v{vt}, v{vhi}, 1, v{vt}")
    e(f"v_lshrrev_b32 v{vhi}, 5, v{L}")
    e(f"v_cmp_eq_u32 {s(SPY,2)}, 0, v{vt}")
    e(f"v_cvt_f32_u32 v{TQ}, v{vt}"); e(f"v_mul_f32 v{TQ}, 0x3a000000, v{TQ}")
    e(f"s_bitcmp1_b32 s{HC}, 0"); e(f"s_cselect_b32 s{T0}, 0x3e800000, 0"); e(f"s_cselect_b32 s{T1}, 0x3f400000, 0")
    e(f"v_mov_b32 v{T+2}, s{T0}")
    e(f"v_cndmask_b32 v{TQ}, v{TQ}, v{T+2}, {s(SPY,2)}")
    e(f"s_lshr_b32 s{T2}, s{HC}, 1")
    e(f"v_lshl_add_u32 v{T+2}, v{vhi}, 5, s{T2}"); e(f"v_cvt_f32_u32 v{T+2}, v{T+2}")
    e(f"v_fma_f32 v{B0}, v{TQ}, v{T+2}, s{T1}")
    for ch in range(2):
        for kk in range(2):
            for jj in range(8):
                e(f"v_fmamk_f32 v{A+16*ch+8*kk+jj}, v{TQ}, {fl(64*kk+4*jj+2*ch)}, v{B0}")
    e(f"v_mul_f32 v{D2}, 0x42800000, v{TQ}")
    e(f"v_mov_b32 v{WG_}, s{T1}"); e(f"v_fmac_f32 v{WG_}, 0x44000000, v{TQ}")
    for r in [A+i for i in range(32)] + [D2, WG_]: e(f"v_fract_f32 v{r}, v{r}")
    for r in [A+i for i in range(32)] + [D2, WG_]: e(f"v_cos_f32 v{r}, v{r}")
    e("s_nop 0")
    e(f"v_add_f32 v{D2}, v{D2}, v{D2}"); e(f"v_mov_b32 v{D2+1}, v{D2}")
    for kk in range(8):
        o_ = 8*(kk % 2)
        if kk >= 2:
            for base in (A, A+16):
                for jj in range(0, 8, 2):
                    e(f"v_pk_fma_f32 {v(base+o_+jj,2)}, {v(base+8-o_+jj,2)}, {v(D2,2)}, {v(base+o_+jj,2)} neg_lo:[0,0,1] neg_hi:[0,0,1]")
        for ch in range(2):
            for d in range(4):
                e(f"v_cvt_pk_bf16_f32 v{TR+8*kk+4*ch+d}, v{A+16*ch+o_+2*d}, v{A+16*ch+o_+2*d+1}")
        if kk == 0:
            e(f"v_cvt_pk_bf16_f32 v{T+2}, v{WG_}, v{A+1}")
            e(f"s_cmp_eq_u32 s{HC}, 1"); e(f"s_cselect_b32 s{M2}, -1, 0"); e(f"s_mov_b32 s{M2+1}, 0")
            e(f"v_cndmask_b32 v{TR}, v{TR}, v{T+2}, {s(M2,2)}")
    e(f"v_cvt_pk_bf16_f32 v{WG_}, v{WG_}, v{WG_}")
    for r in (1, 2, 3): e(f"v_mov_b32 v{WG_+r}, 0")

def addrs(e, opt):
    vt, vhi = T, T+1
    A, B = T+2, T+3
    e(f"s_lshl_b32 s{T0}, s{CBP}, 1"); e(f"s_add_u32 s{T0}, s{T0}, s{KQ}")
    e(f"s_lshl_b32 s{T1}, s{T0}, 6"); e(f"s_sub_u32 s{T2}, {2048-64}, s{T1}")
    e(f"s_bitcmp1_b32 s{HC}, 1"); e(f"s_cselect_b32 s{SCOL}, s{T2}, s{T1}"); e(f"s_cselect_b64 {s(M2,2)}, -1, 0"); e(f"s_cselect_b32 s{T3}, 3, 0")
    e(f"s_and_b32 s{T1}, s{HC}, 1"); e(f"s_lshl_b32 s{T2}, s{T1}, 5"); e(f"s_add_u32 s{SCOL}, s{SCOL}, s{T2}")
    e(f"s_mul_i32 s{SAE}, s{T0}, {AE_ET}"); e(f"s_mul_i32 s{T0}, s{T1}, {AE_MAT}"); e(f"s_add_u32 s{SAE}, s{SAE}, s{T0}")
    e(f"s_and_b32 s{T0}, s{RB}, 1"); e(f"s_mul_i32 s{T0}, s{T0}, {AE_PAR}"); e(f"s_add_u32 s{SAE}, s{SAE}, s{T0}")
    e(f"s_lshr_b32 s{T0}, s{HC}, 1"); e(f"s_lshl_b32 s{SH0}, s{T0}, 10"); e(f"s_add_u32 s{SH0}, s{SH0}, {WS_FD}")
    e(f"s_mul_i32 s{T0}, s{T0}, {AE_C}"); e(f"s_add_u32 s{SAE}, s{SAE}, s{T0}"); e(f"s_add_u32 s{SAE}, s{SAE}, {WS_AE}")
    e(f"s_lshl_b32 s{T1}, s{T1}, 4")
    e(f"v_and_b32 v{A}, 19, v{L}"); e(f"v_bfe_u32 v{B}, v{L}, 2, 1"); e(f"v_lshl_or_b32 v{A}, v{B}, 3, v{A}")
    e(f"v_bfe_u32 v{B}, v{L}, 3, 1"); e(f"v_lshl_or_b32 v{A}, v{B}, 2, v{A}"); e(f"v_xor_b32 v{A}, s{T1}, v{A}")
    e(f"v_cmp_eq_u32 vcc, 0, v{A}"); e(f"v_lshlrev_b32 v{A}, 4, v{A}"); e(f"v_lshlrev_b32 v{B}, 9, v{vhi}")
    e(f"v_add_u32 v{VA0}, v{B}, v{A}")
    e(f"v_sub_u32 v{A}, v{B}, v{A}"); e(f"v_add_u32 v{A}, 512, v{A}"); e(f"v_add_u32 v{B}, {AE_ET}, v{B}"); e(f"v_cndmask_b32 v{A}, v{A}, v{B}, vcc")
    e(f"v_cndmask_b32 v{VA1}, v{A}, v{VA0}, {s(M2,2)}"); e(f"v_cndmask_b32 v{VA0}, v{VA0}, v{A}, {s(M2,2)}")
    e(f"v_lshlrev_b32 v{B}, 4, v{vhi}")
    for r in range(4):
        e(f"s_xor_b32 s{T0}, s{T3}, {r}"); e(f"s_lshl_b32 s{SIM+r}, s{T0}, 13")
        e(f"s_add_u32 s{T1}, s{T0}, 1"); e(f"s_lshr_b32 s{T1}, s{T1}, 1"); e(f"s_lshl_b32 s{T1}, s{T1}, 10")
        e(f"s_bitcmp1_b32 s{T0}, 0"); e(f"s_cselect_b32 s{T2}, -1, 1")
        e(f"v_mul_lo_u32 v{VO+r}, v{vt}, s{T2}"); e(f"v_add_u32 v{VO+r}, s{T1}, v{VO+r}")
        e(f"s_lshr_b32 s{T0}, s{T0}, 1"); e(f"s_lshl_b32 s{T0}, s{T0}, 9"); e(f"s_sub_u32 s{T1}, s{T1}, s{T0}")
        e(f"v_mov_b32 v{A}, s{T1}"); e(f"v_cndmask_b32 v{VO+r}, v{VO+r}, v{A}, {s(SPY,2)}")
        e(f"v_lshl_add_u32 v{VO+r}, v{VO+r}, 11, v{B}")
    e(f"v_bfe_u32 v{A}, v{L}, 4, 1"); e(f"v_and_b32 v{B}, 15, v{L}"); e(f"v_lshlrev_b32 v{VQ}, 4, v{B}"); e(f"v_lshl_add_u32 v{VQ}, v{A}, 10, v{VQ}")
    e(f"v_lshl_add_u32 v{VQ}, v{vhi}, 9, v{VQ}")
    e(f"v_lshlrev_b32 v{B}, 2, v{B}"); e(f"v_lshl_add_u32 v{T+4}, v{A}, 8, v{B}")
    e(f"s_xor_b32 s{T0}, s2, {[2, 1, 8][opt.get('map', 1)]}"); e(f"s_lshl_b32 s{SEXR}, s{T0}, 15"); e(f"s_lshl_b32 s{T0}, s{HC}, 11")
    e(f"s_add_u32 s{SEXR}, s{SEXR}, s{T0}"); e(f"s_add_u32 s{SEXR}, s{SEXR}, {WS_EX}")
    e(f"s_lshl_b32 s{HFX}, 0x11111111, s{HC}"); e(f"s_mov_b32 s{HFX+1}, s{HFX}")
    e(f"s_mov_b32 s{CK0}, 0x0c0c0400"); e(f"s_mov_b32 s{CK1}, 0x04000c0c")

def helper_pre(e, m, opt, sp):
    e(f"v_lshlrev_b32 v{HFA}, 2, v{L}"); e(f"v_add_u32 v{HFA}, {LFL}, v{HFA}")
    if sp: return
    pl = Plan(opt)
    e(f"v_cmp_lt_u32 vcc, 31, v{L}"); e(f"v_mov_b32 v{VQ}, {pl.gate[0]}"); e(f"v_cndmask_b32 v{VQ}, v{VZ}, v{VQ}, vcc")
    m.put(('ds', f"ds_write_b32 v{HFA}, v{VQ}", [])); m.put(('ds', f"ds_write_b32 v{HFA}, v{VZ} offset:256", []))

def helper(e, m, opt, sp):
    P = "HS" if sp else "HN"
    pl = Plan(opt)
    cnt = [0]
    def wait_lds(th, off=0, lo=True, slp=1):
        n = cnt[0]; cnt[0] += 1
        e(f"s_mov_b32 s{BND}, 100000")
        e(f"{P}_w{n}:")
        e(f"ds_read_b32 v{T+5}, v{HFA} offset:{off}"); m.ds0()
        e(f"v_cmp_gt_u32 vcc, {th}, v{T+5}"); e(f"s_cmp_eq_u32 vcc_lo, 0"); e(f"s_cbranch_scc1 {P}_x{n}")
        if slp: e(f"s_sleep {slp}")
        e(f"s_sub_u32 s{BND}, s{BND}, 1"); e(f"s_cmp_lg_u32 s{BND}, 0"); e(f"s_cbranch_scc1 {P}_w{n}")
        e(f"{P}_x{n}:")
    e(f"s_setprio {opt.get('hprio', 0)}")
    helper_pre(e, m, opt, sp)
    m.ds0(); m.nvm(('W', 2))
    e("s_barrier")
    e(f"s_and_b32 s{HC}, s{WAVE}, 3")
    if sp: dft_epilogue(e, m, opt, True)
    else:
        hflag(e, m, P)
        e(f"s_cmp_lg_u32 s{WAVE}, 4"); e("s_cbranch_scc1 HN_gx")
        e(f"v_lshrrev_b32 v{T}, 3, v{L}"); e(f"s_add_u32 s{T0}, s{CBP}, 1"); e(f"v_add_u32 v{T}, s{T0}, v{T}"); e(f"v_and_b32 v{T}, 7, v{T}")
        e(f"v_and_b32 v{T+1}, 7, v{L}"); e(f"v_lshlrev_b32 v{T+1}, 2, v{T+1}"); e(f"v_lshl_add_u32 v{T}, v{T}, 7, v{T+1}")
        e(f"s_lshl_b32 s{T0}, s{RB}, 1"); e(f"s_add_u32 s{T0}, s{T0}, s{KQ}"); e(f"s_lshl_b32 s{SH0}, s{T0}, 10"); e(f"s_add_u32 s{SH0}, s{SH0}, {WS_FL}")
        tab = sum(g << (8*j) for j, g in enumerate(pl.gate))
        e(f"s_mov_b32 s{M2}, {tab & 0xffffffff}"); e(f"s_mov_b32 s{M2+1}, {tab >> 32}")
        e(f"s_mov_b32 s{BND}, 4000")
        e("HN_g0:")
        e(f"s_cmp_lg_u32 s{LOC}, 0"); e("s_cbranch_scc1 HN_g1")
        e(f"buffer_load_dword v{T+1}, v{T}, {s(SWS,4)}, s{SH0} offen sc0 sc1"); e("s_branch HN_g2")
        e("HN_g1:")
        e(f"buffer_load_dword v{T+1}, v{T}, {s(SWS,4)}, s{SH0} offen sc1")
        e("HN_g2:")
        m.vm0()
        e(f"v_cmp_ne_u32 vcc, v{VTOK}, v{T+1}")
        e(f"s_sub_u32 s{BND}, s{BND}, 1"); e(f"s_cmp_eq_u32 s{BND}, 0"); e("s_cselect_b64 vcc, 0, vcc")
        e(f"s_ff1_i32_b64 s{T0}, vcc"); e(f"s_min_u32 s{T0}, s{T0}, 56"); e(f"s_and_b32 s{T0}, s{T0}, 56")
        e(f"s_lshr_b64 {s(T2,2)}, {s(M2,2)}, s{T0}"); e(f"s_and_b32 s{T2}, s{T2}, 255")
        e(f"v_mov_b32 v{T+2}, s{T2}"); e("s_mov_b32 exec_lo, 0")
        e(f"ds_write_b32 v{HFA}, v{T+2}"); e("s_mov_b32 exec_lo, -1")
        e(f"s_cmp_lt_u32 s{T0}, 56"); e("s_cbranch_scc1 HN_g0")
        e("HN_gx:")
    bstamp(e, opt, 1, 4)
    if opt.get('noy'):
        write_stamps(e, opt); e("s_endpgm"); return
    trig(e)
    if sp:
        m.nvm('AE')
        e("s_mov_b64 exec, 1")
        m.put(('vm', f"buffer_store_dword v{VTOK}, v{VZ}, {s(SWS,4)}, s{SFD} offen sc0 sc1", 'fl'))
        e("s_mov_b64 exec, -1")
    addrs(e, opt)
    bstamp(e, opt, 1, 5)
    e(f"s_lshl_b32 s{T0}, s{RB}, 9"); e(f"s_add_u32 s{T0}, s{T0}, {WS_RS}")
    for r in range(4):
        e(f"s_lshr_b32 s{T1}, s{SIM+r}, 7"); e(f"s_add_u32 s{T1}, s{T1}, s{T0}")
        m.put(('vm', f"buffer_load_dword v{RS+r}, v{T+4}, {s(SWS,4)}, s{T1} offen sc0 sc1", 'xr'))
        m.put(('vm', f"buffer_load_dwordx4 {v(XR+4*r,4)}, v{VO+r}, {s(SX,4)}, s{SCOL} offen", 'xr'))
    wait_lds(max(2, opt.get('ys', 20)), slp=4)
    e(f"s_mov_b32 s{BND}, 4000")
    e(f"{P}_f0:")
    e(f"buffer_load_dwordx4 {v(VP,4)}, v{VL16}, {s(SWS,4)}, s{SH0} offen sc0 sc1"); m.vm0()
    e(f"v_xor_b32 v{VP}, v{VTOK}, v{VP}"); e(f"v_xor_b32 v{VP+1}, v{VTOK}, v{VP+1}"); e(f"v_xor_b32 v{VP+2}, v{VTOK}, v{VP+2}"); e(f"v_xor_b32 v{VP+3}, v{VTOK}, v{VP+3}")
    e(f"v_or3_b32 v{VP}, v{VP}, v{VP+1}, v{VP+2}"); e(f"v_or_b32 v{VP}, v{VP}, v{VP+3}")
    e(f"v_cmp_ne_u32 vcc, 0, v{VP}"); e(f"s_cbranch_vccz {P}_f1")
    e(f"s_sub_u32 s{BND}, s{BND}, 1"); e(f"s_cmp_lg_u32 s{BND}, 0"); e(f"s_cbranch_scc1 {P}_f0")
    e(f"{P}_f1:")
    bstamp(e, opt, 2, 3); bstamp(e, opt, 1, 6)
    YSL = opt.get('ysl', 0)
    def aeld(i):
        ch, kk = i % 2, i//2
        b = AF + 8*(i % 8)
        e(f"s_add_u32 s{T0}, s{SAE}, {ch*2*AE_C + (kk//4)*4096}")
        for x in range(2):
            m.put(('vm', f"buffer_load_dwordx4 {v(b+4*x,4)}, v{VA0+x}, {s(SWS,4)}, s{T0} offen offset:{(kk%4)*1024}", ('Y', i)))
        if YSL: e(f"s_sleep {YSL}")
    for i in range(8): aeld(i)
    for i in range(16):
        ch, kk = i % 2, i//2
        m.nvm(('Y', i))
        for x in range(2):
            acc = v(Y+32*ch+16*x, 16)
            e(f"v_mfma_f32_32x32x16_bf16 {acc}, {v(AF+8*(i%8)+4*x,4)}, {v(TR+8*kk+4*ch,4)}, {'0' if kk == 0 else acc}")
        if 1 <= i <= 8: aeld(i+7)
        if i == 9:
            e(f"s_add_u32 s{T0}, s{SAE}, 8192")
            for x in range(2): m.put(('vm', f"buffer_load_dwordx4 {v(GF+4*x,4)}, v{VA0+x}, {s(SWS,4)}, s{T0} offen", 'G'))
    m.nvm('G')
    e(f"s_and_b32 s{T0}, s{RB}, 1"); e(f"s_or_b32 s{T0}, s{T0}, s{HC}"); e(f"s_cmp_lg_u32 s{T0}, 0"); e(f"s_cbranch_scc1 {P}_ng")
    for x in range(2):
        acc = v(Y+16*x, 16)
        e(f"v_mfma_f32_32x32x16_bf16 {acc}, {v(GF+4*x,4)}, {v(WG_,4)}, {acc}")
    e(f"{P}_ng:")
    for j in (1, 2, 3):
        e(f"s_xor_b32 s{T0}, s{HC}, {j}"); e(f"s_mul_i32 s{T0}, s{T0}, 6144"); e(f"s_add_u32 s{T0}, s{T0}, {LPB + (j-1)*2048}"); e(f"v_add_u32 v{T+5+j}, s{T0}, v{VL16}")
    e(f"s_mul_i32 s{T0}, s{HC}, 6144"); e(f"s_add_u32 s{T0}, s{T0}, {LPB}"); e(f"v_add_u32 v{T+9}, s{T0}, v{VL16}")
    XF = AF
    for i in range(16):
        e(f"v_lshlrev_b32 v{XF+2*i}, 16, v{XR+i}"); e(f"v_and_b32 v{XF+2*i+1}, 0xffff0000, v{XR+i}")
    if not sp:
        e(f"s_or_b32 s{T0}, s{TB}, s{HC}"); e(f"s_cmp_lg_u32 s{T0}, 0"); e(f"s_cbranch_scc1 {P}_nd")
        e(f"v_lshrrev_b32 v{T+2}, 1, v{L}"); e(f"v_add_u32 v{T+2}, {LCD}, v{T+2}")
        e(f"s_mov_b64 exec, {s(SPY,2)}")
        for r in range(32): e(f"v_sub_f32 v{TR+r}, v{Y+r}, v{Y+32+r}")
        for i in range(8): e(f"ds_write_b128 v{T+2}, {v(TR+4*i,4)} offset:{32*i}")
        e("s_mov_b64 exec, -1")
        e(f"{P}_nd:")
    for j in (1, 2, 3, 0):
        for r in range(8*j, 8*j+8, 2): e(f"v_pk_add_f32 {v(Y+r,2)}, {v(Y+r,2)}, {v(Y+32+r,2)}")
        if j:
            for q in range(2): m.put(('ds', f"ds_write_b128 v{T+5+j}, {v(Y+8*j+4*q,4)} offset:{q*1024}", []))
    e(f"v_mov_b32 v{T+2}, 1"); e(f"s_mov_b64 exec, {s(HFX,2)}"); e(f"ds_write_b32 v{HFA}, v{T+2} offset:256"); e("s_mov_b64 exec, -1")
    bstamp(e, opt, 2, 4)
    SG = U0
    e(f"s_lshl_b32 s{T0}, s{HC}, 31"); e(f"s_lshl_b32 s{T1}, s{HC}, 30"); e(f"s_and_b32 s{T1}, s{T1}, 0x80000000")
    e(f"s_mov_b32 s{SG}, 1.0"); e(f"s_xor_b32 s{SG+6}, s{T0}, 1.0"); e(f"s_xor_b32 s{SG+4}, s{T1}, 1.0"); e(f"s_xor_b32 s{SG+2}, s{SG+4}, s{T0}")
    for r in range(4): e(f"s_mov_b32 s{SG+2*r+1}, s{SG+2*r}")
    wait_lds(1, off=256)
    for j in (1, 2, 3):
        for q in range(2):
            r = Y + 8*j + 4*q
            m.put(('ds', f"ds_read_b128 {v(r,4)}, v{T+9} offset:{(j-1)*2048+q*1024}", range(r, r+4)))
    NEG = " neg_lo:[0,1] neg_hi:[0,1]"
    U_ = Y + 32
    for z in range(2):
        m.nds(range(Y+16*z, Y+16*z+16))
        for r in range(0, 8, 2):
            e(f"v_pk_add_f32 {v(U_+16*z+r,2)}, {v(Y+16*z+r,2)}, {v(Y+16*z+8+r,2)}")
            e(f"v_pk_add_f32 {v(U_+16*z+8+r,2)}, {v(Y+16*z+r,2)}, {v(Y+16*z+8+r,2)}{NEG}")
    for rr, (a, ng) in enumerate(((0, ''), (8, NEG), (0, NEG), (8, ''))):
        for r in range(0, 8, 2): e(f"v_pk_add_f32 {v(Y+8*rr+r,2)}, {v(U_+a+r,2)}, {v(U_+16+a+r,2)}{ng}")
    e(f"s_cmp_lg_u32 s{TB}, 0"); e(f"s_cbranch_scc1 {P}_ns")
    e(f"s_lshl_b32 s{T0}, s{HC}, 6"); e(f"s_add_u32 s{T0}, s{T0}, {LCD}"); e(f"v_lshrrev_b32 v{T+2}, 1, v{L}"); e(f"v_add_u32 v{T+2}, s{T0}, v{T+2}")
    e(f"s_mov_b64 exec, {s(SPY,2)}")
    CD = U_; a_, b_, s_ = U_+8, U_+16, U_+24
    e(f"ds_read_b128 {v(CD,4)}, v{T+2}"); e(f"ds_read_b128 {v(CD+4,4)}, v{T+2} offset:32")
    for rr in range(4):
        for r in range(8): e(f"v_mul_f32 v{Y+8*rr+r}, s{SG+2*rr}, v{Y+8*rr+r}")
    for r in range(8):
        e(f"v_add_f32 v{a_+r}, v{Y+r}, v{Y+24+r}"); e(f"v_add_f32 v{b_+r}, v{Y+8+r}, v{Y+16+r}"); e(f"v_sub_f32 v{s_+r}, v{Y+r}, v{Y+24+r}")
    e("s_waitcnt lgkmcnt(0)")
    e(f"s_cmp_ge_u32 s{HC}, 2"); e(f"s_cbranch_scc1 {P}_sr")
    def put4(ra, rb_, rp, rm):
        for r in range(8):
            e(f"v_mul_f32 v{Y+8*ra+r}, 0.5, v{a_+r}"); e(f"v_mul_f32 v{Y+8*rb_+r}, 0.5, v{b_+r}")
            e(f"v_fma_f32 v{Y+8*rp+r}, 0.5, v{s_+r}, v{CD+r}"); e(f"v_fma_f32 v{Y+8*rm+r}, -0.5, v{s_+r}, v{CD+r}")
    put4(0, 1, 2, 3); e(f"s_branch {P}_sj"); e(f"{P}_sr:"); put4(3, 2, 0, 1); e(f"{P}_sj:")
    for rr in range(4):
        for r in range(8): e(f"v_mul_f32 v{Y+8*rr+r}, s{SG+2*rr}, v{Y+8*rr+r}")
    e("s_mov_b64 exec, -1")
    e(f"{P}_ns:")
    for rr in range(4):
        for r in range(0, 8, 2): e(f"v_pk_fma_f32 {v(Y+8*rr+r,2)}, {v(Y+8*rr+r,2)}, {s(SG+2*rr,2)}, {v(XF+8*rr+r,2)}")
    bstamp(e, opt, 2, 5)
    LA = T+6; R2 = TR
    for r in range(4):
        e(f"s_cmp_lt_u32 s{SIM+r}, 16384"); e(f"s_cselect_b32 s{T0}, 0, {pl.LAC[1]-16384-pl.LAC[0]}"); e(f"s_add_u32 s{T0}, s{T0}, s{SIM+r}"); e(f"s_add_u32 s{T0}, s{T0}, {pl.LAC[0]}")
        e(f"s_lshl_b32 s{T1}, s{HC}, 11"); e(f"s_add_u32 s{T0}, s{T0}, s{T1}"); e(f"v_add_u32 v{LA+r}, s{T0}, v{VQ}")
        e(f"v_mov_b32 v{R2+2*r}, v{RS+r}"); e(f"v_mov_b32 v{R2+2*r+1}, v{RS+r}")
        e(f"s_add_u32 s{SIM+r}, s{SIM+r}, s{SEXR}")
    wait_lds(opt.get('ps', max(pl.chk)), slp=2)
    if opt.get('psl'): e(f"s_sleep {opt['psl']}")
    PB = AF; U2 = Y + 32; K = TR + 8
    pld = [f"buffer_load_dwordx4 {v(PB+4*i,4)}, v{VQ}, {s(SWS,4)}, s{SIM+i//2} offen offset:{(i%2)*256}{opt.get('xld', ' sc0 sc1')}" for i in range(8)]
    e(f"s_mov_b32 s{BND}, 4000")
    e(f"{P}_p0:")
    for x in pld: e(x)
    for i in range(8):
        b = PB + 4*i
        if i % 2 == 0: e(f"s_waitcnt vmcnt({6-i})")
        e(f"v_perm_b32 v{K+2*i}, v{b+1}, v{b}, s{CK0}"); e(f"v_perm_b32 v{K+2*i+1}, v{b+3}, v{b+2}, s{CK1}")
        e(f"v_bitop3_b32 v{K+2*i}, v{K+2*i}, v{K+2*i+1}, v{VTOK} bitop3:0x56")
        for r in (0, 2):
            e(f"v_pk_fma_f32 {v(U2+4*i+r,2)}, {v(b+r,2)}, {v(R2+2*(i//2),2)}, {v(Y+4*i+r,2)}")
    m.vq = []
    e(f"v_or3_b32 v{K}, v{K}, v{K+2}, v{K+4}"); e(f"v_or3_b32 v{K+6}, v{K+6}, v{K+8}, v{K+10}"); e(f"v_or3_b32 v{K}, v{K}, v{K+12}, v{K+14}")
    e(f"v_or_b32 v{K}, v{K}, v{K+6}")
    e(f"v_cmp_ne_u32 vcc, 0, v{K}"); e(f"s_cbranch_vccz {P}_p1")
    e(f"s_sub_u32 s{BND}, s{BND}, 1"); e(f"s_cmp_lg_u32 s{BND}, 0"); e(f"s_cbranch_scc1 {P}_p0")
    e(f"{P}_p1:")
    bstamp(e, opt, 2, 6)
    if opt.get('bstamp') == 3: e(f"s_sub_u32 s92, 4000, s{BND}")
    e(f"s_add_u32 s{T0}, s{HC}, {pl.done[0]}")
    wait_lds(f"s{T0}", slp=0)
    for i in range(8):
        m.put(('ds', f"ds_read_b128 {v(PB+4*i,4)}, v{LA+i//2} offset:{(i%2)*256}", range(PB+4*i, PB+4*i+4)))
    O = Y
    for r in range(4):
        m.nds(range(PB+8*r, PB+8*r+8))
        for z in range(0, 8, 2): e(f"v_pk_fma_f32 {v(U2+8*r+z,2)}, {v(PB+8*r+z,2)}, {v(R2+2*r,2)}, {v(U2+8*r+z,2)}")
        for d in range(4): e(f"v_cvt_pk_bf16_f32 v{O+4*r+d}, v{U2+8*r+2*d}, v{U2+8*r+2*d+1}")
        e(f"buffer_store_dwordx4 {v(O+4*r,4)}, v{VO+r}, {s(SO,4)}, s{SCOL} offen")
    if not sp:
        e(f"s_cmp_lg_u32 s{WAVE}, 4"); e("s_cbranch_scc1 HN_tb")
        tokbump(e, "HN")
    write_stamps(e, opt)
    e("s_endpgm")
```

```python
import sys, struct
from gen import Asm, v, s, kernel_desc, AE_C, AE_ET, AE_PAR, AE_MAT

WS_H  = 0x0000000
WS_AE = 0x1000000
WS_EX = 0x1800000
WS_NM = 0x2000000
WS_RS = 0x2008000
WS_MF = 0x200A000
WS_CS = 0x2010000
WS_FL = 0x2100000
WS_FD = 0x2108000
WS_TOK = 0x2108800
WS_STAMP = 0x3000000

WST = 32768; LX = 98304; XST = 16384; LDF = 28672
RING = [114688, 147456, 131072, 0, 16384, 98304]
LOH = 32768
PARTNER = 2

SX, SW, SWS, SW2, SO = 4, 8, 12, 16, 20
TOK = 24; KEY2 = 25; SWF = 26; LOC = 27
WAVE, RB, KQ, CBP, WR, WC, C16, TB = range(28, 36)
T0, T1, T2, T3 = 36, 37, 38, 39
XOFF, WOFF, MX, MW, CNT, KEY, WADV, WEND = range(40, 48)
SFL, SFD, W2OFF, W2END, MW2, HOFF0, HOFF1, HEND = range(48, 56)
SPM = 56
M2 = 58
FM = 60
SH0, SH1 = 62, 63
SC1, SC2 = 64, 65
SAE, SEXS, SEXR, BND = 66, 67, 68, 69
U0 = 70

L = 1; VXD = 2; VWD = 4; VWB = 8; VXB = 16; VL16 = 18; VZ = 19; T = 20; VTOK = 0
FW = 40; FX = 56; EO = 88; VW2D = 120; ACC = 128

fl = lambda x: hex(struct.unpack('<I', struct.pack('<f', float(x)))[0])

class Em:
    def __init__(self, e, opt): self.e = e; self.dq = []; self.vq = []; self.opt = opt
    def put(self, it):
        if isinstance(it, str): self.e(it); return
        k = it[0]
        if k == 'ds':
            if self.opt.get('nords') and 'read' in it[1]: return
            self.e(it[1]); self.dq.append(set(it[2]))
        elif k == 'vm':
            if self.opt.get('nodma') and it[1].endswith('lds'): return
            self.e(it[1]); self.vq.append(it[2])
        elif k == 'nds': self.nds(it[1])
        elif k == 'nvm': self.nvm(*it[1:])
        else: raise Exception(it)
    def all(self, l):
        for x in l: self.put(x)
    def nds(self, regs):
        regs = set(regs); last = -1
        for i, r in enumerate(self.dq):
            if r & regs: last = i
        if last >= 0:
            n = min(15, len(self.dq) - 1 - last)
            self.e(f"s_waitcnt lgkmcnt({n})")
            self.dq = self.dq[len(self.dq)-n:] if n else []
    def nvm(self, *tags):
        last = -1
        for i, t in enumerate(self.vq):
            if t in tags: last = i
        if last >= 0:
            n = min(63, len(self.vq) - 1 - last)
            self.e(f"s_waitcnt vmcnt({n})")
            self.vq = self.vq[len(self.vq)-n:] if n else []
    def vm0(self): self.e("s_waitcnt vmcnt(0)"); self.vq = []
    def ds0(self): self.e("s_waitcnt lgkmcnt(0)"); self.dq = []

def stamp(e, opt, i):
    if opt.get('stamp'): e(f"{'s_memtime' if opt.get('cyc') else 's_memrealtime'} s[{80+2*i}:{81+2*i}]")

def vrow(e, vimg, vt, out, a, b):
    e(f"v_add_u32 v{a}, 1, v{vimg}"); e(f"v_lshrrev_b32 v{a}, 1, v{a}"); e(f"v_lshlrev_b32 v{a}, 10, v{a}")
    e(f"v_and_b32 v{b}, 1, v{vimg}"); e(f"v_cmp_eq_u32 vcc, 1, v{b}")
    e(f"v_sub_u32 v{out}, v{a}, v{vt}"); e(f"v_add_u32 v{b}, v{a}, v{vt}")
    e(f"v_cndmask_b32 v{out}, v{b}, v{out}, vcc")
    e(f"v_cmp_eq_u32 vcc, 0, v{vt}")
    e(f"v_lshrrev_b32 v{b}, 1, v{vimg}"); e(f"v_lshlrev_b32 v{b}, 9, v{b}"); e(f"v_sub_u32 v{b}, v{a}, v{b}")
    e(f"v_cndmask_b32 v{out}, v{out}, v{b}, vcc")

def bf16r(e, d):
    e(f"v_cvt_pk_bf16_f32 v{d}, v{d}, v{d}"); e(f"v_lshlrev_b32 v{d}, 16, v{d}")

def a_dmas(st):
    out = []
    for j in range(2):
        out.append((f"s_add_u32 m0, s{MX}, {st*XST}" if j == 0 else None,
                    f"buffer_load_dwordx4 v{VXD+j}, {s(SX,4)}, s{XOFF} offen offset:{j*1024} lds"))
    for j in range(4):
        out.append((f"s_add_u32 m0, s{MW}, {st*WST}" if j == 0 else None,
                    f"buffer_load_dwordx4 v{VWD+j}, {s(SW,4)}, s{WOFF} offen offset:{j*1024} lds"))
    return out
A_ADV = [f"s_add_u32 s{XOFF}, s{XOFF}, 128", f"s_and_b32 s{XOFF}, s{XOFF}, 0x7ff",
         f"s_add_u32 s{WOFF}, s{WOFF}, s{WADV}", f"s_cmp_eq_u32 s{WOFF}, s{WEND}", f"s_cselect_b32 s{WOFF}, 0, s{WOFF}"]

def w2_dmas(i):
    out = []
    for j in range(4):
        out.append((f"s_add_u32 m0, s{MW2}, {RING[i % 6]}" if j == 0 else None,
                    f"buffer_load_dwordx4 v{VW2D+j}, {s(SW2,4)}, s{W2OFF} offen offset:{j*1024} lds"))
    return out
W2_ADV = [f"s_add_u32 s{W2OFF}, s{W2OFF}, {64*2048}", f"s_cmp_ge_u32 s{W2OFF}, s{W2END}",
          f"s_cselect_b32 s{T3}, {1792*2048}, 0", f"s_sub_u32 s{W2OFF}, s{W2OFF}, s{T3}"]

def prologue(e, m, opt):
    e("s_cmp_ge_u32 s2, 256"); e("s_cbranch_scc1 L_end")
    stamp(e, opt, 0)
    e(f"s_load_dwordx2 {s(SX,2)}, s[0:1], 0"); e(f"s_load_dwordx2 {s(SWS,2)}, s[0:1], 80")
    e(f"v_lshrrev_b32 v{T}, 6, v0"); e(f"v_and_b32 v{L}, 63, v0"); e(f"v_readfirstlane_b32 s{WAVE}, v{T}")
    MAP = opt.get('map', 1)
    e(f"s_bfe_u32 s{KQ}, s2, {['0x10001', '0x10000', '0x10003'][MAP]}")
    e(f"s_lshl_b32 s{T0}, s{KQ}, 3"); e(f"s_add_u32 s{T1}, s{T0}, 24")
    e(f"s_cmp_eq_u32 s{WAVE}, 7"); e(f"s_cselect_b32 s{T1}, s{T1}, 48")
    e(f"s_load_dwordx2 {s(SW,2)}, s[0:1], s{T1}")
    e(f"s_mov_b32 s{SW+2}, {1024*3584*2}"); e(f"s_mov_b32 s{WADV}, {64*7168}")
    e(f"s_cselect_b32 s{SW+2}, {1024*1024*2}, s{SW+2}")
    e(f"s_cselect_b32 s{WADV}, {64*2048}, s{WADV}")
    if opt.get('pp', 1):
        e(f"s_cmp_lt_u32 s{WAVE}, 4"); e("s_cbranch_scc1 L_pp"); e(f"s_setprio {opt.get('pp', 1)}"); e("L_pp:")
    if MAP == 0:
        e(f"s_and_b32 s{RB}, s2, 1"); e(f"s_lshl_b32 s{RB}, s{RB}, 3"); e(f"s_bfe_u32 s{T1}, s2, 0x30003"); e(f"s_add_u32 s{RB}, s{RB}, s{T1}")
        e(f"s_and_b32 s{CBP}, s2, 4"); e(f"s_lshr_b32 s{T1}, s2, 6"); e(f"s_add_u32 s{CBP}, s{CBP}, s{T1}")
    elif MAP == 1:
        e(f"s_and_b32 s{RB}, s2, 6"); e(f"s_lshl_b32 s{RB}, s{RB}, 1"); e(f"s_bfe_u32 s{T1}, s2, 0x20003"); e(f"s_add_u32 s{RB}, s{RB}, s{T1}")
        e(f"s_lshr_b32 s{CBP}, s2, 5")
    else:
        e(f"s_and_b32 s{RB}, s2, 7"); e(f"s_lshl_b32 s{RB}, s{RB}, 1"); e(f"s_bfe_u32 s{T1}, s2, 0x10004"); e(f"s_add_u32 s{RB}, s{RB}, s{T1}")
        e(f"s_lshr_b32 s{CBP}, s2, 5")
    e(f"s_add_u32 s{C16}, s{T0}, s{CBP}")
    e(f"s_lshr_b32 s{TB}, s{RB}, 1"); e(f"s_lshl_b32 s{TB}, s{TB}, 6"); e(f"s_and_b32 s{T1}, s{RB}, 1"); e(f"s_add_u32 s{TB}, s{TB}, s{T1}")
    e(f"s_mov_b32 s{SX+2}, 0x400000"); e(f"s_mov_b32 s{SX+3}, 0x00020000"); e(f"s_mov_b32 s{SW+3}, 0x00020000")
    e(f"s_lshl_b32 s{XOFF}, s{RB}, 7"); e(f"s_mul_i32 s{WOFF}, s{RB}, s{WADV}")
    e(f"s_lshl_b32 s{MW}, s{WAVE}, 12"); e(f"s_lshl_b32 s{MX}, s{WAVE}, 11"); e(f"s_add_u32 s{MX}, s{MX}, {LX}")
    e(f"s_lshr_b32 s{T0}, s{WAVE}, 2"); e(f"s_lshl_b32 s{T0}, s{T0}, 1"); e(f"s_add_u32 s{T0}, s{T0}, s{TB}")
    e(f"s_and_b32 s{T1}, s{WAVE}, 3")
    e(f"s_add_u32 s{T2}, s{T1}, 1"); e(f"s_lshr_b32 s{T2}, s{T2}, 1"); e(f"s_lshl_b32 s{T2}, s{T2}, 10")
    e(f"s_bitcmp1_b32 s{T1}, 0"); e(f"s_cselect_b32 s{T3}, -1, 1")
    e(f"s_lshr_b32 s{T1}, s{T1}, 1"); e(f"s_lshl_b32 s{T1}, s{T1}, 9"); e(f"s_sub_u32 s{T1}, s{T2}, s{T1}")
    e(f"v_lshrrev_b32 v{T}, 3, v{L}")
    e(f"v_lshl_add_u32 v{T+1}, v{T}, 2, s{T0}")
    e(f"v_cmp_eq_u32 vcc, 0, v{T+1}")
    e(f"v_mul_lo_u32 v{T+2}, v{T+1}, s{T3}"); e(f"v_add_u32 v{T+2}, s{T2}, v{T+2}")
    e(f"s_lshl_b32 s{T3}, s{T3}, 5"); e(f"v_add_u32 v{T+3}, s{T3}, v{T+2}")
    e(f"v_mov_b32 v{T+4}, s{T1}"); e(f"v_cndmask_b32 v{T+2}, v{T+2}, v{T+4}, vcc")
    e(f"v_lshrrev_b32 v{T+4}, 1, v{T}"); e(f"v_xor_b32 v{T+4}, v{T+4}, v{L}"); e(f"v_and_b32 v{T+4}, 7, v{T+4}"); e(f"v_lshlrev_b32 v{T+4}, 4, v{T+4}")
    e(f"v_lshl_add_u32 v{VXD}, v{T+2}, 11, v{T+4}")
    e(f"v_xor_b32 v{T+4}, 64, v{T+4}"); e(f"v_lshl_add_u32 v{VXD+1}, v{T+3}, 11, v{T+4}"); e(f"v_subrev_u32 v{VXD+1}, 1024, v{VXD+1}")
    e(f"s_cmp_eq_u32 s{WAVE}, 7"); e("s_cbranch_scc1 L_wd7")
    e(f"s_lshl_b32 s{T0}, s{WAVE}, 8"); e(f"s_mul_i32 s{T1}, s{C16}, 448"); e(f"s_add_u32 s{T1}, s{T1}, s{MW}")
    e(f"v_add_u32 v{T}, s{T0}, v{L}"); e(f"v_mul_u32_u24 v{T}, 2341, v{T}"); e(f"v_lshl_add_u32 v{T+5}, v{L}, 4, s{T1}")
    e(f"s_movk_i32 s{T2}, {7168-448}")
    for j in range(4):
        if j: e(f"v_add_u32 v{T}, {64*2341}, v{T}")
        e(f"v_lshrrev_b32 v{T+1}, 16, v{T}")
        e(f"v_bfe_u32 v{T+3}, v{T}, 19, 1"); e(f"v_mad_u32_u24 v{T+2}, v{T+1}, s{T2}, v{T+5}")
        e(f"v_lshlrev_b32 v{T+3}, 5, v{T+3}"); e(f"v_xor_b32 v{VWD+j}, v{T+2}, v{T+3}")
    e("s_branch L_wdj")
    e("L_wd7:")
    e(f"v_lshrrev_b32 v{T}, 2, v{L}")
    e(f"v_lshrrev_b32 v{T+1}, 3, v{L}"); e(f"v_xor_b32 v{T+1}, v{T+1}, v{L}")
    e(f"v_and_b32 v{T+1}, 2, v{T+1}"); e(f"v_lshlrev_b32 v{T}, 12, v{T}")
    e(f"v_and_or_b32 v{T+1}, v{L}, 1, v{T+1}"); e(f"v_lshl_add_u32 v{T}, v{T+1}, 4, v{T}")
    e(f"s_lshl_b32 s{T0}, s{CBP}, 6"); e(f"v_add_u32 v{VWD}, s{T0}, v{T}")
    for j in range(1, 4):
        e(f"v_add_u32 v{VWD+j}, {(j&1)*65536 + (j>>1)*2048 - j*1024}, v{VWD}")
    e("L_wdj:")
    e(f"s_lshl_b32 s{WEND}, s{WADV}, 4"); e(f"s_mov_b32 s{T0}, {WS_TOK}")
    e("s_waitcnt lgkmcnt(0)")
    def burst(c):
        for mm, d in a_dmas(c):
            if mm: e(mm); e("s_nop 0")
            m.put(('vm', d, ('A', c)))
        for x in A_ADV: e(x)
    burst(0)
    e(f"s_load_dword s{TOK}, {s(SWS,2)}, s{T0}")
    e(f"s_load_dwordx2 {s(SW2,2)}, s[0:1], 56"); e(f"s_load_dwordx2 {s(SO,2)}, s[0:1], 64")
    e(f"s_and_b32 s{WR}, s{WAVE}, 1"); e(f"s_lshr_b32 s{WC}, s{WAVE}, 1")
    e(f"v_bfe_u32 v{T}, v{L}, 2, 2"); e(f"v_lshrrev_b32 v{T+1}, 4, v{L}")
    e(f"v_lshl_add_u32 v{T+2}, v{T+1}, 3, v{T}"); e(f"v_mul_u32_u24 v{T+2}, 448, v{T+2}")
    e(f"v_and_b32 v{T+3}, 3, v{L}"); e(f"v_lshlrev_b32 v{T+3}, 3, v{T+3}"); e(f"v_add_u32 v{T+2}, v{T+2}, v{T+3}")
    e(f"v_and_b32 v{T+4}, 1, v{T+1}")
    e(f"s_lshl_b32 s{T0}, s{WAVE}, 1"); e(f"s_cmp_eq_u32 s{WC}, 3"); e(f"s_cselect_b32 s{T0}, 12, s{T0}"); e(f"s_cselect_b64 {s(M2,2)}, -1, 0")
    e(f"v_xor_b32 v{T+5}, s{T0}, v{T+4}")
    e(f"v_bfe_u32 v{T+6}, v{L}, 2, 4"); e(f"v_lshl_add_u32 v{T+6}, v{T+6}, 6, v{T+3}"); e(f"v_add_u32 v{T+6}, {LDF}, v{T+6}")
    e(f"v_lshl_add_u32 v{T+6}, v{T+4}, 5, v{T+6}"); e(f"v_xor_b32 v{T+7}, 32, v{T+6}")
    for n in range(4):
        e(f"v_xor_b32 v{T+3}, {n}, v{T+5}"); e(f"v_lshl_add_u32 v{VWB+n}, v{T+3}, 5, v{T+2}")
        if n >= 2: e(f"v_cndmask_b32 v{VWB+n}, v{VWB+n}, v{T+4+n}, {s(M2,2)}")
    e(f"v_and_b32 v{T}, 15, v{L}"); e(f"v_lshlrev_b32 v{T+2}, 7, v{T}")
    e(f"s_lshl_b32 s{T0}, s{WR}, 13"); e(f"s_add_u32 s{T0}, s{T0}, {LX}"); e(f"v_add_u32 v{T+2}, s{T0}, v{T+2}")
    e(f"v_lshrrev_b32 v{T}, 1, v{T}"); e(f"v_xor_b32 v{T}, v{T}, v{T+1}")
    e(f"v_lshl_add_u32 v{VXB}, v{T}, 4, v{T+2}"); e(f"v_xor_b32 v{VXB+1}, 64, v{VXB}")
    ms = misc_setup(opt)
    dl = a_dmas(1)
    for i, (mm, d) in enumerate(dl):
        if mm: e(mm); e("s_nop 0")
        m.put(('vm', d, ('A', 1)))
        for grp in ms[(i*len(ms))//6:((i+1)*len(ms))//6]: m.all(grp)
    for x in A_ADV: e(x)
    e(f"v_lshlrev_b32 v{VL16}, 4, v{L}")
    e(f"s_lshl_b32 s{U0}, s{C16}, 3"); e(f"s_add_u32 s{U0}, s{U0}, s{WAVE}")
    e(f"s_and_b32 s{T0}, s{U0}, 15"); e(f"s_lshl_b32 s{T0}, s{T0}, 2"); e(f"s_add_u32 s{T0}, s{T0}, s{TB}")
    e(f"s_lshl_b32 s{T1}, s{KQ}, 1"); e(f"s_add_u32 s{T0}, s{T0}, s{T1}")
    e(f"s_bfe_u32 s{T1}, s{U0}, 0x20004")
    e(f"s_add_u32 s{T2}, s{T1}, 1"); e(f"s_lshr_b32 s{T2}, s{T2}, 1"); e(f"s_lshl_b32 s{T2}, s{T2}, 10")
    e(f"s_add_u32 s{T3}, s{T2}, s{T0}"); e(f"s_sub_u32 s{U0+1}, s{T2}, s{T0}")
    e(f"s_bitcmp1_b32 s{T1}, 0"); e(f"s_cselect_b32 s{T3}, s{U0+1}, s{T3}")
    e(f"s_lshr_b32 s{T1}, s{T1}, 1"); e(f"s_lshl_b32 s{T1}, s{T1}, 9"); e(f"s_sub_u32 s{T1}, s{T2}, s{T1}")
    e(f"s_cmp_eq_u32 s{T0}, 0"); e(f"s_cselect_b32 s{T3}, s{T1}, s{T3}")
    e(f"s_lshl_b32 s{T3}, s{T3}, 11")
    m.put(('vm', f"buffer_load_dwordx4 {v(SR,4)}, v{VL16}, {s(SX,4)}, s{T3} offen", 'st'))
    m.put(('vm', f"buffer_load_dwordx4 {v(SR+4,4)}, v{VL16}, {s(SX,4)}, s{T3} offen offset:1024", 'st'))
    e(f"s_lshl_b32 s{T0}, s{RB}, 7"); e(f"s_add_u32 s{U0}, s{U0}, s{T0}"); e(f"s_lshl_b32 s{T0}, s{U0}, 4"); e(f"s_add_u32 s{T0}, s{T0}, {WS_NM}")
    e(f"s_lshl_b32 s{T1}, s{U0}, 2"); e(f"s_add_u32 s{T1}, s{T1}, {WS_RS}"); e(f"s_add_u32 s{T2}, s{T1}, {WS_MF-WS_RS}")
    if opt.get('astamp') == 1: stamp(e, opt, 3)

ONES = 124; CS0 = 224
SR = 232
PSEL = 36

def misc_setup(opt):
    D = []; g = D.append
    g([f"v_mov_b32 v{ONES+r}, 0x3f803f80" for r in range(4)])
    g([f"v_add_u32 v{VWB+4+n}, 0x10000, v{VWB+n}" for n in range(4)])
    for r, n in ((SWS, 0x10000000), (SW2, 3584*1024*2), (SO, 0x400000)):
        g([f"s_mov_b32 s{r+2}, {n}", f"s_mov_b32 s{r+3}, 0x00020000"])
    g([f"s_lshl_b32 s{T0}, s{RB}, 4", f"s_add_u32 s{T0}, s{T0}, s{C16}", f"s_lshl_b32 s{T0}, s{T0}, 5", f"s_add_u32 s{T0}, s{T0}, s{WAVE}",
       f"s_lshl_b32 s{SFL}, s{T0}, 2", f"s_add_u32 s{SFL}, s{SFL}, {WS_FL}"])
    if opt.get('b3', 1):
        g([f"s_and_b32 s{T0}, s{RB}, 1", f"s_lshl_b32 s{T0}, s{T0}, 1", f"s_add_u32 s{T0}, s{T0}, s{WR}", f"s_lshl_b32 s{T0}, s{T0}, 3",
           f"s_lshr_b32 s{T1}, s{RB}, 1", f"s_add_u32 s{T0}, s{T0}, s{T1}", f"s_lshl_b32 s{T0}, s{T0}, 4", f"s_add_u32 s{T0}, s{T0}, s{C16}"])
        g(["s_getreg_b32 s3, hwreg(HW_REG_XCC_ID, 0, 4)"])
    else:
        g([f"s_and_b32 s{T0}, s{RB}, 1", f"s_lshl_b32 s{T1}, s{WR}, 1", f"s_add_u32 s{T0}, s{T0}, s{T1}", f"s_lshl_b32 s{T0}, s{T0}, 3",
           f"s_lshr_b32 s{T1}, s{RB}, 1", f"s_add_u32 s{T0}, s{T0}, s{T1}", f"s_lshl_b32 s{T0}, s{T0}, 4", f"s_add_u32 s{T0}, s{T0}, s{C16}"])
    g([f"s_lshl_b32 s{SFD}, s{T0}, 2", f"s_add_u32 s{SFD}, s{SFD}, {WS_FD}"])
    g([f"v_lshrrev_b32 v{T+1}, 4, v{L}", f"s_lshl_b32 s{T0}, s{WR}, 4", f"v_add_u32 v{T}, s{T0}, v{T+1}"])
    g([f"v_bfe_u32 v{T+2}, v{L}, 1, 3", f"v_xor_b32 v{T+2}, v{T+2}, v{T+1}"])
    g([f"s_lshl_b32 s{T0}, s{CBP}, 7", f"s_sub_u32 s{T1}, {2048-256}, s{T0}", f"v_mov_b32 v{T+3}, s{T0}", f"v_mov_b32 v{T+4}, s{T1}"])
    g([f"v_and_b32 v{T+5}, 1, v{L}", f"v_lshlrev_b32 v{T+5}, 4, v{T+5}", f"v_lshl_add_u32 v{T+5}, v{T}, 11, v{T+5}"])
    for j in range(2):
        g(([f"v_xor_b32 v{T+2}, 4, v{T+2}"] if j else []) + [f"v_cmp_lt_u32 vcc, 3, v{T+2}", f"v_lshl_add_u32 v{T+7}, v{T+2}, 5, v{T+5}"])
        g([f"v_cndmask_b32 v{T+6}, v{T+3}, v{T+4}, vcc", f"v_add_u32 v{VW2D+j}, v{T+6}, v{T+7}"])
    g([f"v_add_u32 v{VW2D+1}, {8192-1024}, v{VW2D+1}", f"v_add_u32 v{VW2D+2}, {16384-2048}, v{VW2D}", f"v_add_u32 v{VW2D+3}, {16384-2048}, v{VW2D+1}"])
    g([f"s_and_b32 s{MW2}, s{WAVE}, 3", f"s_lshl_b32 s{MW2}, s{MW2}, 12",
       f"s_mul_i32 s{T0}, s{KQ}, 56", f"s_add_u32 s{W2END}, s{T0}, 56", f"s_lshl_b32 s{W2END}, s{W2END}, 16"])
    g([f"s_mul_i32 s{T1}, s{CBP}, 7", f"s_add_u32 s{T0}, s{T0}, s{T1}", f"s_bfe_u32 s{T1}, s{WAVE}, 0x10001", f"s_add_u32 s{T0}, s{T0}, s{T1}",
       f"s_lshl_b32 s{W2OFF}, s{T0}, 16"])
    g([f"s_cmp_eq_u32 s{WAVE}, 0", f"s_cselect_b32 s{KEY}, 3, 60", f"s_cselect_b32 s{KEY2}, 1, 60"])
    g([f"v_and_b32 v{T+1}, 15, v{L}", f"s_lshl_b32 s{T0}, s{RB}, 4", f"v_add_u32 v{T+2}, s{T0}, v{T+1}", f"v_lshlrev_b32 v{T}, 4, v{T+1}", f"v_add_u32 v{T+1}, s{C16}, v{T}"])
    g([f"v_and_b32 v{T+3}, 16, v{L}", f"v_cmp_eq_u32 vcc, 0, v{T+3}", f"s_mov_b32 s{SWF}, {WS_FL+64}", f"v_cndmask_b32 v{T+1}, v{T+1}, v{T+2}, vcc", f"v_lshlrev_b32 v{T+1}, 7, v{T+1}"])
    g([f"s_lshl_b32 s{T0}, s{WAVE}, 1", f"s_min_u32 s{T0}, s{T0}, 12", f"s_lshl_b32 s{T0}, s{T0}, 8",
       f"s_lshl_b32 s{T1}, s{C16}, 14", f"s_add_u32 s{T0}, s{T0}, s{T1}", f"s_add_u32 s{U0+2}, s{T1}, {WS_CS}"])
    g([f"s_lshr_b32 s{T1}, s{RB}, 2", f"s_lshl_b32 s{T1}, s{T1}, 12", f"s_add_u32 s{T0}, s{T0}, s{T1}",
       f"s_and_b32 s{T1}, s{RB}, 3", f"s_lshl_b32 s{T1}, s{T1}, 2", f"s_add_u32 s{T0}, s{T0}, s{T1}", f"s_add_u32 s{U0+3}, s{T0}, {WS_CS}"])
    g([f"v_lshrrev_b32 v{T+3}, 5, v{L}", f"v_lshl_add_u32 v{T}, v{T+3}, 8, v{T}", f"v_cmp_gt_u32 vcc, 32, v{L}"])
    g([f"v_mov_b32 v{T+8}, 0", f"v_mov_b32 v{T+9}, 0", f"v_mov_b32 v{VZ}, 0"])
    return D

def deferred(opt, sp):
    D = []; g = D.append
    S1, S2, S3, S4, ON, NM = T+8, T+9, T+10, T+11, ONES, T+12
    g([f"s_add_u32 s{TOK}, s{TOK}, 1", f"v_mov_b32 v{VTOK}, s{TOK}"])
    for d in range(8):
        g([f"v_dot2c_f32_bf16 v{S1}, v{SR+d}, v{ON}"]); g([f"v_dot2c_f32_bf16 v{S2}, v{SR+d}, v{SR+d}"])
    g([f"v_cndmask_b32 v{CS0}, v{CS0+4}, v{CS0}, vcc"]); g([f"v_cvt_pk_bf16_f32 v{CS0+1}, v{CS0}, v{CS0}"]); g([f"v_lshlrev_b32 v{CS0+1}, 16, v{CS0+1}"])
    g([f"v_sub_f32 v{CS0+1}, v{CS0}, v{CS0+1}"]); g([f"v_cvt_pk_bf16_f32 v{CS0+1}, v{CS0}, v{CS0+1}"])
    g([('vm', f"buffer_store_dword v{CS0+1}, v{T}, {s(SWS,4)}, s{U0+3} offen sc0 sc1", 'x')])
    for dpp in ("quad_perm:[1,0,3,2] row_mask:0xf", "quad_perm:[2,3,0,1] row_mask:0xf", "row_half_mirror row_mask:0xf", "row_mirror row_mask:0xf",
                "row_bcast:15 row_mask:0xa", "row_bcast:31 row_mask:0xc"):
        g(["s_nop 0", f"v_add_f32_dpp v{S1}, v{S1}, v{S1} {dpp} bank_mask:0xf"]); g(["s_nop 0", f"v_add_f32_dpp v{S2}, v{S2}, v{S2} {dpp} bank_mask:0xf"])
    def bfr(d): g([f"v_cvt_pk_bf16_f32 v{d}, v{d}, v{d}"]); g([f"v_lshlrev_b32 v{d}, 16, v{d}"])
    g([f"v_mul_f32 v{S1}, 0x3a800000, v{S1}"]); g([f"v_mul_f32 v{S2}, 0x3a800000, v{S2}"]); g([f"v_fma_f32 v{S2}, -v{S1}, v{S1}, v{S2}"])
    bfr(S2); g([f"v_add_f32 v{S2}, 0x3727c5ac, v{S2}"])
    bfr(S2); g([f"v_sqrt_f32 v{S2}, v{S2}"])
    g([f"v_cvt_pk_bf16_f32 v{NM}, -v{S1}, -v{S1}"]); bfr(S1)
    bfr(S2); g([f"v_rcp_f32 v{S2}, v{S2}"])
    for r in (1, 2, 3): g([f"v_mov_b32 v{NM+r}, v{NM}"])
    if opt.get('pf', 1) and not sp:
        g([f"s_lshl_b32 s{T3}, s{RB}, 3", f"s_add_u32 s{T3}, s{T3}, s{CBP}", f"s_mul_i32 s{T3}, s{T3}, 6", f"s_add_u32 s{T3}, s{T3}, s{WAVE}", f"s_mul_i32 s{T3}, s{T3}, {25*64}",
           f"s_mul_i32 s{U0+8}, s{KQ}, {3584*2048-57600*64}", f"s_add_u32 s{U0+8}, s{U0+8}, s{T3}"])
        g([f"v_lshlrev_b32 v{EO}, 6, v{L}"]); g([f"v_cmp_gt_u32 {s(M2,2)}, 25, v{L}", f"v_bfrev_b32 v{EO+1}, 2"])
        g([f"v_cndmask_b32 v{EO}, v{EO+1}, v{EO}, {s(M2,2)}"])
    if opt.get('b3', 1): g([f"v_mov_b32 v{S3}, s3"])
    g(["s_mov_b32 exec_lo, 0", "s_brev_b32 exec_hi, 1",
       ('vm', f"buffer_store_dwordx4 {v(NM,4)}, v{VZ}, {s(SWS,4)}, s{T0} offen sc0 sc1", 'x'),
       ('vm', f"buffer_store_dword v{S1}, v{VZ}, {s(SWS,4)}, s{T2} offen sc0 sc1", 'x'),
       ('vm', f"buffer_store_dword v{S2}, v{VZ}, {s(SWS,4)}, s{T1} offen sc0 sc1", 'x')]
      + ([('vm', f"buffer_store_dword v{S3}, v{VZ}, {s(SWS,4)}, s{SFL} offen offset:96 sc0 sc1", 'x')] if opt.get('b3', 1) else [])
      + ["s_mov_b64 exec, -1"])
    return D

def phaseA(e, m, opt, sp):
    P = "LS" if sp else "LN"
    A = PhaseA(e, m, opt, sp)
    if sp:
        e(f"s_setprio {opt.get('psp', 2)}")
        e(f"v_mov_b32 v{PSEL}, 0x05040100"); e(f"v_mov_b32 v{PSEL+1}, 0x07060302")
        e(f"v_mov_b32 v{PSEL+2}, 0xbf803f80"); e(f"v_mov_b32 v{PSEL+3}, 0x3f80bf80")
        e(f"s_cmp_eq_u32 s{C16}, 8"); e(f"s_cselect_b32 s{SPM}, 0x00010001, 0"); e(f"s_mov_b32 s{SPM+1}, s{SPM}")
    elif 'pn' in opt:
        e(f"s_cmp_lt_u32 s{WAVE}, 4"); e(f"s_cbranch_scc1 LN_pr"); e(f"s_setprio {opt['pn']}"); e("LN_pr:")
    D = deferred(opt, sp)
    if sp: gl = [(c, g) for c in (1, 2, 3) for g in list(range(16)) + [18, 22, 26]]
    else: gl = [(c, g) for c in (1, 2, 3) for g in range(32)][:opt.get('dspan', 90)]
    DD = {1: [], 2: [], 3: []}
    for i, grp in enumerate(D):
        c, g = gl[(i*len(gl))//len(D)]
        DD[c].append((g, grp))
    for c in range(4):
        A.body(c, defer=DD.get(c))
        if opt.get('astamp') == 2: stamp(e, opt, 3+c)
    if opt.get('astamp') == 1: stamp(e, opt, 4)
    e(f"s_mov_b32 s{CNT}, 3")
    if opt.get('astamp') == 4: stamp(e, opt, 3)
    e(".p2align 3"); e(f"{P}_loop:")
    for c in (4, 5, 6): A.body(c)
    if opt.get('astamp') == 4:
        e("s_mov_b64 s[88:89], s[90:91]"); e("s_mov_b64 s[90:91], s[92:93]"); stamp(e, opt, 6)
    e(f"s_sub_u32 s{CNT}, s{CNT}, 1"); e(f"s_cmp_gt_i32 s{CNT}, 0"); e(f"s_cbranch_scc1 {P}_loop")
    m.vq = [(t[0], t[1]+6) if isinstance(t, tuple) else t for t in m.vq]
    if opt.get('astamp') == 1: stamp(e, opt, 5)
    A.body(13)
    if opt.get('astamp') == 1: stamp(e, opt, 6)
    return A

class PhaseA:
    def __init__(self, e, m, opt, sp): self.e = e; self.m = m; self.opt = opt; self.sp = sp
    def wread(self, st, off, n, j, half):
        off += st*WST; b = VWB + n
        if off >= 65536: off -= 65536; b += 4
        r = FW + 4*j + 2*half
        return ('ds', f"ds_read_b64_tr_b16 {v(r,2)}, v{b} offset:{off}", [r, r+1])
    def xread(self, st, ks, mm):
        r = FX + 16*ks + 4*mm
        return ('ds', f"ds_read_b128 {v(r,4)}, v{VXB+ks} offset:{st*XST + mm*2048}", range(r, r+4))
    def frag(self, h, j):
        if not self.sp: return j, lambda half: h*14336 + half*1792
        if h == 0: return j % 2, lambda half: (j//2)*14336 + half*1792
        return 2 + j % 2, lambda half: (j//2)*2048 + half*1024
    def mfma(self, h, j, mm, zero):
        w = v(FW+4*j, 4)
        if not self.sp:
            acc = v(ACC+16*j+4*mm, 4); x = v(FX+16*h+4*mm, 4); a, b = w, x; z = zero and h == 0
        elif h == 0:
            acc = v(ACC+16*(j%2)+4*mm, 4); x = v(FX+16*(j//2)+4*mm, 4); a, b = w, x; z = zero and j < 2
        else:
            acc = v(ACC+32+32*(j//2)+16*(j%2)+4*mm, 4); x = v(EO+16*(j//2)+4*mm, 4); a, b = x, w; z = zero
        return f"v_mfma_f32_16x16x32_bf16 {acc}, {a}, {b}, {'0' if z else acc}"
    def xregs(self, h, j):
        if not self.sp: return range(FX+16*h, FX+16*h+16) if j == 0 else []
        if h == 0: return range(FX+16*(j//2), FX+16*(j//2)+16) if j % 2 == 0 else []
        return []
    def step(self, mf, rd, extra):
        e, m, sp = self.e, self.m, self.sp
        fill = [[] for _ in range(16)]
        if mf is not None and sp and mf[1] == 0:
            for mm in range(4):
                for par in range(2):
                    for d in range(4):
                        raw = FX + 16*(d//2) + 4*mm + 2*(d % 2)
                        g = (8 if d >= 2 else 0) + 2*mm + par
                        if not self.opt.get('noperm'): fill[g].append(f"v_perm_b32 v{EO+16*par+4*mm+d}, v{raw+1}, v{raw}, v{PSEL+par}")
        duty = mf is not None and mf[0] == 0 and not (sp and mf[1] == 1)
        if rd is not None:
            c, h = rd; st = c % 3
            if not sp:
                for mm in range(4): fill[2*mm+1].append(self.xread(st, h, mm))
            elif h == 0:
                for q in range(8): fill[(0,1,2,5,6,9,10,13)[q]].append(self.xread(st, q//4, q % 4))
            for j in range(4):
                n, of = self.frag(h, j)
                for half in range(2):
                    fill[min(15, 4*j+3+half)].append(self.wread(st, of(half), n, j, half))
        for g, l in extra.items(): fill[g] += l
        for j in range(4):
            for mi in range(4):
                mm = mi if j % 2 == 0 else 3 - mi
                if mf is not None:
                    if mi == 0:
                        m.nds(list(range(FW+4*j, FW+4*j+4)) + list(self.xregs(mf[1], j)))
                        if sp and mf[1] == 1 and j % 2 == 0:
                            for d in range(4): e(f"v_cndmask_b32 v{FW+4*j+d}, v{FW+4*j+d}, v{PSEL+2+j//2}, {s(SPM,2)}")
                            e("s_nop 1")
                    if not self.opt.get('nomfma'): e(self.mfma(mf[1], j, mm, mf[0] == 0))
                    if duty and mi == 1 and (sp or j < 2):
                        cs = v(CS0+4*(j % 2), 4)
                        first = (j < 2) if sp else mf[1] == 0
                        e(f"v_mfma_f32_16x16x32_bf16 {cs}, {v(ONES,4)}, {v(FW+4*j,4)}, {'0' if first else cs}")
                m.all(fill[4*j+mi])
    def body(self, c, vmx=None, pre=None, defer=None):
        e, m, opt = self.e, self.m, self.opt
        P = "LS" if self.sp else "LN"
        if c == 4:
            assert opt.get('nodma') or m.vq[-1] == ('A', 5)
            e("s_waitcnt vmcnt(6)"); m.vq = m.vq[-6:]
        elif c == 1: m.nvm(('A', c), 'st'); m.ds0()
        else: m.nvm(('A', c))
        if c == 13 and not self.sp:
            e(f"s_cmp_lg_u32 s{WAVE}, 0"); e(f"s_cbranch_scc1 {P}_ck2")
            e(f"s_mov_b32 s{BND}, 4000")
            e(f"{P}_ck0:")
            e(f"v_cmp_ne_u32 vcc, v{VTOK}, v{T+2}"); e("s_cmp_eq_u64 vcc, 0"); e(f"s_cbranch_scc1 {P}_ck2")
            e(f"s_sub_u32 s{BND}, s{BND}, 1"); e(f"s_cmp_eq_u32 s{BND}, 0"); e(f"s_cbranch_scc1 {P}_ck2")
            e(f"buffer_load_dword v{T+2}, v{T+1}, {s(SWS,4)}, s{SWF} offen sc0 sc1"); e("s_waitcnt vmcnt(0)")
            e(f"s_branch {P}_ck0")
            e(f"{P}_ck2:")
        e("s_barrier")
        if c == 0: stamp(e, opt, 1)
        if c == 5 and not self.sp:
            e(f"s_cmp_lg_u32 s{CNT}, s{KEY}"); e(f"s_cbranch_scc1 {P}_nf")
            e("s_mov_b64 exec, 1")
            e(f"buffer_store_dword v{VTOK}, v{VZ}, {s(SWS,4)}, s{SFL} offen offset:64 sc0 sc1")
            e("s_mov_b64 exec, -1")
            e(f"{P}_nf:")
        if c == 6 and not self.sp:
            e(f"s_cmp_lg_u32 s{CNT}, s{KEY2}"); e(f"s_cbranch_scc1 {P}_np")
            e(f"buffer_load_dword v{T+2}, v{T+1}, {s(SWS,4)}, s{SWF} offen sc0 sc1")
            e(f"{P}_np:")
        if pre: m.all(pre)
        ex = [{}, {}]
        def at(g, it): ex[g//16].setdefault(g % 16, []).append(it)
        if vmx is None:
            vmx = [(mm, ('vm', d, ('A', c+2)), None) for mm, d in a_dmas((c+2) % 3)]
            vmx[-1] = (vmx[-1][0], vmx[-1][1], A_ADV)
        for i, (mm, d, post) in enumerate(vmx):
            g = min(30, 1 + (i*32)//len(vmx))
            if mm: at(g-1, mm)
            at(g, d)
            if post:
                for x in post: at(g+1, x)
        if c == 5 and not self.sp and opt.get('pf', 1):
            at(opt.get('pfg', 2), ('vm', f"buffer_load_dword v{EO+1}, v{EO}, {s(SW2,4)}, s{U0+8} offen{opt.get('pfb', '')}", ('A', c+2)))
            at(opt.get('pfg', 2)+1, f"s_add_u32 s{U0+8}, s{U0+8}, {19200*64}")
        for g, grp in (defer or []):
            for x in grp: at(g, x)
        self.step((c-1, 1) if c > 0 else None, (c, 0), ex[0])
        self.step((c, 0), (c, 1), ex[1])

    def tail(self, helper):
        e, m, opt, sp = self.e, self.m, self.opt, self.sp
        NB = 2 if sp else 4
        WX = 224; NMF = 240; RHO = 192 if not sp else None
        pre = [f"v_lshrrev_b32 v{T+5}, 4, v{L}", f"v_and_b32 v{T+4}, 15, v{L}", f"v_lshlrev_b32 v{T+4}, 4, v{T+4}",
               f"v_lshl_add_u32 v{T+3}, v{T+5}, 12, v{T+4}",
               f"s_lshl_b32 s{T0}, s{WAVE}, 1", f"s_min_u32 s{T0}, s{T0}, 12", f"s_lshl_b32 s{T0}, s{T0}, 8",
               f"s_add_u32 s{U0+3}, s{U0+2}, s{T0}", f"s_xor_b32 s{U0+4}, s{U0+3}, 512",
               f"s_lshl_b32 s{T0}, s{RB}, 1", f"s_add_u32 s{T0}, s{T0}, s{WR}", f"s_lshl_b32 s{U0+5}, s{T0}, 10", f"s_add_u32 s{U0+5}, s{U0+5}, {WS_NM}",
               f"s_lshl_b32 s{U0+6}, s{T0}, 8", f"s_add_u32 s{U0+6}, s{U0+6}, {WS_RS}", f"v_lshlrev_b32 v{T+5}, 4, v{T+5}"]
        ld = []
        for n in range(NB):
            ld.append((None, ('vm', f"buffer_load_dwordx4 {v(WX+4*n,4)}, v{T+3}, {s(SWS,4)}, s{U0+3+n//2} offen offset:{(n%2)*256} sc0 sc1", 'ext'), None))
        for mm in range(4):
            ld.append((None, ('vm', f"buffer_load_dwordx4 {v(NMF+4*mm,4)}, v{T+4}, {s(SWS,4)}, s{U0+5} offen offset:{mm*256} sc0 sc1", 'ext'), None))
        B3 = opt.get('b3', 1)
        if B3: ld.append((None, ('vm', f"buffer_load_dword v{T+2}, v{T+1}, {s(SWS,4)}, s{SWF} offen offset:32 sc0 sc1", 'ext'), None))
        def w2l(i):
            l = [(mm, ('vm', d, ('W', i)), None) for mm, d in w2_dmas(i)]
            l[-1] = (l[-1][0], l[-1][1], W2_ADV)
            return l
        if opt.get('astamp') == 3: stamp(e, opt, 3)
        DD = [[], []]
        if not helper and not opt.get('aonly'):
            import gen2b, gen3b
            D = (gen3b if B3 else gen2b).compute_setup(opt)
            for i, grp in enumerate(D):
                g = (i*62)//len(D); DD[g//32].append((g % 32, grp))
        self.body(14, ld + (w2l(0) + w2l(1) if helper else []), pre, DD[0])
        if opt.get('astamp') == 3: stamp(e, opt, 4)
        self.body(15, w2l(2) if helper else [], None, DD[1])
        if opt.get('astamp') == 3: stamp(e, opt, 5)
        post = [f"s_mul_i32 s{T0}, s{RB}, {4*112*2048}", f"s_mul_i32 s{T1}, s{C16}, {7*2048}", f"s_add_u32 s{T0}, s{T0}, s{T1}",
                f"s_min_u32 s{T1}, s{WAVE}, 6", f"s_lshl_b32 s{T1}, s{T1}, 11", f"s_lshl_b32 s{T2}, s{WR}, 10", f"s_add_u32 s{T1}, s{T1}, s{T2}",
                f"v_add_u32 v{T+6}, s{T1}, v{VL16}", f"v_xor_b32 v{T+7}, 2048, v{T+6}"]
        post += [f"s_add_u32 s{U0+7+i}, s{T0}, {i*112*2048}" for i in range(1, 3)] + [f"s_add_u32 s{T1}, s{T0}, {3*112*2048}"]
        sH = [T0, U0+8, U0+9, T1]
        ex = {}
        for i, x in enumerate(post): ex.setdefault(i, []).append(x)
        if sp:
            for mm in range(4):
                ex.setdefault(12, []).append(('vm', f"buffer_load_dwordx4 {v(FX+4*mm,4)}, v{T+5}, {s(SWS,4)}, s{U0+6} offen offset:{mm*64} sc0 sc1", 'rho'))
            ex[12].append(f"s_add_u32 s{U0+6}, s{U0+6}, {WS_MF-WS_RS}")
            for mm in range(4):
                ex.setdefault(13, []).append(('vm', f"buffer_load_dwordx4 {v(FX+16+4*mm,4)}, v{T+5}, {s(SWS,4)}, s{U0+6} offen offset:{mm*64} sc0 sc1", 'rho'))
        self.step((15, 1), None, ex)
        stamp(e, opt, 2)
        m.nvm('ext')
        pk = [(p, mm) for p in range(NB//2) for mm in range(4)]
        PK = EO if sp else FX
        e(f"v_add_u32 v{T+8}, 32768, v{T+6}"); e(f"v_add_u32 v{T+9}, 32768, v{T+7}")
        def epi(hst):
            def fin(i):
                p, mm = pk[i]; D = PK + 4*i
                for b in range(2):
                    a = ACC + 16*(2*p+b) + 4*mm
                    e(f"v_cvt_pk_bf16_f32 v{D+2*b}, v{a}, v{a+1}"); e(f"v_cvt_pk_bf16_f32 v{D+2*b+1}, v{a+2}, v{a+3}")
                for d in range(4): e(f"v_pk_max_i16 v{D+d}, v{D+d}, 0")
                m.put(('vm', f"buffer_store_dwordx4 {v(D,4)}, v{T+6+p}, {s(SWS,4)}, s{sH[mm]} offen{hst}", 'H'))
                m.put(('ds', f"ds_write_b128 v{T+6+p}, {v(D,4)} offset:{LOH + mm*14336 - (32768 if mm >= 2 else 0)}".replace(f"v{T+6+p},", f"v{T+6+p+(2 if mm >= 2 else 0)},"), []))
            for i, (p, mm) in enumerate(pk):
                for b in range(2):
                    acc = v(ACC+16*(2*p+b)+4*mm, 4)
                    e(f"v_mfma_f32_16x16x32_bf16 {acc}, {v(WX+4*(2*p+b),4)}, {v(NMF+4*mm,4)}, {acc}")
                if i >= 2: fin(i-2)
            e("s_nop 7")
            fin(len(pk)-2); fin(len(pk)-1)
        if B3:
            Q = "LT" + ("S" if sp else ("H" if helper else "C"))
            if 'loc' in opt: e(f"s_mov_b32 s{LOC}, {opt['loc']}")
            else:
                e(f"v_cmp_ne_u32 vcc, s3, v{T+2}"); e(f"s_lshl_b32 s{T2}, s{KQ}, 3"); e(f"s_lshr_b32 s{T2}, vcc_lo, s{T2}")
                e(f"s_and_b32 s{T2}, s{T2}, 0xff"); e(f"s_cselect_b32 s{LOC}, 0, 1")
            e(f"s_cmp_lg_u32 s{LOC}, 0"); e(f"s_cbranch_scc1 {Q}_l")
            st = (list(m.dq), list(m.vq))
            epi(' sc0 sc1')
            e(f"s_branch {Q}_j"); e(f"{Q}_l:")
            m.dq, m.vq = list(st[0]), list(st[1])
            epi('')
            e(f"{Q}_j:")
        else: epi(opt.get('hst', ' sc0 sc1'))
        if opt.get('astamp') == 3: stamp(e, opt, 6)
        if sp and opt.get('aonly'): dft_epilogue(e, m, opt)

def dft_epilogue(e, m, opt, flag=False):
    RHO = FX; MF = FX+16; RE = FW
    A1, A2E, A2O, A1s, A2s, C1, KM = T, T+1, T+2, T+3, T+4, 130, T+5
    G = 132
    e(f"s_mul_i32 s{T0}, s{KQ}, {AE_MAT}")
    e(f"s_and_b32 s{T1}, s{RB}, 1"); e(f"s_lshl_b32 s{T2}, s{WR}, 1"); e(f"s_add_u32 s{T1}, s{T1}, s{T2}"); e(f"s_mul_i32 s{T1}, s{T1}, {AE_C}"); e(f"s_add_u32 s{T0}, s{T0}, s{T1}")
    e(f"s_lshr_b32 s{T1}, s{RB}, 1"); e(f"s_lshl_b32 s{T1}, s{T1}, 10"); e(f"s_add_u32 s{T0}, s{T0}, s{T1}"); e(f"s_add_u32 s{T0}, s{T0}, {WS_AE}")
    e(f"v_bfe_u32 v{T+8}, v{L}, 4, 1"); e(f"v_mul_u32_u24 v{T+8}, {AE_PAR}, v{T+8}")
    e(f"v_lshrrev_b32 v{T+9}, 5, v{L}"); e(f"v_lshl_add_u32 v{T+8}, v{T+9}, 9, v{T+8}"); e(f"v_add_u32 v{T+8}, s{T0}, v{T+8}")
    e(f"v_and_b32 v{T+9}, 15, v{L}"); e(f"v_cmp_eq_u32 vcc, 0, v{T+9}"); e(f"v_lshlrev_b32 v{T+9}, 4, v{T+9}")
    e(f"s_mul_i32 s{T1}, s{CBP}, {AE_ET}"); e(f"s_sub_u32 s{T2}, {15*AE_ET}, s{T1}")
    e(f"v_add3_u32 v{A1}, v{T+8}, v{T+9}, s{T1}")
    e(f"v_sub_u32 v{T+9}, v{T+8}, v{T+9}"); e(f"v_add_u32 v{T+9}, s{T2}, v{T+9}")
    e(f"v_add_u32 v{A2O}, 256, v{T+9}"); e(f"v_add_u32 v{A2E}, 512, v{T+9}"); e(f"v_add_u32 v{T+9}, {AE_ET}, v{T+9}")
    e(f"v_cndmask_b32 v{A2E}, v{A2E}, v{T+9}, vcc")
    e(f"v_add_u32 v{T+9}, {(8*AE_ET - AE_MAT) & 0xffffffff}, v{A1}"); e(f"v_cndmask_b32 v{A1s}, v{A1}, v{T+9}, {s(SPM,2)}")
    e(f"v_add_u32 v{T+9}, {8*AE_ET}, v{A1}"); e(f"v_cndmask_b32 v{A2s}, v{A2E}, v{T+9}, {s(SPM,2)}")
    e(f"v_mov_b32 v{C1}, 1.0"); e(f"v_cndmask_b32 v{C1}, v{C1}, v{VZ}, {s(SPM,2)}"); e(f"v_mov_b32 v{C1+1}, v{C1}")
    e(f"s_cmp_eq_u32 s{C16}, 0"); e(f"s_cselect_b32 s{T1}, 0xc4000000, 0"); e(f"v_mov_b32 v{T+9}, s{T1}")
    e(f"v_cndmask_b32 v{KM}, v{VZ}, v{T+9}, vcc")
    e(f"s_lshl_b32 s{T3}, s{KQ}, 31"); e(f"s_mul_i32 s{T2}, s{KQ}, 0x80008000")
    e(f"s_or_b32 s{U0}, s{RB}, s{WR}")
    E = lambda n, i: ACC+32+16*n+4*i
    O = lambda n, i: ACC+64+16*n+4*i
    m.nvm('rho')
    for r in range(16):
        e(f"v_fmac_f32 v{E(0,0)+r}, v{MF+r}, v{KM}"); e(f"v_fmac_f32 v{O(0,0)+r}, v{MF+r}, v{KM}")
    e(f"s_cmp_lg_u32 s{U0}, 0"); e("s_cbranch_scc1 LD_nz")
    e(f"v_cmp_gt_u32 {s(M2,2)}, 16, v{L}")
    for r in range(16): e(f"v_mov_b32 v{G+r}, 0")
    for n in range(2):
        X = G + 8*n; Y = T+8
        if n == 0:
            e(f"v_fma_f32 v{Y}, v{O(n,2)}, v{C1}, v{E(n,2)}"); e(f"v_fma_f32 v{Y+1}, v{O(n,3)}, v{C1}, v{E(n,3)}")
        else:
            e(f"v_add_f32 v{Y}, v{O(n,2)}, v{E(n,2)}"); e(f"v_add_f32 v{Y+1}, v{O(n,3)}, v{E(n,3)}")
        e(f"v_sub_f32 v{Y+2}, v{E(n,2)}, v{O(n,2)}"); e(f"v_sub_f32 v{Y+3}, v{E(n,3)}, v{O(n,3)}")
        e(f"v_mul_f32 v{Y}, v{Y}, v{RHO+8}"); e(f"v_fmac_f32 v{Y}, v{Y+1}, v{RHO+12}")
        e(f"v_mul_f32 v{Y+2}, v{Y+2}, v{RHO+8}"); e(f"v_fmac_f32 v{Y+2}, v{Y+3}, v{RHO+12}")
        e(f"v_cvt_pk_bf16_f32 v{Y}, v{Y}, v{VZ}"); e(f"v_cvt_pk_bf16_f32 v{Y+2}, v{Y+2}, v{VZ}")
        e(f"v_cndmask_b32 v{X}, v{VZ}, v{Y}, {s(M2,2)}"); e(f"v_cndmask_b32 v{X+4}, v{VZ}, v{Y+2}, {s(M2,2)}")
    e(f"s_movk_i32 s{T0}, 8192")
    e(f"buffer_store_dwordx4 {v(G,4)}, v{A1s}, {s(SWS,4)}, s{T0} offen sc0 sc1")
    e(f"buffer_store_dwordx4 {v(G+4,4)}, v{A2s}, {s(SWS,4)}, s{T0} offen sc0 sc1")
    e(f"buffer_store_dwordx4 {v(G+8,4)}, v{A1}, {s(SWS,4)}, s{T0} offen offset:256 sc0 sc1")
    e(f"buffer_store_dwordx4 {v(G+12,4)}, v{A2O}, {s(SWS,4)}, s{T0} offen sc0 sc1")
    e("LD_nz:")
    e(f"s_cmp_lg_u32 s{C16}, 8"); e("s_cbranch_scc1 LD_ns")
    for r in range(4): e(f"v_mov_b32 v{T+8+r}, 0")
    e(f"s_mov_b64 exec, {s(SPM,2)}")
    e(f"buffer_store_dwordx4 {v(T+8,4)}, v{A1}, {s(SWS,4)}, 0 offen sc0 sc1")
    e(f"buffer_store_dwordx4 {v(T+8,4)}, v{A2E}, {s(SWS,4)}, 0 offen sc0 sc1")
    e("s_mov_b64 exec, -1")
    e("LD_ns:")
    e(f"s_cmp_eq_u32 s{U0}, 0"); e(f"s_cselect_b32 s{M2}, 0xffff, 0"); e(f"s_mov_b32 s{M2+1}, 0")
    for r in range(16): e(f"v_mov_b32 v{RE+r}, v{RHO+r}")
    e(f"v_cndmask_b32 v{RE+8}, v{RE+8}, v{VZ}, {s(M2,2)}"); e(f"v_cndmask_b32 v{RE+12}, v{RE+12}, v{VZ}, {s(M2,2)}")
    e(f"s_cmp_eq_u32 s{KQ}, 0"); e("s_cbranch_scc1 LD_cos")
    for r in range(4):
        e(f"v_xor_b32 v{RHO+4+r}, s{T3}, v{RHO+4+r}"); e(f"v_xor_b32 v{RHO+12+r}, s{T3}, v{RHO+12+r}")
    e(f"v_xor_b32 v{T+8}, s{T3}, v{RHO+8}")
    e(f"v_cndmask_b32 v{RHO}, v{RHO}, v{VZ}, {s(M2,2)}"); e(f"v_cndmask_b32 v{RHO+4}, v{RHO+4}, v{VZ}, {s(M2,2)}")
    e(f"v_cndmask_b32 v{RHO+8}, v{RHO+8}, v{T+8}, {s(M2,2)}")
    for r in range(16): e(f"v_cndmask_b32 v{RE+r}, v{RHO+r}, v{RE+r}, {s(SPM,2)}")
    e("s_branch LD_go")
    e("LD_cos:")
    e(f"v_mov_b32 v{RHO+8}, v{RE+8}"); e(f"v_mov_b32 v{RHO+12}, v{RE+12}")
    e("LD_go:")
    for n in range(2):
        for X, R in ((E, RE if n == 0 else RHO), (O, RHO)):
            for r in (0, 2):
                e(f"v_pk_mul_f32 {v(X(n,0)+r,2)}, {v(X(n,0)+r,2)}, {v(R+r,2)}")
                e(f"v_pk_mul_f32 {v(X(n,1)+r,2)}, {v(X(n,1)+r,2)}, {v(R+4+r,2)}")
            for r in (0, 2):
                e(f"v_pk_fma_f32 {v(X(n,0)+r,2)}, {v(X(n,3)+r,2)}, {v(R+12+r,2)}, {v(X(n,0)+r,2)}")
                e(f"v_pk_fma_f32 {v(X(n,1)+r,2)}, {v(X(n,2)+r,2)}, {v(R+8+r,2)}, {v(X(n,1)+r,2)}")
        for i in (0, 1):
            for r in (0, 2):
                if n == 0:
                    e(f"v_pk_fma_f32 {v(E(n,2+i)+r,2)}, {v(O(n,i)+r,2)}, {v(C1,2)}, {v(E(n,i)+r,2)}")
                    e(f"v_pk_fma_f32 {v(O(n,2+i)+r,2)}, {v(E(n,i)+r,2)}, {v(C1,2)}, {v(O(n,i)+r,2)} neg_lo:[0,0,1] neg_hi:[0,0,1]")
                else:
                    e(f"v_pk_add_f32 {v(E(n,2+i)+r,2)}, {v(E(n,i)+r,2)}, {v(O(n,i)+r,2)}")
                    e(f"v_pk_add_f32 {v(O(n,2+i)+r,2)}, {v(E(n,i)+r,2)}, {v(O(n,i)+r,2)} neg_lo:[0,1] neg_hi:[0,1]")
        for X in (E, O):
            for r in (0, 2):
                e(f"v_pk_add_f32 {v(X(n,0)+r,2)}, {v(X(n,2)+r,2)}, {v(X(n,3)+r,2)}")
                e(f"v_pk_add_f32 {v(X(n,1)+r,2)}, {v(X(n,2)+r,2)}, {v(X(n,3)+r,2)} neg_lo:[0,1] neg_hi:[0,1]")
        for X in (E, O):
            for d in range(4):
                e(f"v_cvt_pk_bf16_f32 v{X(n,2)+d}, v{X(n,0)+2*d}, v{X(n,0)+2*d+1}")
        for d in range(4): e(f"v_xor_b32 v{O(n,2)+d}, s{T2}, v{O(n,2)+d}")
        e("s_nop 0")
        for X in (E, O):
            e(f"v_permlane16_swap_b32 v{X(n,2)}, v{X(n,2)+2}"); e(f"v_permlane16_swap_b32 v{X(n,2)+1}, v{X(n,2)+3}")
        e("s_nop 1")
        if n == 0:
            if flag: hflag(e, m, 'LD')
            m.put(('vm', f"buffer_store_dwordx4 {v(E(n,2),4)}, v{A1s}, {s(SWS,4)}, 0 offen sc0 sc1", 'AE'))
            m.put(('vm', f"buffer_store_dwordx4 {v(O(n,2),4)}, v{A2s}, {s(SWS,4)}, 0 offen sc0 sc1", 'AE'))
        else:
            m.put(('vm', f"buffer_store_dwordx4 {v(E(n,2),4)}, v{A1}, {s(SWS,4)}, 0 offen offset:256 sc0 sc1", 'AE'))
            m.put(('vm', f"buffer_store_dwordx4 {v(O(n,2),4)}, v{A2O}, {s(SWS,4)}, 0 offen sc0 sc1", 'AE'))

def hflag(e, m, P=None):
    m.nvm('H')
    e("s_mov_b64 exec, 1")
    if P and m.opt.get('b3', 1):
        e(f"s_cmp_lg_u32 s{LOC}, 0"); e(f"s_cbranch_scc1 {P}_hl")
        e(f"buffer_store_dword v{VTOK}, v{VZ}, {s(SWS,4)}, s{SFL} offen sc0 sc1"); e(f"s_branch {P}_hj")
        e(f"{P}_hl:")
        m.put(('vm', f"buffer_store_dword v{VTOK}, v{VZ}, {s(SWS,4)}, s{SFL} offen", 'fl'))
        e(f"{P}_hj:")
    else:
        m.put(('vm', f"buffer_store_dword v{VTOK}, v{VZ}, {s(SWS,4)}, s{SFL} offen{m.opt.get('fst', ' sc0 sc1')}", 'fl'))
    e("s_mov_b64 exec, -1")

def tokbump(e, P):
    e("s_cmp_lg_u32 s2, 0"); e(f"s_cbranch_scc1 {P}_tb")
    e(f"s_mov_b32 s{T0}, {WS_TOK}"); e("s_mov_b64 exec, 1")
    e(f"buffer_store_dword v{VTOK}, v{VZ}, {s(SWS,4)}, s{T0} offen sc0 sc1")
    e("s_mov_b64 exec, -1")
    e(f"{P}_tb:")

def write_stamps(e, opt):
    if not opt.get('stamp'): return
    e("s_waitcnt vmcnt(0)")
    stamp(e, opt, 7)
    e("s_waitcnt lgkmcnt(0)")
    for i in range(8): e(f"v_mov_b32 v{2+i}, s{80+2*i}")
    e(f"s_lshl_b32 s3, s2, 3"); e(f"s_add_u32 s3, s3, s{WAVE}"); e("s_lshl_b32 s3, s3, 5"); e(f"s_add_u32 s3, s3, {WS_STAMP}")
    e("s_mov_b64 exec, 1"); e("v_mov_b32 v10, 0")
    e(f"buffer_store_dwordx4 v[2:5], v10, {s(SWS,4)}, s3 offen")
    e(f"buffer_store_dwordx4 v[6:9], v10, {s(SWS,4)}, s3 offen offset:16")

KN = "parallel_sum__spectral_fnet__dense_activation_relu__prompt_kernel"
def gen(opt):
    import copy
    e = Asm(); m = Em(e, opt)
    e("; @launch grid=(256,1,1) block=(512,1,1) lds=163840")
    e('.amdgcn_target "amdgcn-amd-amdhsa--gfx950"'); e(".text")
    e(f".globl {KN}"); e(".p2align 8"); e(f".type {KN},@function"); e(f"{KN}:")
    if opt.get('stamp'):
        for i in range(80, 96): e(f"s_mov_b32 s{i}, 0")
    prologue(e, m, opt)
    e(f"s_cmp_ge_u32 s{WAVE}, 6"); e("s_cbranch_scc1 L_spec")
    st0 = (list(m.dq), list(m.vq))
    A = phaseA(e, m, opt, False)
    e(f"s_cmp_ge_u32 s{WAVE}, 4"); e("s_cbranch_scc1 L_nh")
    st1 = (list(m.dq), list(m.vq))
    aonly = opt.get('aonly')
    import gen2b, gen3b
    if opt.get('b3', 1): gen2b = gen3b
    A.tail(False)
    if aonly: hflag(e, m); tokbump(e, "LA"); write_stamps(e, opt); e("s_endpgm")
    else: gen2b.compute(e, m, opt)
    e("L_spec:")
    m.dq, m.vq = list(st0[0]), list(st0[1])
    S = phaseA(e, m, opt, True)
    S.tail(True)
    if aonly: hflag(e, m); write_stamps(e, opt); e("s_endpgm")
    else: gen2b.helper(e, m, opt, True)
    e("L_nh:")
    m.dq, m.vq = list(st1[0]), list(st1[1])
    A.tail(True)
    if aonly: hflag(e, m); write_stamps(e, opt); e("s_endpgm")
    else: gen2b.helper(e, m, opt, False)
    e("L_end:"); e("s_endpgm")
    e('.section .rodata,"a"')
    kernel_desc(e, KN, vgprs=256, accum=256)
    return fix_hazards(e.text())

import re
def fix_hazards(txt):
    out = []; hist = []
    def regs(tok, kind):
        tok = tok.strip()
        if kind == 's' and tok == 'vcc': return {'vcc'}
        mm = re.fullmatch(kind + r'\[(\d+):(\d+)\]', tok.lstrip('-'))
        if mm: return set(range(int(mm.group(1)), int(mm.group(2))+1))
        mm = re.fullmatch(kind + r'(\d+)', tok.lstrip('-'))
        return {int(mm.group(1))} if mm else set()
    n = 0
    for l in txt.split('\n'):
        op = l.split(' ')[0]
        if not l or op.startswith(('.', ';')) or l.startswith(' '): out.append(l); continue
        if l.endswith(':'): out.append(l); continue
        ws = set(); wt = set()
        if op.startswith('v_'):
            args = [a.split(' ')[0] for a in [x.strip() for x in l[len(op):].split(',')]]
            rs = set(); rv = set()
            for a in args[1:]: rs |= regs(a, 's'); rv |= regs(a, 'v')
            need = 0
            for d, (s_, t_) in enumerate(reversed(hist[-2:])):
                if s_ & rs: need = max(need, 2 - d)
                if d == 0 and t_ & rv: need = max(need, 1)
            if need:
                out.append(f"s_nop {need-1}"); hist += [(set(), set())]*need; n += 1
            if op.startswith('v_cmp') or op.startswith('v_readfirstlane'): ws = regs(args[0], 's')
            if op in ('v_cos_f32', 'v_sin_f32', 'v_rcp_f32', 'v_sqrt_f32'): wt = regs(args[0], 'v')
        out.append(l)
        if op == 's_nop': hist += [(set(), set())]*(int(l.split()[1])+1)
        else: hist.append((ws, wt))
        hist = hist[-4:]
    return '\n'.join(out)

if __name__ == "__main__":
    opt = {}
    for a in sys.argv[2:]:
        k, val = a.split('='); opt[k] = eval(val)
    open(sys.argv[1], 'w').write(gen(opt))
```

```python
from gen2 import *
import gen2 as G2

NT = 6
SLOT = [114688, 147456, 131072, 0, 16384, 98304, 32768, 49152]
STG = [SLOT[c % 8] for c in range(28)]
HS = [192, 208, 224, 240, 56, 72, 88, 2]
FB = 24; BWB = 104
VHL, VFA, VFV, VFR = 124, 125, 126, 127
LPB = 65536; LCD = 90112; LFL = 97792
SEL = 40
CK0, CK1 = 46, 47
HOFF = HOFF0
NORD = [0, 1, 6, 7, 2, 3, 4, 5]
FX2 = FM

def hreg(c, k, mm): return HS[c % 8] + 8*k + 4*mm

def compute_setup(opt):
    D = []; g = D.append
    A, B, C = T+10, T+11, T+12
    g([f"v_bfe_u32 v{A}, v{L}, 2, 4"]); g([f"v_lshlrev_b32 v{B}, 8, v{A}"]); g([f"v_and_b32 v{C}, 3, v{L}"]); g([f"v_lshl_add_u32 v{B}, v{C}, 3, v{B}"])
    g([f"v_and_b32 v{A}, 7, v{A}"]); g([f"s_lshl_b32 s{T0}, s{KQ}, 1", f"v_xor_b32 v{A}, s{T0}, v{A}"])
    for n in range(8):
        g([f"v_xor_b32 v{C}, {NORD[n]}, v{A}"]); g([f"v_lshl_add_u32 v{BWB+n}, v{C}, 5, v{B}"]); g([f"v_add_u32 v{BWB+8+n}, {LX}, v{BWB+n}"])
    g([f"s_mul_i32 s{T0}, s{WAVE}, 14336", f"s_add_u32 s{T0}, s{T0}, {LOH}", f"v_add_u32 v{VHL}, s{T0}, v{VL16}"])
    g([f"v_lshlrev_b32 v{VFA}, 2, v{L}"]); g([f"v_add_u32 v{VFA}, {LFL}, v{VFA}"])
    g([f"s_lshl_b32 s{FX2}, 0x11111111, s{WAVE}", f"s_mov_b32 s{FX2+1}, 0"])
    g([f"s_lshl_b32 s{T0}, s{RB}, 2", f"s_add_u32 s{T0}, s{T0}, s{WAVE}", f"s_lshl_b32 s{T0}, s{T0}, 1", f"s_add_u32 s{T0}, s{T0}, s{KQ}",
       f"s_mul_i32 s{T0}, s{T0}, {56*2048}", f"s_add_u32 s{HEND}, s{T0}, {56*2048}",
       f"s_add_u32 s{T1}, s{CBP}, 1", f"s_and_b32 s{T1}, s{T1}, 7", f"s_mul_i32 s{T1}, s{T1}, {7*2048}", f"s_add_u32 s{HOFF}, s{T0}, s{T1}"])
    g([f"s_add_u32 s{W2OFF}, s{W2OFF}, {2*64*2048}"] + W2_ADV)
    g([f"s_lshl_b32 s{T0}, s2, 2", f"s_add_u32 s{T0}, s{T0}, s{WAVE}", f"s_lshl_b32 s{SEXS}, s{T0}, 13", f"s_add_u32 s{SEXS}, s{SEXS}, {WS_EX}"])
    g([f"s_mov_b32 s{SEL+i}, {0x07060500 + i}" for i in range(4)])
    return D

def bstamp(e, opt, k, i):
    if opt.get('bstamp') == k: stamp(e, opt, i)

class Plan:
    def __init__(self, opt):
        NM = self.NM = 28 - NT
        steps = [[(c, k, n) for n in range(8)] for c in range(NM) for k in range(2)]
        steps += [[(c, k, n) for k in range(2) for n in range(4, 8)] for c in range(NM, 28)]
        own = [(c, k, n) for n in range(4) for c in range(NM, 28) for k in range(2)]
        steps += [own[8*i:8*i+8] for i in range(NT)]
        self.steps = steps; NS = self.NS = len(steps); self.SP = 2*NM + NT
        FK = self.FK = opt.get('fk', 4); assert FK % 2 == 0
        touch = {}; use = {}
        for i, st in enumerate(steps):
            for (c, k, n) in st:
                touch.setdefault(c, i-1); use.setdefault(2*c+k, i)
        self.pub = {}
        for c in range(3, 28): self.pub.setdefault(touch[c]-2, []).append(c)
        self.pub.setdefault(1, [])
        self.chk = sorted(i+1 for i in self.pub)
        assert FK in self.chk
        VR = opt.get('vr', 3); VR0 = opt.get('vr0', 2)
        dq = []
        for c in range(3, 28):
            av = 0 if c < 6 else (3*16 if c < 8 else (2*(c-8)+3)*16)
            for j in range(4): dq.append((av, (touch[c]-2)*16 + 14 - opt.get('db', 0), ('W', c, j)))
        hq = []
        for kk in range(7, 56):
            c = kk//2
            av = max((FK+1)*16, 0 if c < 8 else (2*(c-8) + kk % 2 + 1)*16 + 2)
            for mm in range(2): hq.append((av, use[kk]*16 + (8*(kk % 2) if c >= NM else 0), ('H', kk, mm)))
        self.vm = {}; pos = 1; self.lead = {}
        while dq or hq:
            cand = [q for q in (hq, dq) if q and q[0][0] <= pos]
            if not cand: pos += 1; continue
            q = min(cand, key=lambda q: q[0][1])
            av, dl, it = q.pop(0)
            assert dl - pos >= 1, (it, pos, dl)
            self.vm[pos] = it; self.lead[it] = dl - pos
            pos += VR0 if pos < (FK+1)*16 - VR0 else VR
        first = {}
        for p_, it in sorted(self.vm.items()):
            if it[0] == 'H': first.setdefault(it[1]//7, p_)
        th = {t: max(c for c in self.chk if (c+1)*16 <= p_) for t, p_ in first.items()}
        if opt.get('g1'): th = {t: FK for t in th}
        self.gate = [th[j+1]-1 for j in range(7)] + [255]
        self.done = [100+n for n in range(4)]
        self.LAC = [STG[NM-2], STG[NM-1]]

def publish(val):
    return [f"v_mov_b32 v{VFV}, {val}", f"s_mov_b64 exec, {s(FX2,2)}", ('ds', f"ds_write_b32 v{VFA}, v{VFV}", []), "s_mov_b64 exec, -1"]

def compute(e, m, opt):
    pl = Plan(opt); steps = pl.steps; NS = pl.NS; SP = pl.SP; NM = pl.NM
    def wread(c, k, n, half, slot):
        off = STG[c] + k*8192 + half*4096; b = BWB + n
        if off >= LX: off -= LX; b += 8
        r = FB + 4*slot + 2*half
        return ('ds', f"ds_read_b64_tr_b16 {v(r,2)}, v{b} offset:{off}", [r, r+1])
    def hlds(kk, mm):
        r = hreg(kk//2, kk % 2, mm)
        return ('ds', f"ds_read_b128 {v(r,4)}, v{VHL} offset:{kk*2048 + mm*1024}", range(r, r+4))
    fill = [[[] for _ in range(16)] for _ in range(NS+1)]
    def at(p_, l): fill[p_//16][p_ % 16] += l
    lst = [hlds(kk, mm) for kk in range(1, 7) for mm in range(2)]
    for i, x in enumerate(lst): at(2*i, [x])
    hb = opt.get('hbits', '')
    for p_, it in sorted(pl.vm.items()):
        if it[0] == 'H':
            _, kk, mm = it
            r = hreg(kk//2, kk % 2, mm)
            if opt.get('noh'): continue
            at(p_, [('vm', f"buffer_load_dwordx4 {v(r,4)}, v{VL16}, {s(SWS,4)}, s{HOFF} offen offset:{mm*1024}{hb}", it)])
            if mm == 1:
                l = [f"s_add_u32 s{HOFF}, s{HOFF}, 2048"]
                if kk % 7 == 6: l += [f"s_cmp_ge_u32 s{HOFF}, s{HEND}", f"s_cselect_b32 s{T0}, {56*2048}, 0", f"s_sub_u32 s{HOFF}, s{HOFF}, s{T0}"]
                at(p_+1, l)
        else:
            _, c, j = it
            if opt.get('now'): continue
            if j == 0: at(p_-1, [f"s_add_u32 m0, s{MW2}, {STG[c]}"])
            at(p_, [('vm', f"buffer_load_dwordx4 v{VW2D+j}, {s(SW2,4)}, s{W2OFF} offen offset:{j*1024} lds", ('W', c))])
            if j == 3: at(p_+1, W2_ADV)
    for i, cs in pl.pub.items():
        at(i*16 + 14, [('nvm',) + tuple(('W', c) for c in cs)] + publish(i+1))
    RG = opt.get('rg', 9)
    frd = ('ds', f"ds_read_b32 v{VFR}, v{VFA}", [VFR])
    for i in pl.chk:
        at(i*16 + RG, [frd]); at(i*16 + 14, [('nds', [VFR]), f"v_cmp_gt_u32 vcc, {i}, v{VFR}"])
    at(opt.get('hf', 30), [lambda: (hflag(e, m, "LC"), bstamp(e, opt, 1, 4))])
    PA = ACC + 32
    pos = (SP-1)*16 + 13
    for i in range(8):
        q = PA + 4*i
        for half in range(2):
            at(pos, [f"v_perm_b32 v{q+r}, v{q+r}, v{VTOK}, s{SEL+r}" for r in (2*half, 2*half+1)])
            if half == 1:
                if i == 4: at(pos, [f"s_add_u32 s{SEXS}, s{SEXS}, 4096"])
                at(pos, [('vm', f"buffer_store_dwordx4 {v(q,4)}, v{VL16}, {s(SWS,4)}, s{SEXS} offen offset:{(i%4)*1024}{opt.get('xst', ' sc0 sc1')}", 'ex')])
            pos += 1
    at(SP*16 + 14, [f"s_cmp_lt_u32 s{WAVE}, 2", f"s_cselect_b32 s{T0}, 0, {pl.LAC[1]-pl.LAC[0]}", f"s_lshl_b32 s{T1}, s{WR}, 13", f"s_add_u32 s{T0}, s{T0}, s{T1}", f"s_add_u32 s{T0}, s{T0}, {pl.LAC[0]}",
                    f"v_add_u32 v{VHL}, s{T0}, v{VL16}"])
    for n in range(4):
        p_ = SP*16 + 4*NT*(n+1) + 2
        l = [('ds', f"ds_write_b128 v{VHL}, {v(ACC+8*n+4*mm,4)} offset:{n*2048+mm*1024}", []) for mm in range(2)]
        if n < 3:
            at(p_, l[:1]); at(p_+1, l[1:]); at(p_+2, publish(pl.done[n]))
        else: at(NS*16, ["s_nop 7"] + l + publish(pl.done[n]))

    if 'cprio' in opt: e(f"s_setprio {opt['cprio']}")
    m.ds0()
    e("s_barrier")
    bstamp(e, opt, 1, 3)
    m.all([hlds(0, 0), hlds(0, 1)])
    for sl, (c, k, n) in enumerate(steps[0]):
        for half in range(2): m.put(wread(c, k, n, half, sl))
    def emit(l):
        for x in l:
            if callable(x): x()
            else: m.put(x)
    slow = []
    for i, st in enumerate(steps):
        nx = steps[i+1] if i+1 < NS else None
        if i == 8: bstamp(e, opt, 1, 6)
        if i == 20: bstamp(e, opt, 2, 3)
        if i == 32: bstamp(e, opt, 2, 4)
        if i == 44: bstamp(e, opt, 2, 5)
        if i == SP: bstamp(e, opt, 2, 6)
        if 'bs' in opt and i in opt['bs']: stamp(e, opt, 3 + opt['bs'].index(i))
        for sl, (c, k, n) in enumerate(st):
            for mi in range(2):
                mm = mi if (sl % 2 == 0 or i >= SP) else 1 - mi
                h = hreg(c, k, mm)
                need = list(range(h, h+4))
                if mi == 0: need += list(range(FB+4*sl, FB+4*sl+4))
                m.nds(need); m.nvm(('H', 2*c+k, mm))
                acc = v(ACC+8*n+4*mm, 4)
                if not opt.get('nobm'): e(f"v_mfma_f32_16x16x32_bf16 {acc}, {v(FB+4*sl,4)}, {v(h,4)}, {'0' if i == 0 else acc}")
                g = 2*sl + mi
                if nx:
                    if mi == 1: m.put(wread(*nx[sl], 0, sl))
                    if mi == 0 and sl > 0: m.put(wread(*nx[sl-1], 1, sl-1))
                    if g == 15: m.put(wread(*nx[7], 1, 7))
                emit(fill[i][g])
        if i in pl.chk:
            e(f"s_cbranch_vccnz LC_s{i}"); e(f"LC_b{i}:"); slow.append(i)
            if i == pl.FK: bstamp(e, opt, 1, 5)
    emit(fill[NS][0])
    write_stamps(e, opt)
    e("s_endpgm")
    for i in slow:
        e(f"LC_s{i}:")
        e(f"s_mov_b32 s{BND}, 100000")
        e(f"LC_l{i}:")
        e(frd[1]); e("s_waitcnt lgkmcnt(0)")
        e(f"v_cmp_gt_u32 vcc, {i}, v{VFR}"); e(f"s_cbranch_vccz LC_b{i}")
        e(f"s_sub_u32 s{BND}, s{BND}, 1"); e(f"s_cmp_lg_u32 s{BND}, 0"); e(f"s_cbranch_scc1 LC_l{i}")
        e(f"s_branch LC_b{i}")

TR = 40; XR = 104
VO = 120
VA0, VA1, VQ, HFA = 124, 125, 126, 127
Y = 128; AF = 192; GF = 6; VP = 14; RS = 2
SPY = FM
HC = 44
SIM = 40
SCOL = 45
HFX = SPM
WG_ = T+12

def trig(e):
    A = Y
    TQ = T+8; B0 = T+10; B1 = T+11; D2 = T+16; PH = M2
    vt, vhi = T, T+1
    e(f"v_and_b32 v{vt}, 15, v{L}"); e(f"v_lshl_add_u32 v{vt}, v{vt}, 2, s{TB}"); e(f"v_bfe_u32 v{vhi}, v{L}, 4, 1"); e(f"v_lshl_add_u32 v{vt}, v{vhi}, 1, v{vt}")
    e(f"v_lshrrev_b32 v{vhi}, 5, v{L}")
    e(f"v_cmp_eq_u32 {s(SPY,2)}, 0, v{vt}")
    e(f"v_cvt_f32_u32 v{TQ}, v{vt}"); e(f"v_mul_f32 v{TQ}, 0x3a000000, v{TQ}")
    e(f"s_bitcmp1_b32 s{HC}, 0"); e(f"s_cselect_b32 s{T0}, 0x3e800000, 0"); e(f"s_cselect_b32 s{T1}, 0x3f400000, 0")
    e(f"v_mov_b32 v{T+2}, s{T0}")
    e(f"v_cndmask_b32 v{TQ}, v{TQ}, v{T+2}, {s(SPY,2)}")
    e(f"s_lshr_b32 s{T2}, s{HC}, 1")
    e(f"v_lshl_add_u32 v{T+2}, v{vhi}, 5, s{T2}"); e(f"v_cvt_f32_u32 v{T+2}, v{T+2}")
    e(f"v_fma_f32 v{B0}, v{TQ}, v{T+2}, s{T1}")
    for ch in range(2):
        for kk in range(2):
            for jj in range(8):
                e(f"v_fmamk_f32 v{A+16*ch+8*kk+jj}, v{TQ}, {fl(64*kk+4*jj+2*ch)}, v{B0}")
    e(f"v_mul_f32 v{D2}, 0x42800000, v{TQ}")
    e(f"v_mov_b32 v{WG_}, s{T1}"); e(f"v_fmac_f32 v{WG_}, 0x44000000, v{TQ}")
    for r in [A+i for i in range(32)] + [D2, WG_]: e(f"v_fract_f32 v{r}, v{r}")
    for r in [A+i for i in range(32)] + [D2, WG_]: e(f"v_cos_f32 v{r}, v{r}")
    e("s_nop 0")
    e(f"v_add_f32 v{D2}, v{D2}, v{D2}"); e(f"v_mov_b32 v{D2+1}, v{D2}")
    for kk in range(8):
        o_ = 8*(kk % 2)
        if kk >= 2:
            for base in (A, A+16):
                for jj in range(0, 8, 2):
                    e(f"v_pk_fma_f32 {v(base+o_+jj,2)}, {v(base+8-o_+jj,2)}, {v(D2,2)}, {v(base+o_+jj,2)} neg_lo:[0,0,1] neg_hi:[0,0,1]")
        for ch in range(2):
            for d in range(4):
                e(f"v_cvt_pk_bf16_f32 v{TR+8*kk+4*ch+d}, v{A+16*ch+o_+2*d}, v{A+16*ch+o_+2*d+1}")
        if kk == 0:
            e(f"v_cvt_pk_bf16_f32 v{T+2}, v{WG_}, v{A+1}")
            e(f"s_cmp_eq_u32 s{HC}, 1"); e(f"s_cselect_b32 s{M2}, -1, 0"); e(f"s_mov_b32 s{M2+1}, 0")
            e(f"v_cndmask_b32 v{TR}, v{TR}, v{T+2}, {s(M2,2)}")
    e(f"v_cvt_pk_bf16_f32 v{WG_}, v{WG_}, v{WG_}")
    for r in (1, 2, 3): e(f"v_mov_b32 v{WG_+r}, 0")

def addrs0(e, opt):
    vt, vhi, A, B = T+6, T+7, T+8, T+9
    e(f"s_and_b32 s{HC}, s{WAVE}, 3")
    e(f"v_and_b32 v{vt}, 15, v{L}"); e(f"v_lshl_add_u32 v{vt}, v{vt}, 2, s{TB}"); e(f"v_bfe_u32 v{vhi}, v{L}, 4, 1"); e(f"v_lshl_add_u32 v{vt}, v{vhi}, 1, v{vt}")
    e(f"v_lshrrev_b32 v{vhi}, 5, v{L}")
    e(f"v_cmp_eq_u32 {s(SPY,2)}, 0, v{vt}")
    e(f"s_lshl_b32 s{T0}, s{CBP}, 1"); e(f"s_add_u32 s{T0}, s{T0}, s{KQ}")
    e(f"s_lshl_b32 s{T1}, s{T0}, 6"); e(f"s_sub_u32 s{T2}, {2048-64}, s{T1}")
    e(f"s_bitcmp1_b32 s{HC}, 1"); e(f"s_cselect_b32 s{SCOL}, s{T2}, s{T1}"); e(f"s_cselect_b32 s{T3}, 3, 0")
    e(f"s_and_b32 s{T1}, s{HC}, 1"); e(f"s_lshl_b32 s{T2}, s{T1}, 5"); e(f"s_add_u32 s{SCOL}, s{SCOL}, s{T2}")
    e(f"v_lshlrev_b32 v{B}, 4, v{vhi}")
    for r in range(4):
        e(f"s_xor_b32 s{T0}, s{T3}, {r}"); e(f"s_lshl_b32 s{SIM+r}, s{T0}, 13")
        e(f"s_add_u32 s{T1}, s{T0}, 1"); e(f"s_lshr_b32 s{T1}, s{T1}, 1"); e(f"s_lshl_b32 s{T1}, s{T1}, 10")
        e(f"s_bitcmp1_b32 s{T0}, 0"); e(f"s_cselect_b32 s{T2}, -1, 1")
        e(f"v_mul_lo_u32 v{VO+r}, v{vt}, s{T2}"); e(f"v_add_u32 v{VO+r}, s{T1}, v{VO+r}")
        e(f"s_lshr_b32 s{T0}, s{T0}, 1"); e(f"s_lshl_b32 s{T0}, s{T0}, 9"); e(f"s_sub_u32 s{T1}, s{T1}, s{T0}")
        e(f"v_mov_b32 v{A}, s{T1}"); e(f"v_cndmask_b32 v{VO+r}, v{VO+r}, v{A}, {s(SPY,2)}")
        e(f"v_lshl_add_u32 v{VO+r}, v{VO+r}, 11, v{B}")

def addrs(e, opt):
    vhi = T+1
    A, B = T+2, T+3
    e(f"s_lshl_b32 s{T0}, s{CBP}, 1"); e(f"s_add_u32 s{T0}, s{T0}, s{KQ}")
    e(f"s_bitcmp1_b32 s{HC}, 1"); e(f"s_cselect_b64 {s(M2,2)}, -1, 0")
    e(f"s_and_b32 s{T1}, s{HC}, 1")
    e(f"s_mul_i32 s{SAE}, s{T0}, {AE_ET}"); e(f"s_mul_i32 s{T0}, s{T1}, {AE_MAT}"); e(f"s_add_u32 s{SAE}, s{SAE}, s{T0}")
    e(f"s_and_b32 s{T0}, s{RB}, 1"); e(f"s_mul_i32 s{T0}, s{T0}, {AE_PAR}"); e(f"s_add_u32 s{SAE}, s{SAE}, s{T0}")
    e(f"s_lshr_b32 s{T0}, s{HC}, 1"); e(f"s_lshl_b32 s{SH0}, s{T0}, 10"); e(f"s_add_u32 s{SH0}, s{SH0}, {WS_FD}")
    e(f"s_mul_i32 s{T0}, s{T0}, {AE_C}"); e(f"s_add_u32 s{SAE}, s{SAE}, s{T0}"); e(f"s_add_u32 s{SAE}, s{SAE}, {WS_AE}")
    e(f"s_lshl_b32 s{T1}, s{T1}, 4")
    e(f"v_and_b32 v{A}, 19, v{L}"); e(f"v_bfe_u32 v{B}, v{L}, 2, 1"); e(f"v_lshl_or_b32 v{A}, v{B}, 3, v{A}")
    e(f"v_bfe_u32 v{B}, v{L}, 3, 1"); e(f"v_lshl_or_b32 v{A}, v{B}, 2, v{A}"); e(f"v_xor_b32 v{A}, s{T1}, v{A}")
    e(f"v_cmp_eq_u32 vcc, 0, v{A}"); e(f"v_lshlrev_b32 v{A}, 4, v{A}"); e(f"v_lshlrev_b32 v{B}, 9, v{vhi}")
    e(f"v_add_u32 v{VA0}, v{B}, v{A}")
    e(f"v_sub_u32 v{A}, v{B}, v{A}"); e(f"v_add_u32 v{A}, 512, v{A}"); e(f"v_add_u32 v{B}, {AE_ET}, v{B}"); e(f"v_cndmask_b32 v{A}, v{A}, v{B}, vcc")
    e(f"v_cndmask_b32 v{VA1}, v{A}, v{VA0}, {s(M2,2)}"); e(f"v_cndmask_b32 v{VA0}, v{VA0}, v{A}, {s(M2,2)}")
    e(f"v_bfe_u32 v{A}, v{L}, 4, 1"); e(f"v_and_b32 v{B}, 15, v{L}"); e(f"v_lshlrev_b32 v{VQ}, 4, v{B}"); e(f"v_lshl_add_u32 v{VQ}, v{A}, 10, v{VQ}")
    e(f"v_lshl_add_u32 v{VQ}, v{vhi}, 9, v{VQ}")
    e(f"s_xor_b32 s{T0}, s2, {[2, 1, 8][opt.get('map', 1)]}"); e(f"s_lshl_b32 s{SEXR}, s{T0}, 15"); e(f"s_lshl_b32 s{T0}, s{HC}, 11")
    e(f"s_add_u32 s{SEXR}, s{SEXR}, s{T0}"); e(f"s_add_u32 s{SEXR}, s{SEXR}, {WS_EX}")
    e(f"s_lshl_b32 s{HFX}, 0x11111111, s{HC}"); e(f"s_mov_b32 s{HFX+1}, s{HFX}")
    e(f"s_mov_b32 s{CK0}, 0x0c0c0400"); e(f"s_mov_b32 s{CK1}, 0x04000c0c")

def xrld(e, m):
    for r in range(4):
        m.put(('vm', f"buffer_load_dwordx4 {v(XR+4*r,4)}, v{VO+r}, {s(SX,4)}, s{SCOL} offen", 'xr'))

def helper_pre(e, m, opt, sp):
    e(f"v_lshlrev_b32 v{HFA}, 2, v{L}"); e(f"v_add_u32 v{HFA}, {LFL}, v{HFA}")
    if sp: return
    pl = Plan(opt)
    e(f"v_cmp_lt_u32 vcc, 31, v{L}"); e(f"v_mov_b32 v{VQ}, {pl.gate[0]}"); e(f"v_cndmask_b32 v{VQ}, v{VZ}, v{VQ}, vcc")
    m.put(('ds', f"ds_write_b32 v{HFA}, v{VQ}", [])); m.put(('ds', f"ds_write_b32 v{HFA}, v{VZ} offset:256", []))

def helper(e, m, opt, sp):
    P = "HS" if sp else "HN"
    pl = Plan(opt)
    cnt = [0]
    def wait_lds(th, off=0, lo=True, slp=1):
        n = cnt[0]; cnt[0] += 1
        e(f"s_mov_b32 s{BND}, 100000")
        e(f"{P}_w{n}:")
        e(f"ds_read_b32 v{T+5}, v{HFA} offset:{off}"); m.ds0()
        e(f"v_cmp_gt_u32 vcc, {th}, v{T+5}"); e(f"s_cmp_eq_u32 vcc_lo, 0"); e(f"s_cbranch_scc1 {P}_x{n}")
        if slp: e(f"s_sleep {slp}")
        e(f"s_sub_u32 s{BND}, s{BND}, 1"); e(f"s_cmp_lg_u32 s{BND}, 0"); e(f"s_cbranch_scc1 {P}_w{n}")
        e(f"{P}_x{n}:")
    e(f"s_setprio {opt.get('hprio', 0)}")
    helper_pre(e, m, opt, sp)
    XL = opt.get('xl', 2)
    if XL == 0: addrs0(e, opt); xrld(e, m)
    m.ds0(); m.nvm(('W', 2))
    e("s_barrier")
    e(f"s_and_b32 s{HC}, s{WAVE}, 3")
    if sp: dft_epilogue(e, m, opt, True)
    else:
        hflag(e, m, P)
        e(f"s_cmp_lg_u32 s{WAVE}, 4"); e("s_cbranch_scc1 HN_gx")
        e(f"v_lshrrev_b32 v{T}, 3, v{L}"); e(f"s_add_u32 s{T0}, s{CBP}, 1"); e(f"v_add_u32 v{T}, s{T0}, v{T}"); e(f"v_and_b32 v{T}, 7, v{T}")
        e(f"v_and_b32 v{T+1}, 7, v{L}"); e(f"v_lshlrev_b32 v{T+1}, 2, v{T+1}"); e(f"v_lshl_add_u32 v{T}, v{T}, 7, v{T+1}")
        e(f"s_lshl_b32 s{T0}, s{RB}, 1"); e(f"s_add_u32 s{T0}, s{T0}, s{KQ}"); e(f"s_lshl_b32 s{SH0}, s{T0}, 10"); e(f"s_add_u32 s{SH0}, s{SH0}, {WS_FL}")
        tab = sum(g << (8*j) for j, g in enumerate(pl.gate))
        e(f"s_mov_b32 s{M2}, {tab & 0xffffffff}"); e(f"s_mov_b32 s{M2+1}, {tab >> 32}")
        e(f"s_mov_b32 s{BND}, 4000")
        NP = opt.get('np', 3)
        m.vq = []
        e(f"s_cmp_lg_u32 s{LOC}, 0"); e("s_cbranch_scc1 HN_g1")
        for nm, bits in (("HN_g0", " sc0 sc1"), ("HN_g1", " sc1")):
            e(f"{nm}:")
            pol = lambda k: e(f"buffer_load_dword v{T+3+k}, v{T}, {s(SWS,4)}, s{SH0} offen{bits}")
            for k in range(NP-1):
                pol(k)
                if opt.get('gsl', 2): e(f"s_sleep {opt.get('gsl', 2)}")
            e(f"{nm}l:")
            for k in range(NP):
                pol((k+NP-1) % NP)
                e(f"s_waitcnt vmcnt({NP-1})")
                e(f"v_cmp_ne_u32 vcc, v{VTOK}, v{T+3+k}")
                e(f"s_sub_u32 s{BND}, s{BND}, 1"); e(f"s_cmp_eq_u32 s{BND}, 0"); e("s_cselect_b64 vcc, 0, vcc")
                e(f"s_ff1_i32_b64 s{T0}, vcc"); e(f"s_min_u32 s{T0}, s{T0}, 56"); e(f"s_and_b32 s{T0}, s{T0}, 56")
                e(f"s_lshr_b64 {s(T2,2)}, {s(M2,2)}, s{T0}"); e(f"s_and_b32 s{T2}, s{T2}, 255")
                e(f"v_mov_b32 v{T+2}, s{T2}"); e("s_mov_b32 exec_lo, 0")
                e(f"ds_write_b32 v{HFA}, v{T+2}"); e("s_mov_b32 exec_lo, -1")
                e(f"s_cmp_ge_u32 s{T0}, 56"); e("s_cbranch_scc1 HN_gy")
            e(f"s_branch {nm}l")
        e("HN_gy:")
        e("s_waitcnt vmcnt(0)")
        e("HN_gx:")
    bstamp(e, opt, 1, 4)
    if opt.get('noy'):
        write_stamps(e, opt); e("s_endpgm"); return
    trig(e)
    if sp:
        m.nvm('AE')
        e("s_mov_b64 exec, 1")
        m.put(('vm', f"buffer_store_dword v{VTOK}, v{VZ}, {s(SWS,4)}, s{SFD} offen sc0 sc1", 'fl'))
        e("s_mov_b64 exec, -1")
    addrs(e, opt)
    if XL: addrs0(e, opt)
    if XL == 1: xrld(e, m)
    bstamp(e, opt, 1, 5)
    wait_lds(max(2, opt.get('ys', 20)), slp=4)
    if XL == 2: xrld(e, m)
    if not opt.get('nofd'):
        e(f"s_mov_b32 s{BND}, 4000")
        e(f"{P}_f0:")
        e(f"buffer_load_dwordx4 {v(VP,4)}, v{VL16}, {s(SWS,4)}, s{SH0} offen sc0 sc1"); m.vm0()
        e(f"v_xor_b32 v{VP}, v{VTOK}, v{VP}"); e(f"v_xor_b32 v{VP+1}, v{VTOK}, v{VP+1}"); e(f"v_xor_b32 v{VP+2}, v{VTOK}, v{VP+2}"); e(f"v_xor_b32 v{VP+3}, v{VTOK}, v{VP+3}")
        e(f"v_or3_b32 v{VP}, v{VP}, v{VP+1}, v{VP+2}"); e(f"v_or_b32 v{VP}, v{VP}, v{VP+3}")
        e(f"v_cmp_ne_u32 vcc, 0, v{VP}"); e(f"s_cbranch_vccz {P}_f1")
        e(f"s_sub_u32 s{BND}, s{BND}, 1"); e(f"s_cmp_lg_u32 s{BND}, 0"); e(f"s_cbranch_scc1 {P}_f0")
        e(f"{P}_f1:")
    bstamp(e, opt, 2, 3); bstamp(e, opt, 1, 6)
    YSL = opt.get('ysl', 0)
    def aeld(i):
        ch, kk = i % 2, i//2
        b = AF + 8*(i % 8)
        e(f"s_add_u32 s{T0}, s{SAE}, {ch*2*AE_C + (kk//4)*4096}")
        for x in range(2):
            if x and opt.get('norev'): continue
            if x and opt.get('erev'): e("s_mov_b32 exec_lo, 1"); e("s_mov_b32 exec_hi, 1")
            m.put(('vm', f"buffer_load_dwordx4 {v(b+4*x,4)}, v{VA0+x}, {s(SWS,4)}, s{T0} offen offset:{(kk%4)*1024}", ('Y', i)))
            if x and opt.get('erev'): e("s_mov_b64 exec, -1")
        if YSL: e(f"s_sleep {YSL}")
    for i in range(8): aeld(i)
    for i in range(16):
        ch, kk = i % 2, i//2
        m.nvm(('Y', i))
        for x in range(2):
            acc = v(Y+32*ch+16*x, 16)
            e(f"v_mfma_f32_32x32x16_bf16 {acc}, {v(AF+8*(i%8)+4*x,4)}, {v(TR+8*kk+4*ch,4)}, {'0' if kk == 0 else acc}")
        if 1 <= i <= 8: aeld(i+7)
        if i == 9:
            e(f"s_add_u32 s{T0}, s{SAE}, 8192")
            for x in range(2): m.put(('vm', f"buffer_load_dwordx4 {v(GF+4*x,4)}, v{VA0+x}, {s(SWS,4)}, s{T0} offen", 'G'))
    m.nvm('G')
    e(f"s_and_b32 s{T0}, s{RB}, 1"); e(f"s_or_b32 s{T0}, s{T0}, s{HC}"); e(f"s_cmp_lg_u32 s{T0}, 0"); e(f"s_cbranch_scc1 {P}_ng")
    for x in range(2):
        acc = v(Y+16*x, 16)
        e(f"v_mfma_f32_32x32x16_bf16 {acc}, {v(GF+4*x,4)}, {v(WG_,4)}, {acc}")
    e(f"{P}_ng:")
    for j in (1, 2, 3):
        e(f"s_xor_b32 s{T0}, s{HC}, {j}"); e(f"s_mul_i32 s{T0}, s{T0}, 6144"); e(f"s_add_u32 s{T0}, s{T0}, {LPB + (j-1)*2048}"); e(f"v_add_u32 v{T+5+j}, s{T0}, v{VL16}")
    e(f"s_mul_i32 s{T0}, s{HC}, 6144"); e(f"s_add_u32 s{T0}, s{T0}, {LPB}"); e(f"v_add_u32 v{T+9}, s{T0}, v{VL16}")
    XF = AF
    for i in range(16):
        e(f"v_lshlrev_b32 v{XF+2*i}, 16, v{XR+i}"); e(f"v_and_b32 v{XF+2*i+1}, 0xffff0000, v{XR+i}")
    if not sp:
        e(f"s_or_b32 s{T0}, s{TB}, s{HC}"); e(f"s_cmp_lg_u32 s{T0}, 0"); e(f"s_cbranch_scc1 {P}_nd")
        e(f"v_lshrrev_b32 v{T+2}, 1, v{L}"); e(f"v_add_u32 v{T+2}, {LCD}, v{T+2}")
        e(f"s_mov_b64 exec, {s(SPY,2)}")
        for r in range(32): e(f"v_sub_f32 v{TR+r}, v{Y+r}, v{Y+32+r}")
        for i in range(8): e(f"ds_write_b128 v{T+2}, {v(TR+4*i,4)} offset:{32*i}")
        e("s_mov_b64 exec, -1")
        e(f"{P}_nd:")
    for j in (1, 2, 3, 0):
        for r in range(8*j, 8*j+8, 2): e(f"v_pk_add_f32 {v(Y+r,2)}, {v(Y+r,2)}, {v(Y+32+r,2)}")
        if j:
            for q in range(2): m.put(('ds', f"ds_write_b128 v{T+5+j}, {v(Y+8*j+4*q,4)} offset:{q*1024}", []))
    e(f"v_mov_b32 v{T+2}, 1"); e(f"s_mov_b64 exec, {s(HFX,2)}"); e(f"ds_write_b32 v{HFA}, v{T+2} offset:256"); e("s_mov_b64 exec, -1")
    bstamp(e, opt, 2, 4)
    SG = U0
    e(f"s_lshl_b32 s{T0}, s{HC}, 31"); e(f"s_lshl_b32 s{T1}, s{HC}, 30"); e(f"s_and_b32 s{T1}, s{T1}, 0x80000000")
    e(f"s_mov_b32 s{SG}, 1.0"); e(f"s_xor_b32 s{SG+6}, s{T0}, 1.0"); e(f"s_xor_b32 s{SG+4}, s{T1}, 1.0"); e(f"s_xor_b32 s{SG+2}, s{SG+4}, s{T0}")
    for r in range(4): e(f"s_mov_b32 s{SG+2*r+1}, s{SG+2*r}")
    wait_lds(1, off=256)
    for j in (1, 2, 3):
        for q in range(2):
            r = Y + 8*j + 4*q
            m.put(('ds', f"ds_read_b128 {v(r,4)}, v{T+9} offset:{(j-1)*2048+q*1024}", range(r, r+4)))
    NEG = " neg_lo:[0,1] neg_hi:[0,1]"
    U_ = Y + 32
    for z in range(2):
        m.nds(range(Y+16*z, Y+16*z+16))
        for r in range(0, 8, 2):
            e(f"v_pk_add_f32 {v(U_+16*z+r,2)}, {v(Y+16*z+r,2)}, {v(Y+16*z+8+r,2)}")
            e(f"v_pk_add_f32 {v(U_+16*z+8+r,2)}, {v(Y+16*z+r,2)}, {v(Y+16*z+8+r,2)}{NEG}")
    for rr, (a, ng) in enumerate(((0, ''), (8, NEG), (0, NEG), (8, ''))):
        for r in range(0, 8, 2): e(f"v_pk_add_f32 {v(Y+8*rr+r,2)}, {v(U_+a+r,2)}, {v(U_+16+a+r,2)}{ng}")
    e(f"s_cmp_lg_u32 s{TB}, 0"); e(f"s_cbranch_scc1 {P}_ns")
    e(f"s_lshl_b32 s{T0}, s{HC}, 6"); e(f"s_add_u32 s{T0}, s{T0}, {LCD}"); e(f"v_lshrrev_b32 v{T+2}, 1, v{L}"); e(f"v_add_u32 v{T+2}, s{T0}, v{T+2}")
    e(f"s_mov_b64 exec, {s(SPY,2)}")
    CD = U_; a_, b_, s_ = U_+8, U_+16, U_+24
    e(f"ds_read_b128 {v(CD,4)}, v{T+2}"); e(f"ds_read_b128 {v(CD+4,4)}, v{T+2} offset:32")
    for rr in range(4):
        for r in range(8): e(f"v_mul_f32 v{Y+8*rr+r}, s{SG+2*rr}, v{Y+8*rr+r}")
    for r in range(8):
        e(f"v_add_f32 v{a_+r}, v{Y+r}, v{Y+24+r}"); e(f"v_add_f32 v{b_+r}, v{Y+8+r}, v{Y+16+r}"); e(f"v_sub_f32 v{s_+r}, v{Y+r}, v{Y+24+r}")
    e("s_waitcnt lgkmcnt(0)")
    e(f"s_cmp_ge_u32 s{HC}, 2"); e(f"s_cbranch_scc1 {P}_sr")
    def put4(ra, rb_, rp, rm):
        for r in range(8):
            e(f"v_mul_f32 v{Y+8*ra+r}, 0.5, v{a_+r}"); e(f"v_mul_f32 v{Y+8*rb_+r}, 0.5, v{b_+r}")
            e(f"v_fma_f32 v{Y+8*rp+r}, 0.5, v{s_+r}, v{CD+r}"); e(f"v_fma_f32 v{Y+8*rm+r}, -0.5, v{s_+r}, v{CD+r}")
    put4(0, 1, 2, 3); e(f"s_branch {P}_sj"); e(f"{P}_sr:"); put4(3, 2, 0, 1); e(f"{P}_sj:")
    for rr in range(4):
        for r in range(8): e(f"v_mul_f32 v{Y+8*rr+r}, s{SG+2*rr}, v{Y+8*rr+r}")
    e("s_mov_b64 exec, -1")
    e(f"{P}_ns:")
    for rr in range(4):
        for r in range(0, 8, 2): e(f"v_pk_fma_f32 {v(Y+8*rr+r,2)}, {v(Y+8*rr+r,2)}, {s(SG+2*rr,2)}, {v(XF+8*rr+r,2)}")
    bstamp(e, opt, 2, 5)
    LA = T+6; R2 = TR
    for r in range(4):
        e(f"s_cmp_lt_u32 s{SIM+r}, 16384"); e(f"s_cselect_b32 s{T0}, 0, {pl.LAC[1]-16384-pl.LAC[0]}"); e(f"s_add_u32 s{T0}, s{T0}, s{SIM+r}"); e(f"s_add_u32 s{T0}, s{T0}, {pl.LAC[0]}")
        e(f"s_lshl_b32 s{T1}, s{HC}, 11"); e(f"s_add_u32 s{T0}, s{T0}, s{T1}"); e(f"v_add_u32 v{LA+r}, s{T0}, v{VQ}")
        e(f"v_mov_b32 v{R2+2*r}, v{RS+r}"); e(f"v_mov_b32 v{R2+2*r+1}, v{RS+r}")
        e(f"s_add_u32 s{SIM+r}, s{SIM+r}, s{SEXR}")
    wait_lds(opt.get('ps', max(pl.chk)), slp=2)
    if opt.get('psl'): e(f"s_sleep {opt['psl']}")
    PB = AF; U2 = Y + 32; K = TR + 8
    pld = [f"buffer_load_dwordx4 {v(PB+4*i,4)}, v{VQ}, {s(SWS,4)}, s{SIM+i//2} offen offset:{(i%2)*256}{opt.get('xld', ' sc0 sc1')}" for i in range(8)]
    e(f"s_mov_b32 s{BND}, 4000")
    e(f"{P}_p0:")
    for x in pld: e(x)
    for i in range(8):
        b = PB + 4*i
        if i % 2 == 0: e(f"s_waitcnt vmcnt({6-i})")
        e(f"v_perm_b32 v{K+2*i}, v{b+1}, v{b}, s{CK0}"); e(f"v_perm_b32 v{K+2*i+1}, v{b+3}, v{b+2}, s{CK1}")
        e(f"v_bitop3_b32 v{K+2*i}, v{K+2*i}, v{K+2*i+1}, v{VTOK} bitop3:0x56")
        for r in (0, 2):
            e(f"v_pk_fma_f32 {v(U2+4*i+r,2)}, {v(b+r,2)}, {v(R2+2*(i//2),2)}, {v(Y+4*i+r,2)}")
    m.vq = []
    e(f"v_or3_b32 v{K}, v{K}, v{K+2}, v{K+4}"); e(f"v_or3_b32 v{K+6}, v{K+6}, v{K+8}, v{K+10}"); e(f"v_or3_b32 v{K}, v{K}, v{K+12}, v{K+14}")
    e(f"v_or_b32 v{K}, v{K}, v{K+6}")
    e(f"v_cmp_ne_u32 vcc, 0, v{K}"); e(f"s_cbranch_vccz {P}_p1")
    e(f"s_sub_u32 s{BND}, s{BND}, 1"); e(f"s_cmp_lg_u32 s{BND}, 0"); e(f"s_cbranch_scc1 {P}_p0")
    e(f"{P}_p1:")
    bstamp(e, opt, 2, 6)
    if opt.get('bstamp') == 3: e(f"s_sub_u32 s92, 4000, s{BND}")
    e(f"s_add_u32 s{T0}, s{HC}, {pl.done[0]}")
    wait_lds(f"s{T0}", slp=0)
    for i in range(8):
        m.put(('ds', f"ds_read_b128 {v(PB+4*i,4)}, v{LA+i//2} offset:{(i%2)*256}", range(PB+4*i, PB+4*i+4)))
    O = Y
    for r in range(4):
        m.nds(range(PB+8*r, PB+8*r+8))
        for z in range(0, 8, 2): e(f"v_pk_fma_f32 {v(U2+8*r+z,2)}, {v(PB+8*r+z,2)}, {v(R2+2*r,2)}, {v(U2+8*r+z,2)}")
        for d in range(4): e(f"v_cvt_pk_bf16_f32 v{O+4*r+d}, v{U2+8*r+2*d}, v{U2+8*r+2*d+1}")
        e(f"buffer_store_dwordx4 {v(O+4*r,4)}, v{VO+r}, {s(SO,4)}, s{SCOL} offen")
    if not sp:
        e(f"s_cmp_lg_u32 s{WAVE}, 4"); e("s_cbranch_scc1 HN_tb")
        tokbump(e, "HN")
    write_stamps(e, opt)
    e("s_endpgm")
```

```python
import sys, struct
from gen import Asm, v, s, kernel_desc, AE_C, AE_ET, AE_PAR, AE_MAT

WS_H  = 0x0000000
WS_AE = 0x1000000
WS_EX = 0x1800000
WS_NM = 0x2000000
WS_RS = 0x2008000
WS_MF = 0x200A000
WS_CS = 0x2010000
WS_FL = 0x2100000
WS_FD = 0x2108000
WS_TOK = 0x2108800
WS_STAMP = 0x3000000

WST = 32768; LX = 98304; XST = 16384; LDF = 28672
RING = [114688, 147456, 131072, 0, 16384, 98304]
LOH = 32768
PARTNER = 2

SX, SW, SWS, SW2, SO = 4, 8, 12, 16, 20
TOK = 24; KEY2 = 25; SWF = 26; LOC = 27
WAVE, RB, KQ, CBP, WR, WC, C16, TB = range(28, 36)
T0, T1, T2, T3 = 36, 37, 38, 39
XOFF, WOFF, MX, MW, CNT, KEY, WADV, WEND = range(40, 48)
SFL, SFD, W2OFF, W2END, MW2, HOFF0, HOFF1, HEND = range(48, 56)
SPM = 56
M2 = 58
FM = 60
SH0, SH1 = 62, 63
SC1, SC2 = 64, 65
SAE, SEXS, SEXR, BND = 66, 67, 68, 69
U0 = 70

L = 1; VXD = 2; VWD = 4; VWB = 8; VXB = 16; VL16 = 18; VZ = 19; T = 20; VTOK = 0
FW = 40; FX = 56; EO = 88; VW2D = 120; ACC = 128

fl = lambda x: hex(struct.unpack('<I', struct.pack('<f', float(x)))[0])

class Em:
    def __init__(self, e, opt): self.e = e; self.dq = []; self.vq = []; self.opt = opt
    def put(self, it):
        if isinstance(it, str): self.e(it); return
        k = it[0]
        if k == 'ds':
            if self.opt.get('nords') and 'read' in it[1]: return
            self.e(it[1]); self.dq.append(set(it[2]))
        elif k == 'vm':
            if self.opt.get('nodma') and it[1].endswith('lds'): return
            if self.opt.get('noae') and it[2] == 'AE': return
            if self.opt.get('nohs') and it[2] == 'H': return
            self.e(it[1]); self.vq.append(it[2])
        elif k == 'nds': self.nds(it[1])
        elif k == 'nvm': self.nvm(*it[1:])
        else: raise Exception(it)
    def all(self, l):
        for x in l: self.put(x)
    def nds(self, regs):
        regs = set(regs); last = -1
        for i, r in enumerate(self.dq):
            if r & regs: last = i
        if last >= 0:
            n = min(15, len(self.dq) - 1 - last)
            self.e(f"s_waitcnt lgkmcnt({n})")
            self.dq = self.dq[len(self.dq)-n:] if n else []
    def nvm(self, *tags):
        last = -1
        for i, t in enumerate(self.vq):
            if t in tags: last = i
        if last >= 0:
            n = min(63, len(self.vq) - 1 - last)
            self.e(f"s_waitcnt vmcnt({n})")
            self.vq = self.vq[len(self.vq)-n:] if n else []
    def vm0(self): self.e("s_waitcnt vmcnt(0)"); self.vq = []
    def ds0(self): self.e("s_waitcnt lgkmcnt(0)"); self.dq = []

def stamp(e, opt, i):
    if opt.get('stamp'): e(f"{'s_memtime' if opt.get('cyc') else 's_memrealtime'} s[{80+2*i}:{81+2*i}]")

def vrow(e, vimg, vt, out, a, b):
    e(f"v_add_u32 v{a}, 1, v{vimg}"); e(f"v_lshrrev_b32 v{a}, 1, v{a}"); e(f"v_lshlrev_b32 v{a}, 10, v{a}")
    e(f"v_and_b32 v{b}, 1, v{vimg}"); e(f"v_cmp_eq_u32 vcc, 1, v{b}")
    e(f"v_sub_u32 v{out}, v{a}, v{vt}"); e(f"v_add_u32 v{b}, v{a}, v{vt}")
    e(f"v_cndmask_b32 v{out}, v{b}, v{out}, vcc")
    e(f"v_cmp_eq_u32 vcc, 0, v{vt}")
    e(f"v_lshrrev_b32 v{b}, 1, v{vimg}"); e(f"v_lshlrev_b32 v{b}, 9, v{b}"); e(f"v_sub_u32 v{b}, v{a}, v{b}")
    e(f"v_cndmask_b32 v{out}, v{out}, v{b}, vcc")

def bf16r(e, d):
    e(f"v_cvt_pk_bf16_f32 v{d}, v{d}, v{d}"); e(f"v_lshlrev_b32 v{d}, 16, v{d}")

def a_dmas(st):
    out = []
    for j in range(2):
        out.append((f"s_add_u32 m0, s{MX}, {st*XST}" if j == 0 else None,
                    f"buffer_load_dwordx4 v{VXD+j}, {s(SX,4)}, s{XOFF} offen offset:{j*1024} lds"))
    for j in range(4):
        out.append((f"s_add_u32 m0, s{MW}, {st*WST}" if j == 0 else None,
                    f"buffer_load_dwordx4 v{VWD+j}, {s(SW,4)}, s{WOFF} offen offset:{j*1024} lds"))
    return out
A_ADV = [f"s_add_u32 s{XOFF}, s{XOFF}, 128", f"s_and_b32 s{XOFF}, s{XOFF}, 0x7ff",
         f"s_add_u32 s{WOFF}, s{WOFF}, s{WADV}", f"s_cmp_eq_u32 s{WOFF}, s{WEND}", f"s_cselect_b32 s{WOFF}, 0, s{WOFF}"]

def w2_dmas(i):
    out = []
    for j in range(4):
        out.append((f"s_add_u32 m0, s{MW2}, {RING[i % 6]}" if j == 0 else None,
                    f"buffer_load_dwordx4 v{VW2D+j}, {s(SW2,4)}, s{W2OFF} offen offset:{j*1024} lds"))
    return out
W2_ADV = [f"s_add_u32 s{W2OFF}, s{W2OFF}, {64*2048}", f"s_cmp_ge_u32 s{W2OFF}, s{W2END}",
          f"s_cselect_b32 s{T3}, {1792*2048}, 0", f"s_sub_u32 s{W2OFF}, s{W2OFF}, s{T3}"]

def prologue(e, m, opt):
    e("s_cmp_ge_u32 s2, 256"); e("s_cbranch_scc1 L_end")
    stamp(e, opt, 0)
    e(f"s_load_dwordx2 {s(SX,2)}, s[0:1], 0"); e(f"s_load_dwordx2 {s(SWS,2)}, s[0:1], 80")
    e(f"v_lshrrev_b32 v{T}, 6, v0"); e(f"v_and_b32 v{L}, 63, v0"); e(f"v_readfirstlane_b32 s{WAVE}, v{T}")
    MAP = opt.get('map', 1)
    e(f"s_bfe_u32 s{KQ}, s2, {['0x10001', '0x10000', '0x10003'][MAP]}")
    e(f"s_lshl_b32 s{T0}, s{KQ}, 3"); e(f"s_add_u32 s{T1}, s{T0}, 24")
    e(f"s_cmp_eq_u32 s{WAVE}, 7"); e(f"s_cselect_b32 s{T1}, s{T1}, 48")
    e(f"s_load_dwordx2 {s(SW,2)}, s[0:1], s{T1}")
    e(f"s_mov_b32 s{SW+2}, {1024*3584*2}"); e(f"s_mov_b32 s{WADV}, {64*7168}")
    e(f"s_cselect_b32 s{SW+2}, {1024*1024*2}, s{SW+2}")
    e(f"s_cselect_b32 s{WADV}, {64*2048}, s{WADV}")
    if opt.get('pp', 1):
        e(f"s_cmp_lt_u32 s{WAVE}, 4"); e("s_cbranch_scc1 L_pp"); e(f"s_setprio {opt.get('pp', 1)}"); e("L_pp:")
    if MAP == 0:
        e(f"s_and_b32 s{RB}, s2, 1"); e(f"s_lshl_b32 s{RB}, s{RB}, 3"); e(f"s_bfe_u32 s{T1}, s2, 0x30003"); e(f"s_add_u32 s{RB}, s{RB}, s{T1}")
        e(f"s_and_b32 s{CBP}, s2, 4"); e(f"s_lshr_b32 s{T1}, s2, 6"); e(f"s_add_u32 s{CBP}, s{CBP}, s{T1}")
    elif MAP == 1:
        e(f"s_and_b32 s{RB}, s2, 6"); e(f"s_lshl_b32 s{RB}, s{RB}, 1"); e(f"s_bfe_u32 s{T1}, s2, 0x20003"); e(f"s_add_u32 s{RB}, s{RB}, s{T1}")
        e(f"s_lshr_b32 s{CBP}, s2, 5")
        if opt.get('par', 1):
            e(f"s_lshl_b32 s{XOFF}, s{RB}, 7"); e(f"s_mul_i32 s{WOFF}, s{RB}, s{WADV}")
            e(f"s_and_b32 s{RB}, s{RB}, 8"); e(f"s_lshl_b32 s{T1}, s{T1}, 1"); e(f"s_add_u32 s{RB}, s{RB}, s{T1}")
            e(f"s_bfe_u32 s{T1}, s2, 0x10001"); e(f"s_add_u32 s{RB}, s{RB}, s{T1}")
    else:
        e(f"s_and_b32 s{RB}, s2, 7"); e(f"s_lshl_b32 s{RB}, s{RB}, 1"); e(f"s_bfe_u32 s{T1}, s2, 0x10004"); e(f"s_add_u32 s{RB}, s{RB}, s{T1}")
        e(f"s_lshr_b32 s{CBP}, s2, 5")
    e(f"s_add_u32 s{C16}, s{T0}, s{CBP}")
    e(f"s_lshr_b32 s{TB}, s{RB}, 1"); e(f"s_lshl_b32 s{TB}, s{TB}, 6"); e(f"s_and_b32 s{T1}, s{RB}, 1"); e(f"s_add_u32 s{TB}, s{TB}, s{T1}")
    e(f"s_mov_b32 s{SX+2}, 0x400000"); e(f"s_mov_b32 s{SX+3}, 0x00020000"); e(f"s_mov_b32 s{SW+3}, 0x00020000")
    if not (MAP == 1 and opt.get('par', 1)): e(f"s_lshl_b32 s{XOFF}, s{RB}, 7"); e(f"s_mul_i32 s{WOFF}, s{RB}, s{WADV}")
    e(f"s_lshl_b32 s{MW}, s{WAVE}, 12"); e(f"s_lshl_b32 s{MX}, s{WAVE}, 11"); e(f"s_add_u32 s{MX}, s{MX}, {LX}")
    e(f"s_lshr_b32 s{T0}, s{WAVE}, 2"); e(f"s_lshl_b32 s{T0}, s{T0}, 1"); e(f"s_add_u32 s{T0}, s{T0}, s{TB}")
    e(f"s_and_b32 s{T1}, s{WAVE}, 3")
    e(f"s_add_u32 s{T2}, s{T1}, 1"); e(f"s_lshr_b32 s{T2}, s{T2}, 1"); e(f"s_lshl_b32 s{T2}, s{T2}, 10")
    e(f"s_bitcmp1_b32 s{T1}, 0"); e(f"s_cselect_b32 s{T3}, -1, 1")
    e(f"s_lshr_b32 s{T1}, s{T1}, 1"); e(f"s_lshl_b32 s{T1}, s{T1}, 9"); e(f"s_sub_u32 s{T1}, s{T2}, s{T1}")
    e(f"v_lshrrev_b32 v{T}, 3, v{L}")
    e(f"v_lshl_add_u32 v{T+1}, v{T}, 2, s{T0}")
    e(f"v_cmp_eq_u32 vcc, 0, v{T+1}")
    e(f"v_mul_lo_u32 v{T+2}, v{T+1}, s{T3}"); e(f"v_add_u32 v{T+2}, s{T2}, v{T+2}")
    e(f"s_lshl_b32 s{T3}, s{T3}, 5"); e(f"v_add_u32 v{T+3}, s{T3}, v{T+2}")
    e(f"v_mov_b32 v{T+4}, s{T1}"); e(f"v_cndmask_b32 v{T+2}, v{T+2}, v{T+4}, vcc")
    e(f"v_lshrrev_b32 v{T+4}, 1, v{T}"); e(f"v_xor_b32 v{T+4}, v{T+4}, v{L}"); e(f"v_and_b32 v{T+4}, 7, v{T+4}"); e(f"v_lshlrev_b32 v{T+4}, 4, v{T+4}")
    e(f"v_lshl_add_u32 v{VXD}, v{T+2}, 11, v{T+4}")
    e(f"v_xor_b32 v{T+4}, 64, v{T+4}"); e(f"v_lshl_add_u32 v{VXD+1}, v{T+3}, 11, v{T+4}"); e(f"v_subrev_u32 v{VXD+1}, 1024, v{VXD+1}")
    e(f"s_cmp_eq_u32 s{WAVE}, 7"); e("s_cbranch_scc1 L_wd7")
    e(f"s_lshl_b32 s{T0}, s{WAVE}, 8"); e(f"s_mul_i32 s{T1}, s{C16}, 448"); e(f"s_add_u32 s{T1}, s{T1}, s{MW}")
    e(f"v_add_u32 v{T}, s{T0}, v{L}"); e(f"v_mul_u32_u24 v{T}, 2341, v{T}"); e(f"v_lshl_add_u32 v{T+5}, v{L}, 4, s{T1}")
    e(f"s_movk_i32 s{T2}, {7168-448}")
    for j in range(4):
        if j: e(f"v_add_u32 v{T}, {64*2341}, v{T}")
        e(f"v_lshrrev_b32 v{T+1}, 16, v{T}")
        e(f"v_bfe_u32 v{T+3}, v{T}, 19, 1"); e(f"v_mad_u32_u24 v{T+2}, v{T+1}, s{T2}, v{T+5}")
        e(f"v_lshlrev_b32 v{T+3}, 5, v{T+3}"); e(f"v_xor_b32 v{VWD+j}, v{T+2}, v{T+3}")
    e("s_branch L_wdj")
    e("L_wd7:")
    e(f"v_lshrrev_b32 v{T}, 2, v{L}")
    e(f"v_lshrrev_b32 v{T+1}, 3, v{L}"); e(f"v_xor_b32 v{T+1}, v{T+1}, v{L}")
    e(f"v_and_b32 v{T+1}, 2, v{T+1}"); e(f"v_lshlrev_b32 v{T}, 12, v{T}")
    e(f"v_and_or_b32 v{T+1}, v{L}, 1, v{T+1}"); e(f"v_lshl_add_u32 v{T}, v{T+1}, 4, v{T}")
    e(f"s_lshl_b32 s{T0}, s{CBP}, 6"); e(f"v_add_u32 v{VWD}, s{T0}, v{T}")
    for j in range(1, 4):
        e(f"v_add_u32 v{VWD+j}, {(j&1)*65536 + (j>>1)*2048 - j*1024}, v{VWD}")
    e("L_wdj:")
    e(f"s_lshl_b32 s{WEND}, s{WADV}, 4"); e(f"s_mov_b32 s{T0}, {WS_TOK}")
    e("s_waitcnt lgkmcnt(0)")
    def burst(c):
        for mm, d in a_dmas(c):
            if mm: e(mm); e("s_nop 0")
            m.put(('vm', d, ('A', c)))
        for x in A_ADV: e(x)
    burst(0)
    e(f"s_load_dword s{TOK}, {s(SWS,2)}, s{T0}")
    e(f"s_load_dwordx2 {s(SW2,2)}, s[0:1], 56"); e(f"s_load_dwordx2 {s(SO,2)}, s[0:1], 64")
    e(f"s_and_b32 s{WR}, s{WAVE}, 1"); e(f"s_lshr_b32 s{WC}, s{WAVE}, 1")
    e(f"v_bfe_u32 v{T}, v{L}, 2, 2"); e(f"v_lshrrev_b32 v{T+1}, 4, v{L}")
    e(f"v_lshl_add_u32 v{T+2}, v{T+1}, 3, v{T}"); e(f"v_mul_u32_u24 v{T+2}, 448, v{T+2}")
    e(f"v_and_b32 v{T+3}, 3, v{L}"); e(f"v_lshlrev_b32 v{T+3}, 3, v{T+3}"); e(f"v_add_u32 v{T+2}, v{T+2}, v{T+3}")
    e(f"v_and_b32 v{T+4}, 1, v{T+1}")
    e(f"s_lshl_b32 s{T0}, s{WAVE}, 1"); e(f"s_cmp_eq_u32 s{WC}, 3"); e(f"s_cselect_b32 s{T0}, 12, s{T0}"); e(f"s_cselect_b64 {s(M2,2)}, -1, 0")
    e(f"v_xor_b32 v{T+5}, s{T0}, v{T+4}")
    e(f"v_bfe_u32 v{T+6}, v{L}, 2, 4"); e(f"v_lshl_add_u32 v{T+6}, v{T+6}, 6, v{T+3}"); e(f"v_add_u32 v{T+6}, {LDF}, v{T+6}")
    e(f"v_lshl_add_u32 v{T+6}, v{T+4}, 5, v{T+6}"); e(f"v_xor_b32 v{T+7}, 32, v{T+6}")
    for n in range(4):
        e(f"v_xor_b32 v{T+3}, {n}, v{T+5}"); e(f"v_lshl_add_u32 v{VWB+n}, v{T+3}, 5, v{T+2}")
        if n >= 2: e(f"v_cndmask_b32 v{VWB+n}, v{VWB+n}, v{T+4+n}, {s(M2,2)}")
    e(f"v_and_b32 v{T}, 15, v{L}"); e(f"v_lshlrev_b32 v{T+2}, 7, v{T}")
    e(f"s_lshl_b32 s{T0}, s{WR}, 13"); e(f"s_add_u32 s{T0}, s{T0}, {LX}"); e(f"v_add_u32 v{T+2}, s{T0}, v{T+2}")
    e(f"v_lshrrev_b32 v{T}, 1, v{T}"); e(f"v_xor_b32 v{T}, v{T}, v{T+1}")
    e(f"v_lshl_add_u32 v{VXB}, v{T}, 4, v{T+2}"); e(f"v_xor_b32 v{VXB+1}, 64, v{VXB}")
    ms = misc_setup(opt)
    dl = a_dmas(1)
    for i, (mm, d) in enumerate(dl):
        if mm: e(mm); e("s_nop 0")
        m.put(('vm', d, ('A', 1)))
        for grp in ms[(i*len(ms))//6:((i+1)*len(ms))//6]: m.all(grp)
    for x in A_ADV: e(x)
    e(f"v_lshlrev_b32 v{VL16}, 4, v{L}")
    e(f"s_lshl_b32 s{U0}, s{C16}, 3"); e(f"s_add_u32 s{U0}, s{U0}, s{WAVE}")
    e(f"s_and_b32 s{T0}, s{U0}, 15"); e(f"s_lshl_b32 s{T0}, s{T0}, 2"); e(f"s_add_u32 s{T0}, s{T0}, s{TB}")
    e(f"s_lshl_b32 s{T1}, s{KQ}, 1"); e(f"s_add_u32 s{T0}, s{T0}, s{T1}")
    e(f"s_bfe_u32 s{T1}, s{U0}, 0x20004")
    e(f"s_add_u32 s{T2}, s{T1}, 1"); e(f"s_lshr_b32 s{T2}, s{T2}, 1"); e(f"s_lshl_b32 s{T2}, s{T2}, 10")
    e(f"s_add_u32 s{T3}, s{T2}, s{T0}"); e(f"s_sub_u32 s{U0+1}, s{T2}, s{T0}")
    e(f"s_bitcmp1_b32 s{T1}, 0"); e(f"s_cselect_b32 s{T3}, s{U0+1}, s{T3}")
    e(f"s_lshr_b32 s{T1}, s{T1}, 1"); e(f"s_lshl_b32 s{T1}, s{T1}, 9"); e(f"s_sub_u32 s{T1}, s{T2}, s{T1}")
    e(f"s_cmp_eq_u32 s{T0}, 0"); e(f"s_cselect_b32 s{T3}, s{T1}, s{T3}")
    e(f"s_lshl_b32 s{T3}, s{T3}, 11")
    m.put(('vm', f"buffer_load_dwordx4 {v(SR,4)}, v{VL16}, {s(SX,4)}, s{T3} offen", 'st'))
    m.put(('vm', f"buffer_load_dwordx4 {v(SR+4,4)}, v{VL16}, {s(SX,4)}, s{T3} offen offset:1024", 'st'))
    e(f"s_lshl_b32 s{T0}, s{RB}, 7"); e(f"s_add_u32 s{U0}, s{U0}, s{T0}"); e(f"s_lshl_b32 s{T0}, s{U0}, 4"); e(f"s_add_u32 s{T0}, s{T0}, {WS_NM}")
    e(f"s_lshl_b32 s{T1}, s{U0}, 2"); e(f"s_add_u32 s{T1}, s{T1}, {WS_RS}"); e(f"s_add_u32 s{T2}, s{T1}, {WS_MF-WS_RS}")
    if opt.get('astamp') == 1: stamp(e, opt, 3)

ONES = 124; CS0 = 224
SR = 232
PSEL = 36

def misc_setup(opt):
    D = []; g = D.append
    g([f"v_mov_b32 v{ONES+r}, 0x3f803f80" for r in range(4)])
    g([f"v_add_u32 v{VWB+4+n}, 0x10000, v{VWB+n}" for n in range(4)])
    for r, n in ((SWS, 0x10000000), (SW2, 3584*1024*2), (SO, 0x400000)):
        g([f"s_mov_b32 s{r+2}, {n}", f"s_mov_b32 s{r+3}, 0x00020000"])
    g([f"s_lshl_b32 s{T0}, s{RB}, 4", f"s_add_u32 s{T0}, s{T0}, s{C16}", f"s_lshl_b32 s{T0}, s{T0}, 5", f"s_add_u32 s{T0}, s{T0}, s{WAVE}",
       f"s_lshl_b32 s{SFL}, s{T0}, 2", f"s_add_u32 s{SFL}, s{SFL}, {WS_FL}"])
    if opt.get('b3', 1):
        g([f"s_and_b32 s{T0}, s{RB}, 1", f"s_lshl_b32 s{T0}, s{T0}, 1", f"s_add_u32 s{T0}, s{T0}, s{WR}", f"s_lshl_b32 s{T0}, s{T0}, 3",
           f"s_lshr_b32 s{T1}, s{RB}, 1", f"s_add_u32 s{T0}, s{T0}, s{T1}", f"s_lshl_b32 s{T0}, s{T0}, 4", f"s_add_u32 s{T0}, s{T0}, s{C16}"])
        g(["s_getreg_b32 s3, hwreg(HW_REG_XCC_ID, 0, 4)"])
    else:
        g([f"s_and_b32 s{T0}, s{RB}, 1", f"s_lshl_b32 s{T1}, s{WR}, 1", f"s_add_u32 s{T0}, s{T0}, s{T1}", f"s_lshl_b32 s{T0}, s{T0}, 3",
           f"s_lshr_b32 s{T1}, s{RB}, 1", f"s_add_u32 s{T0}, s{T0}, s{T1}", f"s_lshl_b32 s{T0}, s{T0}, 4", f"s_add_u32 s{T0}, s{T0}, s{C16}"])
    g([f"s_lshl_b32 s{SFD}, s{T0}, 2", f"s_add_u32 s{SFD}, s{SFD}, {WS_FD}"])
    g([f"v_lshrrev_b32 v{T+1}, 4, v{L}", f"s_lshl_b32 s{T0}, s{WR}, 4", f"v_add_u32 v{T}, s{T0}, v{T+1}"])
    g([f"v_bfe_u32 v{T+2}, v{L}, 1, 3", f"v_xor_b32 v{T+2}, v{T+2}, v{T+1}"])
    g([f"s_lshl_b32 s{T0}, s{CBP}, 7", f"s_sub_u32 s{T1}, {2048-256}, s{T0}", f"v_mov_b32 v{T+3}, s{T0}", f"v_mov_b32 v{T+4}, s{T1}"])
    g([f"v_and_b32 v{T+5}, 1, v{L}", f"v_lshlrev_b32 v{T+5}, 4, v{T+5}", f"v_lshl_add_u32 v{T+5}, v{T}, 11, v{T+5}"])
    for j in range(2):
        g(([f"v_xor_b32 v{T+2}, 4, v{T+2}"] if j else []) + [f"v_cmp_lt_u32 vcc, 3, v{T+2}", f"v_lshl_add_u32 v{T+7}, v{T+2}, 5, v{T+5}"])
        g([f"v_cndmask_b32 v{T+6}, v{T+3}, v{T+4}, vcc", f"v_add_u32 v{VW2D+j}, v{T+6}, v{T+7}"])
    g([f"v_add_u32 v{VW2D+1}, {8192-1024}, v{VW2D+1}", f"v_add_u32 v{VW2D+2}, {16384-2048}, v{VW2D}", f"v_add_u32 v{VW2D+3}, {16384-2048}, v{VW2D+1}"])
    g([f"s_and_b32 s{MW2}, s{WAVE}, 3", f"s_lshl_b32 s{MW2}, s{MW2}, 12",
       f"s_mul_i32 s{T0}, s{KQ}, 56", f"s_add_u32 s{W2END}, s{T0}, 56", f"s_lshl_b32 s{W2END}, s{W2END}, 16"])
    g([f"s_mul_i32 s{T1}, s{CBP}, 7", f"s_add_u32 s{T0}, s{T0}, s{T1}", f"s_bfe_u32 s{T1}, s{WAVE}, 0x10001", f"s_add_u32 s{T0}, s{T0}, s{T1}",
       f"s_lshl_b32 s{W2OFF}, s{T0}, 16"])
    g([f"s_cmp_eq_u32 s{WAVE}, 0", f"s_cselect_b32 s{KEY}, 3, 60", f"s_cselect_b32 s{KEY2}, 1, 60"])
    g([f"v_and_b32 v{T+1}, 15, v{L}", f"s_lshl_b32 s{T0}, s{RB}, 4", f"v_add_u32 v{T+2}, s{T0}, v{T+1}", f"v_lshlrev_b32 v{T}, 4, v{T+1}", f"v_add_u32 v{T+1}, s{C16}, v{T}"])
    g([f"v_and_b32 v{T+3}, 16, v{L}", f"v_cmp_eq_u32 vcc, 0, v{T+3}", f"s_mov_b32 s{SWF}, {WS_FL+64}", f"v_cndmask_b32 v{T+1}, v{T+1}, v{T+2}, vcc", f"v_lshlrev_b32 v{T+1}, 7, v{T+1}"])
    g([f"s_lshl_b32 s{T0}, s{WAVE}, 1", f"s_min_u32 s{T0}, s{T0}, 12", f"s_lshl_b32 s{T0}, s{T0}, 8",
       f"s_lshl_b32 s{T1}, s{C16}, 14", f"s_add_u32 s{T0}, s{T0}, s{T1}", f"s_add_u32 s{U0+2}, s{T1}, {WS_CS}"])
    g([f"s_lshr_b32 s{T1}, s{RB}, 2", f"s_lshl_b32 s{T1}, s{T1}, 12", f"s_add_u32 s{T0}, s{T0}, s{T1}",
       f"s_and_b32 s{T1}, s{RB}, 3", f"s_lshl_b32 s{T1}, s{T1}, 2", f"s_add_u32 s{T0}, s{T0}, s{T1}", f"s_add_u32 s{U0+3}, s{T0}, {WS_CS}"])
    g([f"v_lshrrev_b32 v{T+3}, 5, v{L}", f"v_lshl_add_u32 v{T}, v{T+3}, 8, v{T}", f"v_cmp_gt_u32 vcc, 32, v{L}"])
    g([f"v_mov_b32 v{T+8}, 0", f"v_mov_b32 v{T+9}, 0", f"v_mov_b32 v{VZ}, 0"])
    return D

def deferred(opt, sp):
    D = []; g = D.append
    S1, S2, S3, S4, ON, NM = T+8, T+9, T+10, T+11, ONES, T+12
    g([f"s_add_u32 s{TOK}, s{TOK}, 1", f"v_mov_b32 v{VTOK}, s{TOK}"])
    for d in range(8):
        g([f"v_dot2c_f32_bf16 v{S1}, v{SR+d}, v{ON}"]); g([f"v_dot2c_f32_bf16 v{S2}, v{SR+d}, v{SR+d}"])
    g([f"v_cndmask_b32 v{CS0}, v{CS0+4}, v{CS0}, vcc"]); g([f"v_cvt_pk_bf16_f32 v{CS0+1}, v{CS0}, v{CS0}"]); g([f"v_lshlrev_b32 v{CS0+1}, 16, v{CS0+1}"])
    g([f"v_sub_f32 v{CS0+1}, v{CS0}, v{CS0+1}"]); g([f"v_cvt_pk_bf16_f32 v{CS0+1}, v{CS0}, v{CS0+1}"])
    g([('vm', f"buffer_store_dword v{CS0+1}, v{T}, {s(SWS,4)}, s{U0+3} offen sc0 sc1", 'x')])
    for dpp in ("quad_perm:[1,0,3,2] row_mask:0xf", "quad_perm:[2,3,0,1] row_mask:0xf", "row_half_mirror row_mask:0xf", "row_mirror row_mask:0xf",
                "row_bcast:15 row_mask:0xa", "row_bcast:31 row_mask:0xc"):
        g(["s_nop 0", f"v_add_f32_dpp v{S1}, v{S1}, v{S1} {dpp} bank_mask:0xf"]); g(["s_nop 0", f"v_add_f32_dpp v{S2}, v{S2}, v{S2} {dpp} bank_mask:0xf"])
    def bfr(d): g([f"v_cvt_pk_bf16_f32 v{d}, v{d}, v{d}"]); g([f"v_lshlrev_b32 v{d}, 16, v{d}"])
    g([f"v_mul_f32 v{S1}, 0x3a800000, v{S1}"]); g([f"v_mul_f32 v{S2}, 0x3a800000, v{S2}"]); g([f"v_fma_f32 v{S2}, -v{S1}, v{S1}, v{S2}"])
    bfr(S2); g([f"v_add_f32 v{S2}, 0x3727c5ac, v{S2}"])
    bfr(S2); g([f"v_sqrt_f32 v{S2}, v{S2}"])
    g([f"v_cvt_pk_bf16_f32 v{NM}, -v{S1}, -v{S1}"]); bfr(S1)
    bfr(S2); g([f"v_rcp_f32 v{S2}, v{S2}"])
    for r in (1, 2, 3): g([f"v_mov_b32 v{NM+r}, v{NM}"])
    if opt.get('pf', 1) and not sp:
        g([f"s_lshl_b32 s{T3}, s{RB}, 3", f"s_add_u32 s{T3}, s{T3}, s{CBP}", f"s_mul_i32 s{T3}, s{T3}, 6", f"s_add_u32 s{T3}, s{T3}, s{WAVE}", f"s_mul_i32 s{T3}, s{T3}, {25*64}",
           f"s_mul_i32 s{U0+8}, s{KQ}, {3584*2048-57600*64}", f"s_add_u32 s{U0+8}, s{U0+8}, s{T3}"])
        g([f"v_lshlrev_b32 v{EO}, 6, v{L}"]); g([f"v_cmp_gt_u32 {s(M2,2)}, 25, v{L}", f"v_bfrev_b32 v{EO+1}, 2"])
        g([f"v_cndmask_b32 v{EO}, v{EO+1}, v{EO}, {s(M2,2)}"])
    if opt.get('pf2', 0) and not sp:
        P2 = EO+2; Q2 = EO+4
        g([f"s_mul_i32 s{T3}, s{CBP}, 224", f"s_lshl_b32 s{U0+9}, s{WAVE}, 7", f"s_add_u32 s{T3}, s{T3}, s{U0+9}",
           f"s_and_b32 s{U0+9}, s{RB}, 3", f"s_lshl_b32 s{U0+9}, s{U0+9}, 4", f"s_add_u32 s{T3}, s{T3}, s{U0+9}", f"s_add_u32 s{T3}, s{T3}, {64*opt.get('pc0', 3)}",
           f"v_lshrrev_b32 v{Q2}, 5, v{L}", f"v_lshl_add_u32 v{P2}, v{Q2}, 6, s{T3}"])
        g([f"v_bfe_u32 v{Q2}, v{L}, 1, 4"]); g([f"v_add_u32 v{P2}, v{P2}, v{Q2}"]); g([f"v_add_u32 v{P2+1}, 768, v{P2}"])
        for r in (P2, P2+1):
            g([f"v_subrev_u32 v{Q2}, 1792, v{r}"]); g([f"v_min_u32 v{r}, v{r}, v{Q2}"])
        g([f"s_lshl_b32 s{T3}, s{CBP}, 8", f"s_sub_u32 s{T3}, 1920, s{T3}", f"v_and_b32 v{Q2}, 1, v{L}", f"v_mul_lo_u32 v{Q2}, v{Q2}, s{T3}"])
        for r in (P2, P2+1): g([f"v_lshl_add_u32 v{r}, v{r}, 11, v{Q2}"])
        g([f"s_mul_i32 s{U0+9}, s{KQ}, {1792*2048}", f"s_lshl_b32 s{T3}, s{CBP}, 7", f"s_add_u32 s{U0+9}, s{U0+9}, s{T3}"])
    if opt.get('b3', 1): g([f"v_mov_b32 v{S3}, s3"])
    g(["s_mov_b32 exec_lo, 0", "s_brev_b32 exec_hi, 1",
       ('vm', f"buffer_store_dwordx4 {v(NM,4)}, v{VZ}, {s(SWS,4)}, s{T0} offen sc0 sc1", 'x'),
       ('vm', f"buffer_store_dword v{S1}, v{VZ}, {s(SWS,4)}, s{T2} offen sc0 sc1", 'x'),
       ('vm', f"buffer_store_dword v{S2}, v{VZ}, {s(SWS,4)}, s{T1} offen sc0 sc1", 'x')]
      + ([('vm', f"buffer_store_dword v{S3}, v{VZ}, {s(SWS,4)}, s{SFL} offen offset:96 sc0 sc1", 'x')] if opt.get('b3', 1) else [])
      + ["s_mov_b64 exec, -1"])
    return D

def phaseA(e, m, opt, sp):
    P = "LS" if sp else "LN"
    A = PhaseA(e, m, opt, sp)
    if sp:
        e(f"s_setprio {opt.get('psp', 2)}")
        e(f"v_mov_b32 v{PSEL}, 0x05040100"); e(f"v_mov_b32 v{PSEL+1}, 0x07060302")
        e(f"v_mov_b32 v{PSEL+2}, 0xbf803f80"); e(f"v_mov_b32 v{PSEL+3}, 0x3f80bf80")
        e(f"s_cmp_eq_u32 s{C16}, 8"); e(f"s_cselect_b32 s{SPM}, 0x00010001, 0"); e(f"s_mov_b32 s{SPM+1}, s{SPM}")
    elif 'pn' in opt:
        e(f"s_cmp_lt_u32 s{WAVE}, 4"); e(f"s_cbranch_scc1 LN_pr"); e(f"s_setprio {opt['pn']}"); e("LN_pr:")
    D = deferred(opt, sp)
    if sp: gl = [(c, g) for c in (1, 2, 3) for g in list(range(16)) + [18, 22, 26]]
    else: gl = [(c, g) for c in (1, 2, 3) for g in range(32)][:opt.get('dspan', 90)]
    DD = {1: [], 2: [], 3: []}
    for i, grp in enumerate(D):
        c, g = gl[(i*len(gl))//len(D)]
        DD[c].append((g, grp))
    for c in range(4):
        A.body(c, defer=DD.get(c))
        if opt.get('astamp') == 2: stamp(e, opt, 3+c)
    if opt.get('astamp') == 1: stamp(e, opt, 4)
    e(f"s_mov_b32 s{CNT}, 3")
    if opt.get('astamp') == 4: stamp(e, opt, 3)
    e(".p2align 3"); e(f"{P}_loop:")
    for c in (4, 5, 6): A.body(c)
    if opt.get('astamp') == 4:
        e("s_mov_b64 s[88:89], s[90:91]"); e("s_mov_b64 s[90:91], s[92:93]"); stamp(e, opt, 6)
    e(f"s_sub_u32 s{CNT}, s{CNT}, 1"); e(f"s_cmp_gt_i32 s{CNT}, 0"); e(f"s_cbranch_scc1 {P}_loop")
    m.vq = [(t[0], t[1]+6) if isinstance(t, tuple) else t for t in m.vq]
    if opt.get('astamp') == 1: stamp(e, opt, 5)
    A.body(13)
    if opt.get('astamp') == 1: stamp(e, opt, 6)
    return A

class PhaseA:
    def __init__(self, e, m, opt, sp): self.e = e; self.m = m; self.opt = opt; self.sp = sp
    def wread(self, st, off, n, j, half):
        off += st*WST; b = VWB + n
        if off >= 65536: off -= 65536; b += 4
        r = FW + 4*j + 2*half
        return ('ds', f"ds_read_b64_tr_b16 {v(r,2)}, v{b} offset:{off}", [r, r+1])
    def xread(self, st, ks, mm):
        r = FX + 16*ks + 4*mm
        return ('ds', f"ds_read_b128 {v(r,4)}, v{VXB+ks} offset:{st*XST + mm*2048}", range(r, r+4))
    def frag(self, h, j):
        if not self.sp: return j, lambda half: h*14336 + half*1792
        if h == 0: return j % 2, lambda half: (j//2)*14336 + half*1792
        return 2 + j % 2, lambda half: (j//2)*2048 + half*1024
    def mfma(self, h, j, mm, zero):
        w = v(FW+4*j, 4)
        if not self.sp:
            acc = v(ACC+16*j+4*mm, 4); x = v(FX+16*h+4*mm, 4); a, b = w, x; z = zero and h == 0
        elif h == 0:
            acc = v(ACC+16*(j%2)+4*mm, 4); x = v(FX+16*(j//2)+4*mm, 4); a, b = w, x; z = zero and j < 2
        else:
            acc = v(ACC+32+32*(j//2)+16*(j%2)+4*mm, 4); x = v(EO+16*(j//2)+4*mm, 4); a, b = x, w; z = zero
        return f"v_mfma_f32_16x16x32_bf16 {acc}, {a}, {b}, {'0' if z else acc}"
    def xregs(self, h, j):
        if not self.sp: return range(FX+16*h, FX+16*h+16) if j == 0 else []
        if h == 0: return range(FX+16*(j//2), FX+16*(j//2)+16) if j % 2 == 0 else []
        return []
    def step(self, mf, rd, extra):
        e, m, sp = self.e, self.m, self.sp
        fill = [[] for _ in range(16)]
        if mf is not None and sp and mf[1] == 0:
            for mm in range(4):
                for par in range(2):
                    for d in range(4):
                        raw = FX + 16*(d//2) + 4*mm + 2*(d % 2)
                        g = (8 if d >= 2 else 0) + 2*mm + par
                        if not self.opt.get('noperm'): fill[g].append(f"v_perm_b32 v{EO+16*par+4*mm+d}, v{raw+1}, v{raw}, v{PSEL+par}")
        duty = mf is not None and mf[0] == 0 and not (sp and mf[1] == 1)
        if rd is not None:
            c, h = rd; st = c % 3
            if not sp:
                for mm in range(4): fill[2*mm+1].append(self.xread(st, h, mm))
            elif h == 0:
                for q in range(8): fill[(0,1,2,5,6,9,10,13)[q]].append(self.xread(st, q//4, q % 4))
            for j in range(4):
                n, of = self.frag(h, j)
                for half in range(2):
                    fill[min(15, 4*j+3+half)].append(self.wread(st, of(half), n, j, half))
        for g, l in extra.items(): fill[g] += l
        for j in range(4):
            for mi in range(4):
                mm = mi if j % 2 == 0 else 3 - mi
                if mf is not None:
                    if mi == 0:
                        m.nds(list(range(FW+4*j, FW+4*j+4)) + list(self.xregs(mf[1], j)))
                        if sp and mf[1] == 1 and j % 2 == 0:
                            for d in range(4): e(f"v_cndmask_b32 v{FW+4*j+d}, v{FW+4*j+d}, v{PSEL+2+j//2}, {s(SPM,2)}")
                            e("s_nop 1")
                    if not self.opt.get('nomfma'): e(self.mfma(mf[1], j, mm, mf[0] == 0))
                    if duty and mi == 1 and (sp or j < 2):
                        cs = v(CS0+4*(j % 2), 4)
                        first = (j < 2) if sp else mf[1] == 0
                        e(f"v_mfma_f32_16x16x32_bf16 {cs}, {v(ONES,4)}, {v(FW+4*j,4)}, {'0' if first else cs}")
                m.all(fill[4*j+mi])
    def body(self, c, vmx=None, pre=None, defer=None):
        e, m, opt = self.e, self.m, self.opt
        P = "LS" if self.sp else "LN"
        if c == 4:
            assert opt.get('nodma') or m.vq[-1] == ('A', 5)
            e("s_waitcnt vmcnt(6)"); m.vq = m.vq[-6:]
        elif c == 1: m.nvm(('A', c), 'st'); m.ds0()
        else: m.nvm(('A', c))
        if c == 13 and not self.sp:
            e(f"s_cmp_lg_u32 s{WAVE}, 0"); e(f"s_cbranch_scc1 {P}_ck2")
            e(f"s_mov_b32 s{BND}, 4000")
            e(f"{P}_ck0:")
            e(f"v_cmp_ne_u32 vcc, v{VTOK}, v{T+2}"); e("s_cmp_eq_u64 vcc, 0"); e(f"s_cbranch_scc1 {P}_ck2")
            e(f"s_sub_u32 s{BND}, s{BND}, 1"); e(f"s_cmp_eq_u32 s{BND}, 0"); e(f"s_cbranch_scc1 {P}_ck2")
            e(f"buffer_load_dword v{T+2}, v{T+1}, {s(SWS,4)}, s{SWF} offen sc0 sc1"); e("s_waitcnt vmcnt(0)")
            e(f"s_branch {P}_ck0")
            e(f"{P}_ck2:")
        e("s_barrier")
        if c == 0: stamp(e, opt, 1)
        if c == 5 and not self.sp:
            e(f"s_cmp_lg_u32 s{CNT}, s{KEY}"); e(f"s_cbranch_scc1 {P}_nf")
            e("s_mov_b64 exec, 1")
            e(f"buffer_store_dword v{VTOK}, v{VZ}, {s(SWS,4)}, s{SFL} offen offset:64 sc0 sc1")
            e("s_mov_b64 exec, -1")
            e(f"{P}_nf:")
        if c == 6 and not self.sp:
            e(f"s_cmp_lg_u32 s{CNT}, s{KEY2}"); e(f"s_cbranch_scc1 {P}_np")
            e(f"buffer_load_dword v{T+2}, v{T+1}, {s(SWS,4)}, s{SWF} offen sc0 sc1")
            e(f"{P}_np:")
        if pre: m.all(pre)
        ex = [{}, {}]
        def at(g, it): ex[g//16].setdefault(g % 16, []).append(it)
        if vmx is None:
            vmx = [(mm, ('vm', d, ('A', c+2)), None) for mm, d in a_dmas((c+2) % 3)]
            vmx[-1] = (vmx[-1][0], vmx[-1][1], A_ADV)
        for i, (mm, d, post) in enumerate(vmx):
            g = min(30, 1 + (i*32)//len(vmx))
            if mm: at(g-1, mm)
            at(g, d)
            if post:
                for x in post: at(g+1, x)
        if c == 5 and not self.sp and opt.get('pf', 1):
            at(opt.get('pfg', 2), ('vm', f"buffer_load_dword v{EO+1}, v{EO}, {s(SW2,4)}, s{U0+8} offen{opt.get('pfb', '')}", ('A', c+2)))
            at(opt.get('pfg', 2)+1, f"s_add_u32 s{U0+8}, s{U0+8}, {19200*64}")
        if not self.sp and opt.get('pf2', 0):
            for i, cc in enumerate(opt.get('pb2', (13,))):
                if cc == c: at(opt.get('pfg', 2)+2*i, ('vm', f"buffer_load_dword v{EO+1}, v{EO+2+i}, {s(SW2,4)}, s{U0+9} offen", ('A', c+2) if c < 14 else 'pf'))
        for g, grp in (defer or []):
            for x in grp: at(g, x)
        self.step((c-1, 1) if c > 0 else None, (c, 0), ex[0])
        self.step((c, 0), (c, 1), ex[1])

    def tail(self, helper):
        e, m, opt, sp = self.e, self.m, self.opt, self.sp
        NB = 2 if sp else 4
        WX = 224; NMF = 240; RHO = 192 if not sp else None
        pre = [f"v_lshrrev_b32 v{T+5}, 4, v{L}", f"v_and_b32 v{T+4}, 15, v{L}", f"v_lshlrev_b32 v{T+4}, 4, v{T+4}",
               f"v_lshl_add_u32 v{T+3}, v{T+5}, 12, v{T+4}",
               f"s_lshl_b32 s{T0}, s{WAVE}, 1", f"s_min_u32 s{T0}, s{T0}, 12", f"s_lshl_b32 s{T0}, s{T0}, 8",
               f"s_add_u32 s{U0+3}, s{U0+2}, s{T0}", f"s_xor_b32 s{U0+4}, s{U0+3}, 512",
               f"s_lshl_b32 s{T0}, s{RB}, 1", f"s_add_u32 s{T0}, s{T0}, s{WR}", f"s_lshl_b32 s{U0+5}, s{T0}, 10", f"s_add_u32 s{U0+5}, s{U0+5}, {WS_NM}",
               f"s_lshl_b32 s{U0+6}, s{T0}, 8", f"s_add_u32 s{U0+6}, s{U0+6}, {WS_RS}", f"v_lshlrev_b32 v{T+5}, 4, v{T+5}"]
        ld = []
        for n in range(NB):
            ld.append((None, ('vm', f"buffer_load_dwordx4 {v(WX+4*n,4)}, v{T+3}, {s(SWS,4)}, s{U0+3+n//2} offen offset:{(n%2)*256} sc0 sc1", 'ext'), None))
        for mm in range(4):
            ld.append((None, ('vm', f"buffer_load_dwordx4 {v(NMF+4*mm,4)}, v{T+4}, {s(SWS,4)}, s{U0+5} offen offset:{mm*256} sc0 sc1", 'ext'), None))
        B3 = opt.get('b3', 1)
        if B3: ld.append((None, ('vm', f"buffer_load_dword v{T+2}, v{T+1}, {s(SWS,4)}, s{SWF} offen offset:32 sc0 sc1", 'ext'), None))
        if B3 and opt.get('xt', 1):
            pre += [f"s_lshl_b32 s{U0}, s{CBP}, 7", f"s_sub_u32 s{U0+1}, 1920, s{U0}"]
            for j in range(2):
                for sg in (U0, U0+1):
                    ld.append((None, ('vm', f"buffer_load_dword v7, v{VXD+j}, {s(SX,4)}, s{sg} offen offset:{j*1024}", 'ext'), None))
        if B3 and helper:
            pre += [f"v_bfe_u32 v6, v{L}, 4, 1", f"v_lshlrev_b32 v6, 8, v6", f"v_lshrrev_b32 v7, 2, v{T+4}", f"v_add_u32 v6, v6, v7",
                    f"s_lshl_b32 s{U0+7}, s{RB}, 9", f"s_add_u32 s{U0+7}, s{U0+7}, {WS_RS}"]
            for r in range(4):
                ld.append((None, ('vm', f"buffer_load_dword v{2+r}, v6, {s(SWS,4)}, s{U0+7} offen offset:{64*(3-r if sp else r)} sc0 sc1", 'ext'), None))
        def w2l(i):
            l = [(mm, ('vm', d, ('W', i)), None) for mm, d in w2_dmas(i)]
            l[-1] = (l[-1][0], l[-1][1], W2_ADV)
            return l
        if opt.get('astamp') == 3: stamp(e, opt, 3)
        DD = [[], []]
        if not helper and not opt.get('aonly'):
            import gen2b, gen3b
            D = (gen3b if B3 else gen2b).compute_setup(opt)
            for i, grp in enumerate(D):
                g = (i*62)//len(D); DD[g//32].append((g % 32, grp))
        self.body(14, ld + (w2l(0) + w2l(1) if helper else []), pre, DD[0])
        if opt.get('astamp') == 3: stamp(e, opt, 4)
        self.body(15, w2l(2) if helper else [], None, DD[1])
        if opt.get('astamp') == 3: stamp(e, opt, 5)
        post = [f"s_mul_i32 s{T0}, s{RB}, {4*112*2048}", f"s_mul_i32 s{T1}, s{C16}, {7*2048}", f"s_add_u32 s{T0}, s{T0}, s{T1}",
                f"s_min_u32 s{T1}, s{WAVE}, 6", f"s_lshl_b32 s{T1}, s{T1}, 11", f"s_lshl_b32 s{T2}, s{WR}, 10", f"s_add_u32 s{T1}, s{T1}, s{T2}",
                f"v_add_u32 v{T+6}, s{T1}, v{VL16}", f"v_xor_b32 v{T+7}, 2048, v{T+6}"]
        post += [f"s_add_u32 s{U0+7+i}, s{T0}, {i*112*2048}" for i in range(1, 3)] + [f"s_add_u32 s{T1}, s{T0}, {3*112*2048}"]
        sH = [T0, U0+8, U0+9, T1]
        ex = {}
        for i, x in enumerate(post): ex.setdefault(i, []).append(x)
        if sp:
            for mm in range(4):
                ex.setdefault(12, []).append(('vm', f"buffer_load_dwordx4 {v(FX+4*mm,4)}, v{T+5}, {s(SWS,4)}, s{U0+6} offen offset:{mm*64} sc0 sc1", 'rho'))
            ex[12].append(f"s_add_u32 s{U0+6}, s{U0+6}, {WS_MF-WS_RS}")
            for mm in range(4):
                ex.setdefault(13, []).append(('vm', f"buffer_load_dwordx4 {v(FX+16+4*mm,4)}, v{T+5}, {s(SWS,4)}, s{U0+6} offen offset:{mm*64} sc0 sc1", 'rho'))
        self.step((15, 1), None, ex)
        stamp(e, opt, 2)
        m.nvm('ext')
        pk = [(p, mm) for p in range(NB//2) for mm in range(4)]
        PK = EO if sp else FX
        e(f"v_add_u32 v{T+8}, 32768, v{T+6}"); e(f"v_add_u32 v{T+9}, 32768, v{T+7}")
        def epi(hst):
            def fin(i):
                p, mm = pk[i]; D = PK + 4*i
                for b in range(2):
                    a = ACC + 16*(2*p+b) + 4*mm
                    e(f"v_cvt_pk_bf16_f32 v{D+2*b}, v{a}, v{a+1}"); e(f"v_cvt_pk_bf16_f32 v{D+2*b+1}, v{a+2}, v{a+3}")
                for d in range(4): e(f"v_pk_max_i16 v{D+d}, v{D+d}, 0")
                m.put(('vm', f"buffer_store_dwordx4 {v(D,4)}, v{T+6+p}, {s(SWS,4)}, s{sH[mm]} offen{hst}", 'H'))
                m.put(('ds', f"ds_write_b128 v{T+6+p}, {v(D,4)} offset:{LOH + mm*14336 - (32768 if mm >= 2 else 0)}".replace(f"v{T+6+p},", f"v{T+6+p+(2 if mm >= 2 else 0)},"), []))
            for i, (p, mm) in enumerate(pk):
                for b in range(2):
                    acc = v(ACC+16*(2*p+b)+4*mm, 4)
                    e(f"v_mfma_f32_16x16x32_bf16 {acc}, {v(WX+4*(2*p+b),4)}, {v(NMF+4*mm,4)}, {acc}")
                if i >= 2: fin(i-2)
            e("s_nop 7")
            fin(len(pk)-2); fin(len(pk)-1)
        if B3:
            Q = "LT" + ("S" if sp else ("H" if helper else "C"))
            if 'loc' in opt: e(f"s_mov_b32 s{LOC}, {opt['loc']}")
            else:
                e(f"v_cmp_ne_u32 vcc, s3, v{T+2}"); e(f"s_lshl_b32 s{T2}, s{KQ}, 3"); e(f"s_lshr_b32 s{T2}, vcc_lo, s{T2}")
                e(f"s_and_b32 s{T2}, s{T2}, 0xff"); e(f"s_cselect_b32 s{LOC}, 0, 1")
            e(f"s_cmp_lg_u32 s{LOC}, 0"); e(f"s_cbranch_scc1 {Q}_l")
            st = (list(m.dq), list(m.vq))
            epi(' sc0 sc1')
            e(f"s_branch {Q}_j"); e(f"{Q}_l:")
            m.dq, m.vq = list(st[0]), list(st[1])
            epi('')
            e(f"{Q}_j:")
        else: epi(opt.get('hst', ' sc0 sc1'))
        if opt.get('astamp') == 3: stamp(e, opt, 6)
        if sp and opt.get('aonly'): dft_epilogue(e, m, opt)

def dft_epilogue(e, m, opt, flag=False):
    RHO = FX; MF = FX+16; RE = FW
    A1, A2E, A2O, A1s, A2s, C1, KM = T, T+1, T+2, T+3, T+4, 130, T+5
    G = 132
    e(f"s_mul_i32 s{T0}, s{KQ}, {AE_MAT}")
    e(f"s_and_b32 s{T1}, s{RB}, 1"); e(f"s_lshl_b32 s{T2}, s{WR}, 1"); e(f"s_add_u32 s{T1}, s{T1}, s{T2}"); e(f"s_mul_i32 s{T1}, s{T1}, {AE_C}"); e(f"s_add_u32 s{T0}, s{T0}, s{T1}")
    e(f"s_lshr_b32 s{T1}, s{RB}, 1"); e(f"s_lshl_b32 s{T1}, s{T1}, 10"); e(f"s_add_u32 s{T0}, s{T0}, s{T1}"); e(f"s_add_u32 s{T0}, s{T0}, {WS_AE}")
    e(f"v_bfe_u32 v{T+8}, v{L}, 4, 1"); e(f"v_mul_u32_u24 v{T+8}, {AE_PAR}, v{T+8}")
    e(f"v_lshrrev_b32 v{T+9}, 5, v{L}"); e(f"v_lshl_add_u32 v{T+8}, v{T+9}, 9, v{T+8}"); e(f"v_add_u32 v{T+8}, s{T0}, v{T+8}")
    e(f"v_and_b32 v{T+9}, 15, v{L}"); e(f"v_cmp_eq_u32 vcc, 0, v{T+9}"); e(f"v_lshlrev_b32 v{T+9}, 4, v{T+9}")
    e(f"s_mul_i32 s{T1}, s{CBP}, {AE_ET}"); e(f"s_sub_u32 s{T2}, {15*AE_ET}, s{T1}")
    e(f"v_add3_u32 v{A1}, v{T+8}, v{T+9}, s{T1}")
    e(f"v_sub_u32 v{T+9}, v{T+8}, v{T+9}"); e(f"v_add_u32 v{T+9}, s{T2}, v{T+9}")
    e(f"v_add_u32 v{A2O}, 256, v{T+9}"); e(f"v_add_u32 v{A2E}, 512, v{T+9}"); e(f"v_add_u32 v{T+9}, {AE_ET}, v{T+9}")
    e(f"v_cndmask_b32 v{A2E}, v{A2E}, v{T+9}, vcc")
    e(f"v_add_u32 v{T+9}, {(8*AE_ET - AE_MAT) & 0xffffffff}, v{A1}"); e(f"v_cndmask_b32 v{A1s}, v{A1}, v{T+9}, {s(SPM,2)}")
    e(f"v_add_u32 v{T+9}, {8*AE_ET}, v{A1}"); e(f"v_cndmask_b32 v{A2s}, v{A2E}, v{T+9}, {s(SPM,2)}")
    e(f"v_mov_b32 v{C1}, 1.0"); e(f"v_cndmask_b32 v{C1}, v{C1}, v{VZ}, {s(SPM,2)}"); e(f"v_mov_b32 v{C1+1}, v{C1}")
    e(f"s_cmp_eq_u32 s{C16}, 0"); e(f"s_cselect_b32 s{T1}, 0xc4000000, 0"); e(f"v_mov_b32 v{T+9}, s{T1}")
    e(f"v_cndmask_b32 v{KM}, v{VZ}, v{T+9}, vcc")
    e(f"s_lshl_b32 s{T3}, s{KQ}, 31"); e(f"s_mul_i32 s{T2}, s{KQ}, 0x80008000")
    e(f"s_or_b32 s{U0}, s{RB}, s{WR}")
    E = lambda n, i: ACC+32+16*n+4*i
    O = lambda n, i: ACC+64+16*n+4*i
    m.nvm('rho')
    for r in range(16):
        e(f"v_fmac_f32 v{E(0,0)+r}, v{MF+r}, v{KM}"); e(f"v_fmac_f32 v{O(0,0)+r}, v{MF+r}, v{KM}")
    e(f"s_cmp_lg_u32 s{U0}, 0"); e("s_cbranch_scc1 LD_nz")
    e(f"v_cmp_gt_u32 {s(M2,2)}, 16, v{L}")
    for r in range(16): e(f"v_mov_b32 v{G+r}, 0")
    for n in range(2):
        X = G + 8*n; Y = T+8
        if n == 0:
            e(f"v_fma_f32 v{Y}, v{O(n,2)}, v{C1}, v{E(n,2)}"); e(f"v_fma_f32 v{Y+1}, v{O(n,3)}, v{C1}, v{E(n,3)}")
        else:
            e(f"v_add_f32 v{Y}, v{O(n,2)}, v{E(n,2)}"); e(f"v_add_f32 v{Y+1}, v{O(n,3)}, v{E(n,3)}")
        e(f"v_sub_f32 v{Y+2}, v{E(n,2)}, v{O(n,2)}"); e(f"v_sub_f32 v{Y+3}, v{E(n,3)}, v{O(n,3)}")
        e(f"v_mul_f32 v{Y}, v{Y}, v{RHO+8}"); e(f"v_fmac_f32 v{Y}, v{Y+1}, v{RHO+12}")
        e(f"v_mul_f32 v{Y+2}, v{Y+2}, v{RHO+8}"); e(f"v_fmac_f32 v{Y+2}, v{Y+3}, v{RHO+12}")
        e(f"v_cvt_pk_bf16_f32 v{Y}, v{Y}, v{VZ}"); e(f"v_cvt_pk_bf16_f32 v{Y+2}, v{Y+2}, v{VZ}")
        e(f"v_cndmask_b32 v{X}, v{VZ}, v{Y}, {s(M2,2)}"); e(f"v_cndmask_b32 v{X+4}, v{VZ}, v{Y+2}, {s(M2,2)}")
    e(f"s_movk_i32 s{T0}, 8192")
    e(f"buffer_store_dwordx4 {v(G,4)}, v{A1s}, {s(SWS,4)}, s{T0} offen sc0 sc1")
    e(f"buffer_store_dwordx4 {v(G+4,4)}, v{A2s}, {s(SWS,4)}, s{T0} offen sc0 sc1")
    e(f"buffer_store_dwordx4 {v(G+8,4)}, v{A1}, {s(SWS,4)}, s{T0} offen offset:256 sc0 sc1")
    e(f"buffer_store_dwordx4 {v(G+12,4)}, v{A2O}, {s(SWS,4)}, s{T0} offen sc0 sc1")
    e("LD_nz:")
    e(f"s_cmp_lg_u32 s{C16}, 8"); e("s_cbranch_scc1 LD_ns")
    for r in range(4): e(f"v_mov_b32 v{T+8+r}, 0")
    e(f"s_mov_b64 exec, {s(SPM,2)}")
    e(f"buffer_store_dwordx4 {v(T+8,4)}, v{A1}, {s(SWS,4)}, 0 offen sc0 sc1")
    e(f"buffer_store_dwordx4 {v(T+8,4)}, v{A2E}, {s(SWS,4)}, 0 offen sc0 sc1")
    e("s_mov_b64 exec, -1")
    e("LD_ns:")
    e(f"s_cmp_eq_u32 s{U0}, 0"); e(f"s_cselect_b32 s{M2}, 0xffff, 0"); e(f"s_mov_b32 s{M2+1}, 0")
    for r in range(16): e(f"v_mov_b32 v{RE+r}, v{RHO+r}")
    e(f"v_cndmask_b32 v{RE+8}, v{RE+8}, v{VZ}, {s(M2,2)}"); e(f"v_cndmask_b32 v{RE+12}, v{RE+12}, v{VZ}, {s(M2,2)}")
    e(f"s_cmp_eq_u32 s{KQ}, 0"); e("s_cbranch_scc1 LD_cos")
    for r in range(4):
        e(f"v_xor_b32 v{RHO+4+r}, s{T3}, v{RHO+4+r}"); e(f"v_xor_b32 v{RHO+12+r}, s{T3}, v{RHO+12+r}")
    e(f"v_xor_b32 v{T+8}, s{T3}, v{RHO+8}")
    e(f"v_cndmask_b32 v{RHO}, v{RHO}, v{VZ}, {s(M2,2)}"); e(f"v_cndmask_b32 v{RHO+4}, v{RHO+4}, v{VZ}, {s(M2,2)}")
    e(f"v_cndmask_b32 v{RHO+8}, v{RHO+8}, v{T+8}, {s(M2,2)}")
    for r in range(16): e(f"v_cndmask_b32 v{RE+r}, v{RHO+r}, v{RE+r}, {s(SPM,2)}")
    e("s_branch LD_go")
    e("LD_cos:")
    e(f"v_mov_b32 v{RHO+8}, v{RE+8}"); e(f"v_mov_b32 v{RHO+12}, v{RE+12}")
    e("LD_go:")
    for n in range(2):
        for X, R in ((E, RE if n == 0 else RHO), (O, RHO)):
            for r in (0, 2):
                e(f"v_pk_mul_f32 {v(X(n,0)+r,2)}, {v(X(n,0)+r,2)}, {v(R+r,2)}")
                e(f"v_pk_mul_f32 {v(X(n,1)+r,2)}, {v(X(n,1)+r,2)}, {v(R+4+r,2)}")
            for r in (0, 2):
                e(f"v_pk_fma_f32 {v(X(n,0)+r,2)}, {v(X(n,3)+r,2)}, {v(R+12+r,2)}, {v(X(n,0)+r,2)}")
                e(f"v_pk_fma_f32 {v(X(n,1)+r,2)}, {v(X(n,2)+r,2)}, {v(R+8+r,2)}, {v(X(n,1)+r,2)}")
        for i in (0, 1):
            for r in (0, 2):
                if n == 0:
                    e(f"v_pk_fma_f32 {v(E(n,2+i)+r,2)}, {v(O(n,i)+r,2)}, {v(C1,2)}, {v(E(n,i)+r,2)}")
                    e(f"v_pk_fma_f32 {v(O(n,2+i)+r,2)}, {v(E(n,i)+r,2)}, {v(C1,2)}, {v(O(n,i)+r,2)} neg_lo:[0,0,1] neg_hi:[0,0,1]")
                else:
                    e(f"v_pk_add_f32 {v(E(n,2+i)+r,2)}, {v(E(n,i)+r,2)}, {v(O(n,i)+r,2)}")
                    e(f"v_pk_add_f32 {v(O(n,2+i)+r,2)}, {v(E(n,i)+r,2)}, {v(O(n,i)+r,2)} neg_lo:[0,1] neg_hi:[0,1]")
        for X in (E, O):
            for r in (0, 2):
                e(f"v_pk_add_f32 {v(X(n,0)+r,2)}, {v(X(n,2)+r,2)}, {v(X(n,3)+r,2)}")
                e(f"v_pk_add_f32 {v(X(n,1)+r,2)}, {v(X(n,2)+r,2)}, {v(X(n,3)+r,2)} neg_lo:[0,1] neg_hi:[0,1]")
        for X in (E, O):
            for d in range(4):
                e(f"v_cvt_pk_bf16_f32 v{X(n,2)+d}, v{X(n,0)+2*d}, v{X(n,0)+2*d+1}")
        for d in range(4): e(f"v_xor_b32 v{O(n,2)+d}, s{T2}, v{O(n,2)+d}")
        e("s_nop 0")
        for X in (E, O):
            e(f"v_permlane16_swap_b32 v{X(n,2)}, v{X(n,2)+2}"); e(f"v_permlane16_swap_b32 v{X(n,2)+1}, v{X(n,2)+3}")
        e("s_nop 1")
        if n == 0:
            if flag: hflag(e, m, 'LD')
            m.put(('vm', f"buffer_store_dwordx4 {v(E(n,2),4)}, v{A1s}, {s(SWS,4)}, 0 offen sc0 sc1", 'AE'))
            m.put(('vm', f"buffer_store_dwordx4 {v(O(n,2),4)}, v{A2s}, {s(SWS,4)}, 0 offen sc0 sc1", 'AE'))
        else:
            m.put(('vm', f"buffer_store_dwordx4 {v(E(n,2),4)}, v{A1}, {s(SWS,4)}, 0 offen offset:256 sc0 sc1", 'AE'))
            m.put(('vm', f"buffer_store_dwordx4 {v(O(n,2),4)}, v{A2O}, {s(SWS,4)}, 0 offen sc0 sc1", 'AE'))

def hflag(e, m, P=None):
    m.nvm('H')
    e("s_mov_b64 exec, 1")
    if P and m.opt.get('b3', 1):
        e(f"s_cmp_lg_u32 s{LOC}, 0"); e(f"s_cbranch_scc1 {P}_hl")
        e(f"buffer_store_dword v{VTOK}, v{VZ}, {s(SWS,4)}, s{SFL} offen sc0 sc1"); e(f"s_branch {P}_hj")
        e(f"{P}_hl:")
        m.put(('vm', f"buffer_store_dword v{VTOK}, v{VZ}, {s(SWS,4)}, s{SFL} offen", 'fl'))
        e(f"{P}_hj:")
    else:
        m.put(('vm', f"buffer_store_dword v{VTOK}, v{VZ}, {s(SWS,4)}, s{SFL} offen{m.opt.get('fst', ' sc0 sc1')}", 'fl'))
    e("s_mov_b64 exec, -1")

def tokbump(e, P):
    e("s_cmp_lg_u32 s2, 0"); e(f"s_cbranch_scc1 {P}_tb")
    e(f"s_mov_b32 s{T0}, {WS_TOK}"); e("s_mov_b64 exec, 1")
    e(f"buffer_store_dword v{VTOK}, v{VZ}, {s(SWS,4)}, s{T0} offen sc0 sc1")
    e("s_mov_b64 exec, -1")
    e(f"{P}_tb:")

def write_stamps(e, opt):
    if not opt.get('stamp'): return
    e("s_waitcnt vmcnt(0)")
    stamp(e, opt, 7)
    e("s_waitcnt lgkmcnt(0)")
    for i in range(8): e(f"v_mov_b32 v{2+i}, s{80+2*i}")
    e(f"s_lshl_b32 s3, s2, 3"); e(f"s_add_u32 s3, s3, s{WAVE}"); e("s_lshl_b32 s3, s3, 5"); e(f"s_add_u32 s3, s3, {WS_STAMP}")
    e("s_mov_b64 exec, 1"); e("v_mov_b32 v10, 0")
    e(f"buffer_store_dwordx4 v[2:5], v10, {s(SWS,4)}, s3 offen")
    e(f"buffer_store_dwordx4 v[6:9], v10, {s(SWS,4)}, s3 offen offset:16")

KN = "parallel_sum__spectral_fnet__dense_activation_relu__prompt_kernel"
def gen(opt):
    import copy
    e = Asm(); m = Em(e, opt)
    e("; @launch grid=(256,1,1) block=(512,1,1) lds=163840")
    e('.amdgcn_target "amdgcn-amd-amdhsa--gfx950"'); e(".text")
    e(f".globl {KN}"); e(".p2align 8"); e(f".type {KN},@function"); e(f"{KN}:")
    if opt.get('stamp'):
        for i in range(80, 96): e(f"s_mov_b32 s{i}, 0")
    prologue(e, m, opt)
    e(f"s_cmp_ge_u32 s{WAVE}, 6"); e("s_cbranch_scc1 L_spec")
    st0 = (list(m.dq), list(m.vq))
    A = phaseA(e, m, opt, False)
    e(f"s_cmp_ge_u32 s{WAVE}, 4"); e("s_cbranch_scc1 L_nh")
    st1 = (list(m.dq), list(m.vq))
    aonly = opt.get('aonly')
    import gen2b, gen3b
    if opt.get('b3', 1): gen2b = gen3b
    A.tail(False)
    if aonly: hflag(e, m); tokbump(e, "LA"); write_stamps(e, opt); e("s_endpgm")
    else: gen2b.compute(e, m, opt)
    e("L_spec:")
    m.dq, m.vq = list(st0[0]), list(st0[1])
    S = phaseA(e, m, opt, True)
    S.tail(True)
    if aonly: hflag(e, m); write_stamps(e, opt); e("s_endpgm")
    else: gen2b.helper(e, m, opt, True)
    e("L_nh:")
    m.dq, m.vq = list(st1[0]), list(st1[1])
    A.tail(True)
    if aonly: hflag(e, m); write_stamps(e, opt); e("s_endpgm")
    else: gen2b.helper(e, m, opt, False)
    e("L_end:"); e("s_endpgm")
    e('.section .rodata,"a"')
    kernel_desc(e, KN, vgprs=256, accum=256)
    return fix_hazards(e.text())

import re
def fix_hazards(txt):
    out = []; hist = []
    def regs(tok, kind):
        tok = tok.strip()
        if kind == 's' and tok == 'vcc': return {'vcc'}
        mm = re.fullmatch(kind + r'\[(\d+):(\d+)\]', tok.lstrip('-'))
        if mm: return set(range(int(mm.group(1)), int(mm.group(2))+1))
        mm = re.fullmatch(kind + r'(\d+)', tok.lstrip('-'))
        return {int(mm.group(1))} if mm else set()
    n = 0
    for l in txt.split('\n'):
        op = l.split(' ')[0]
        if not l or op.startswith(('.', ';')) or l.startswith(' '): out.append(l); continue
        if l.endswith(':'): out.append(l); continue
        ws = set(); wt = set()
        if op.startswith('v_'):
            args = [a.split(' ')[0] for a in [x.strip() for x in l[len(op):].split(',')]]
            rs = set(); rv = set()
            for a in args[1:]: rs |= regs(a, 's'); rv |= regs(a, 'v')
            need = 0
            for d, (s_, t_) in enumerate(reversed(hist[-2:])):
                if s_ & rs: need = max(need, 2 - d)
                if d == 0 and t_ & rv: need = max(need, 1)
            if need:
                out.append(f"s_nop {need-1}"); hist += [(set(), set())]*need; n += 1
            if op.startswith('v_cmp') or op.startswith('v_readfirstlane'): ws = regs(args[0], 's')
            if op in ('v_cos_f32', 'v_sin_f32', 'v_rcp_f32', 'v_sqrt_f32'): wt = regs(args[0], 'v')
        out.append(l)
        if op == 's_nop': hist += [(set(), set())]*(int(l.split()[1])+1)
        else: hist.append((ws, wt))
        hist = hist[-4:]
    return '\n'.join(out)

if __name__ == "__main__":
    opt = {}
    for a in sys.argv[2:]:
        k, val = a.split('='); opt[k] = eval(val)
    open(sys.argv[1], 'w').write(gen(opt))
```
